```python
import torch

def _softmax(x, axis=-1):
    return torch.softmax(x, dim=axis)
def _gelu(x):
    return torch.nn.functional.gelu(x, approximate="tanh")
def _silu(x):
    return torch.nn.functional.silu(x)
def _sigmoid(x):
    return torch.sigmoid(x)
def _layernorm(x, axis=-1, eps=1e-5):
    m = x.mean(dim=axis, keepdim=True)
    v = x.var(dim=axis, keepdim=True, unbiased=False)
    return (x - m) / torch.sqrt(v + eps)
def _scatter_add(tgt, idx, src, axis=0):
    return tgt.clone().index_add_(axis, idx, src)
def _segment_sum(src, seg, n):
    out = torch.zeros((n,) + src.shape[1:], dtype=src.dtype)
    return out.index_add_(0, seg, src)
def _pad(x, pw):
    flat = tuple(v for pair in reversed(pw) for v in pair)
    return torch.nn.functional.pad(x, flat)

kernel_name = 'concat_heads__sliding_local_dilated__sliding_local_dilated__prompt'

def setup_inputs():

    _w = (lambda a: (lambda t: t.to(torch.bfloat16) if t.is_floating_point() else t)(torch.as_tensor(a)))
    def _A_setup():
        B, S, D = 1, 2048, 512
        return {
            "x": _w((lambda *s: torch.randn(*s, dtype=torch.bfloat16) * 0.2)(B, S, D)),
            "wqkv": _w((lambda *s: torch.randn(*s, dtype=torch.bfloat16) * 0.2)(D, 3 * D)),
            "wo": _w((lambda *s: torch.randn(*s, dtype=torch.bfloat16) * 0.05)(D, D)),
        }
    _A_in = _A_setup()

    def _B_setup():
        B, S, D = 1, 2048, 512
        return {
            "x": _w((lambda *s: torch.randn(*s, dtype=torch.bfloat16) * 0.2)(B, S, D)),
            "wqkv": _w((lambda *s: torch.randn(*s, dtype=torch.bfloat16) * 0.2)(D, 3 * D)),
            "wo": _w((lambda *s: torch.randn(*s, dtype=torch.bfloat16) * 0.05)(D, D)),
        }
    _B_in = _B_setup()

    return {
        "A_x": _A_in["x"],
        "A_wqkv": _A_in["wqkv"],
        "A_wo": _A_in["wo"],
        "B_x": _B_in["x"],
        "B_wqkv": _B_in["wqkv"],
        "B_wo": _B_in["wo"],
    }

def reference(A_x, A_wqkv, A_wo, B_x, B_wqkv, B_wo):
    def _A_ref(x, wqkv, wo):
        B, S, D = x.shape
        H = 32; Dh = D // H
        W, dil = 8, 2
        qkv = (lambda x, *d: x.permute(*d))((x @ wqkv).reshape(B, S, 3, H, Dh), 2, 0, 3, 1, 4)
        q, k, v = qkv[0], qkv[1], qkv[2]
        scale = Dh ** -0.5
        pos = torch.arange(S)
        off = torch.arange(W) * dil
        idx = pos[:, None] - off[None, :]
        mask = idx >= 0
        idx_c = torch.where(mask, idx, 0).reshape(-1)
        kg = k[:, :, idx_c, :].reshape(B, H, S, W, Dh)
        vg = v[:, :, idx_c, :].reshape(B, H, S, W, Dh)
        logits = torch.einsum("bhsd,bhswd->bhsw", q, kg) * scale
        logits = torch.where(mask[None, None, :, :], logits, -1e9)
        attn = _softmax(logits, axis=-1)
        o = torch.einsum("bhsw,bhswd->bhsd", attn, vg)
        return (lambda x, *d: x.permute(*d))(o, 0, 2, 1, 3).reshape(B, S, D) @ wo

    def _B_ref(x, wqkv, wo):
        B, S, D = x.shape
        H = 32; Dh = D // H
        W, dil = 8, 2
        qkv = (lambda x, *d: x.permute(*d))((x @ wqkv).reshape(B, S, 3, H, Dh), 2, 0, 3, 1, 4)
        q, k, v = qkv[0], qkv[1], qkv[2]
        scale = Dh ** -0.5
        pos = torch.arange(S)
        off = torch.arange(W) * dil
        idx = pos[:, None] - off[None, :]
        mask = idx >= 0
        idx_c = torch.where(mask, idx, 0).reshape(-1)
        kg = k[:, :, idx_c, :].reshape(B, H, S, W, Dh)
        vg = v[:, :, idx_c, :].reshape(B, H, S, W, Dh)
        logits = torch.einsum("bhsd,bhswd->bhsw", q, kg) * scale
        logits = torch.where(mask[None, None, :, :], logits, -1e9)
        attn = _softmax(logits, axis=-1)
        o = torch.einsum("bhsw,bhswd->bhsd", attn, vg)
        return (lambda x, *d: x.permute(*d))(o, 0, 2, 1, 3).reshape(B, S, D) @ wo

    a = _A_ref(A_x, A_wqkv, A_wo)
    b = _B_ref(B_x, B_wqkv, B_wo)
    return torch.concatenate([a, b], axis=-1)
```

```python
NAME = "concat_heads__sliding_local_dilated__sliding_local_dilated__prompt"
HDR = """; generated
{launch}
.amdgcn_target "amdgcn-amd-amdhsa--gfx950"
.text
"""
def kernel_head(name):
    return f""".globl {name}
.p2align 8
.type {name},@function
{name}:
"""
def kernel_desc(name, vgpr=256, accum=256, sgpr=102):
    return f""".section .rodata,"a"
.p2align 6
.amdhsa_kernel {name}
  .amdhsa_next_free_vgpr {vgpr}
  .amdhsa_next_free_sgpr {sgpr}
  .amdhsa_accum_offset {accum}
  .amdhsa_group_segment_fixed_size 0
  .amdhsa_kernarg_size 72
  .amdhsa_user_sgpr_count 2
  .amdhsa_user_sgpr_kernarg_segment_ptr 1
  .amdhsa_system_sgpr_workgroup_id_x 1
  .amdhsa_float_denorm_mode_32 3
.end_amdhsa_kernel
.text
"""
```

```python
import re
TRANS = ("v_exp_f32", "v_log_f32", "v_rcp_f32", "v_rsq_f32", "v_sqrt_f32", "v_sin_f32", "v_cos_f32", "v_rcp_iflag_f32")
def regs(tok):
    tok = tok.strip()
    tok = tok.lstrip("-")
    m = re.fullmatch(r"abs\((.*)\)|\|(.*)\|", tok)
    if m: tok = m.group(1) or m.group(2)
    m = re.fullmatch(r"([vas])(\d+)", tok)
    if m: return [(m.group(1), int(m.group(2)))]
    m = re.fullmatch(r"([vas])\[(\d+):(\d+)\]", tok)
    if m: return [(m.group(1), i) for i in range(int(m.group(2)), int(m.group(3)) + 1)]
    if tok == "vcc": return [("s", "vcc")]
    if tok == "exec": return [("s", "exec")]
    if tok == "m0": return [("s", "m0")]
    return []
class Ins:
    pass
def parse(line):
    t = line.split(";")[0].strip()
    if not t or t.endswith(":") or t.startswith("."): return None
    parts = t.split(None, 1)
    op = parts[0]
    rest = parts[1] if len(parts) > 1 else ""
    ops = [o.strip() for o in rest.split(",")] if rest else []
    ops2 = []
    mods = ""
    for i, o in enumerate(ops):
        if re.match(r"^\d+\]", o) or (ops2 and ops2[-1].count("[") > ops2[-1].count("]")):
            ops2[-1] += "," + o
        else:
            ops2.append(o)
    clean = []
    for o in ops2:
        p = o.split(None, 1)
        clean.append(p[0] if p else "")
        if len(p) > 1: mods += " " + p[1]
    I = Ins(); I.op = op; I.mods = mods; I.text = t
    I.dst = []; I.src = []; I.cls = "other"; I.passes = 0; I.srcC = []; I.srcAB = []; I.storedata = []
    if op.startswith("v_mfma"):
        I.cls = "mfma"; I.dst = regs(clean[0]); I.srcAB = regs(clean[1]) + regs(clean[2]); I.srcC = regs(clean[3]); I.src = I.srcAB + I.srcC
        I.passes = 8 if "32x32" in op else 4
    elif op.startswith("v_"):
        I.cls = "valu"
        base = op.replace("_e32", "").replace("_e64", "").replace("_dpp", "")
        if base.startswith("v_permlane") or base.startswith("v_swap"):
            I.dst = regs(clean[0]) + regs(clean[1]); I.src = list(I.dst)
        elif base.startswith("v_cmp"):
            I.dst = regs(clean[0]); I.src = sum((regs(c) for c in clean[1:]), [])
        elif base in ("v_add_co_u32", "v_sub_co_u32", "v_addc_co_u32"):
            I.dst = regs(clean[0]) + regs(clean[1]); I.src = sum((regs(c) for c in clean[2:]), [])
        else:
            I.dst = regs(clean[0]); I.src = sum((regs(c) for c in clean[1:]), [])
            if base.startswith("v_fmac") or base.startswith("v_dot2c") or "dpp" in op or "row_" in mods or "quad_perm" in mods:
                I.src += I.dst
        I.trans = base in TRANS
        I.perm = base.startswith("v_permlane")
        I.dpp = ("dpp" in op) or ("row_" in mods) or ("quad_perm" in mods)
        I.rdlane = base in ("v_readlane_b32", "v_readfirstlane_b32")
    elif op.startswith("buffer_") or op.startswith("global_"):
        I.cls = "vmem"
        lds = " lds" in (" " + mods + " ") or op.startswith("global_load_lds")
        I.lds = lds
        if "store" in op or "atomic" in op:
            if op.startswith("buffer_"):
                I.storedata = regs(clean[0]); I.src = sum((regs(c) for c in clean), [])
            else:
                I.storedata = regs(clean[1]); I.src = sum((regs(c) for c in clean), [])
            I.wide = op.endswith("x4") or op.endswith("x3")
        elif lds:
            I.src = sum((regs(c) for c in clean), []) + [("s", "m0")]
        elif op in ("buffer_wbl2", "buffer_inv"):
            pass
        else:
            I.dst = regs(clean[0]); I.src = sum((regs(c) for c in clean[1:]), [])
    elif op.startswith("ds_"):
        I.cls = "ds"
        if op.startswith("ds_read") or "permute" in op or "swizzle" in op:
            I.dst = regs(clean[0]); I.src = sum((regs(c) for c in clean[1:]), [])
        else:
            I.src = sum((regs(c) for c in clean), [])
    elif op.startswith("s_"):
        I.cls = "salu"
        if op == "s_nop":
            I.cls = "nop"; I.n = int(clean[0], 0) + 1
        elif op.startswith("s_cmp") or op.startswith("s_waitcnt") or op.startswith("s_cbranch") or op in ("s_barrier", "s_branch", "s_endpgm", "s_setprio", "s_sleep"):
            I.src = sum((regs(c) for c in clean), [])
        else:
            I.dst = regs(clean[0]); I.src = sum((regs(c) for c in clean[1:]), [])
            if "saveexec" in op: I.dst += [("s", "exec")]
    return I
def need(P, C):
    n = 0
    pd = set(P.dst)
    if P.cls == "valu":
        vd = {r for r in pd if r[0] in "va"}; sd = {r for r in pd if r[0] == "s"}
        if C.cls == "mfma" and vd & set(C.src): n = max(n, 2)
        if C.cls == "valu":
            if (C.perm or C.dpp) and vd & set(C.src): n = max(n, 2)
            if C.rdlane and vd & set(C.src): n = max(n, 1)
            if P.trans and not C.trans and vd & set(C.src): n = max(n, 1)
            if sd & set(C.src): n = max(n, 4 if C.rdlane else 2)
            if ("s", "vcc") in sd and C.op.startswith("v_cndmask"): n = max(n, 2)
        if C.cls == "vmem" and sd & set(C.src): n = max(n, 5)
        if ("s", "exec") in sd: n = max(n, 5)
    if P.cls == "mfma":
        k = 0 if P.passes == 4 else 1
        if C.cls == "mfma":
            if pd & set(C.srcAB): n = max(n, (8, 12)[k])
            if pd & set(C.srcC):
                if not (P.dst == C.srcC and P.passes == C.passes): n = max(n, (6, 10)[k])
            elif pd & set(C.dst): n = max(n, (6, 10)[k])
        elif C.cls in ("valu", "vmem", "ds"):
            if pd & (set(C.src) | set(C.dst)): n = max(n, (8, 12)[k])
        if C.cls == "valu" and set(P.srcC) & set(C.dst): n = max(n, (3, 7)[k])
    if P.cls == "salu" and ("s", "m0") in pd and C.cls == "vmem" and getattr(C, "lds", False): n = max(n, 1)
    if P.cls == "vmem" and P.storedata and getattr(P, "wide", False):
        if set(P.storedata) & set(C.dst): n = max(n, 2)
    return n
def fix(text, report=False):
    out = []; hist = []
    added = 0
    for line in text.split("\n"):
        I = parse(line)
        t = line.split(";")[0].strip()
        if I is None:
            if t.startswith(".rept") or t.startswith(".endr"): raise ValueError("no .rept in hazard-checked code")
            out.append(line); continue
        dist = 0; req = 0
        for (P, sl) in reversed(hist):
            r = need(P, I) - dist
            if r > req: req = r
            dist += sl
            if dist >= 20: break
        if req > 0:
            out.append(f"    s_nop {req-1}"); N = Ins(); N.cls = "nop"; N.dst = []; N.src = []; N.storedata = []; N.srcC = []
            hist.append((N, req)); added += req
            if report: print("nop", req, "before", I.text)
        out.append(line)
        hist.append((I, I.n if I.cls == "nop" else 1))
        if len(hist) > 40: hist = hist[-30:]
        if I.op in ("s_branch", "s_endpgm"): hist = []
    return "\n".join(out), added
```

```python
import sys, struct
from asmlib import *
import hz

def f2u(f): return struct.unpack("<I", struct.pack("<f", f))[0]

class Cfg:
    arr = 0
    rot = 0
    stamps = False
    st_flags = "sc1"
    ld_flags = "sc1"
    out_flags = ""
    dma_x = ""
    dma_w = ""
    def __init__(self, **kw):
        for k, v in kw.items():
            assert hasattr(self, k), k
            setattr(self, k, v)

HALO = 0; SLOT0 = 8192; SLOTSZ = 40960; WO_L = 98304; STAGE = 8192
WS_FLAG = 8 << 20; WS_STAMP = 16 << 20
sX, sW, sWO, sOUT, sWS, sDBG = 24, 28, 32, 36, 40, 44
sWAVE, sRT, sG, sBR, sPAR, sSEG, sROT = 48, 49, 50, 51, 52, 53, 54
sT = 55
sST = 64
def srd(r): return f"s[{r}:{r+3}]"
def vr(a, n): return f"v[{a}:{a+n-1}]" if n > 1 else f"v{a}"

def gen(cfg):
    K = NAME + "_kernel"
    L = []
    def e(s):
        for ln in s.strip("\n").split("\n"):
            L.append(ln if ln.endswith(":") else "    " + ln.strip())
    nst = [0]
    def stamp(name=None):
        if cfg.stamps:
            i = nst[0]; nst[0] += 1
            e(f"s_memtime s[{sST+2*i}:{sST+2*i+1}]")
    def dump_stamps(n):
        if not cfg.stamps: return
        e("s_memrealtime s[96:97]\ns_waitcnt lgkmcnt(0)")
        e("v_mov_b32 v16, s98\nv_mov_b32 v17, s96")
        e(f"s_getreg_b32 s{sT}, hwreg(HW_REG_XCC_ID, 0, 4)\nv_mov_b32 v18, s{sT}")
        for i in range(1, 14):
            if i < n:
                e(f"s_sub_u32 s{sT}, s{sST+2*i}, s{sST}\nv_mov_b32 v{18+i}, s{sT}")
            else:
                e(f"v_mov_b32 v{18+i}, 0")
        e(f"""s_lshl_b32 s{sT}, s2, 3
        s_add_u32 s{sT}, s{sT}, s{sWAVE}
        s_lshl_b32 s{sT}, s{sT}, 6
        s_add_u32 s{sT}, s{sT}, {WS_STAMP}
        s_mov_b64 exec, 1
        v_mov_b32 v1, 0""")
        for i in range(4):
            e(f"buffer_store_dwordx4 v[{16+4*i}:{19+4*i}], v1, {srd(sWS)}, s{sT} offen offset:{16*i}")
        e("s_waitcnt vmcnt(0)")

    stamp()
    if cfg.stamps: e("s_memrealtime s[98:99]")
    e(f"""
    s_cmp_ge_u32 s2, 256
    s_cbranch_scc1 L_end
    s_load_dwordx16 s[4:19], s[0:1], 0
    s_load_dwordx2 s[20:21], s[0:1], 64
    s_getpc_b64 s[22:23]
L_pc:
    v_lshlrev_b32 v1, 6, v0
    v_min_u32 v1, L_end-L_pc, v1
    global_load_dword v255, v1, s[22:23]
    v_lshrrev_b32 v3, 6, v0
    s_and_b32 s{sT}, s2, 7
    s_lshr_b32 s{sT+1}, s2, 3
    v_readfirstlane_b32 s{sWAVE}, v3
    v_and_b32 v0, 63, v0
    """)
    if cfg.arr == 0:
        e(f"""
        s_lshr_b32 s{sRT}, s{sT+1}, 3
        s_lshl_b32 s{sT}, s{sT}, 2
        s_add_u32 s{sRT}, s{sRT}, s{sT}
        s_and_b32 s{sG}, s{sT+1}, 7
        """)
    else:
        e(f"""
        s_lshr_b32 s{sRT}, s{sT+1}, 2
        s_lshr_b32 s{sT+2}, s{sT}, 1
        s_lshl_b32 s{sT+2}, s{sT+2}, 3
        s_add_u32 s{sRT}, s{sRT}, s{sT+2}
        s_and_b32 s{sG}, s{sT+1}, 3
        s_and_b32 s{sT+2}, s{sT}, 1
        s_lshl_b32 s{sT+2}, s{sT+2}, 2
        s_add_u32 s{sG}, s{sG}, s{sT+2}
        """)
    e(f"""
    s_lshr_b32 s{sBR}, s{sRT}, 4
    s_bfe_u32 s{sPAR}, s{sRT}, 0x10003
    s_and_b32 s{sSEG}, s{sRT}, 7
    s_cmp_ge_u32 s{sWAVE}, 4
    s_cbranch_scc0 L_compute
    """)
    sLW, sXB, sWB, sKO, sWOFF, sHOFF = sT, sT+1, sT+2, sT+3, sT+4, sT+5
    vX, vW, vH = 8, 12, 14
    a, b = (sRT, sG) if cfg.arr == 0 else (sG, sRT)
    if cfg.rot == 1:
        e(f"s_lshl_b32 s{sROT}, s{a}, 1\ns_add_u32 s{sROT}, s{sROT}, s{b}\ns_and_b32 s{sROT}, s{sROT}, 7")
    elif cfg.rot == 2:
        e(f"s_add_u32 s{sROT}, s{a}, s{b}\ns_and_b32 s{sROT}, s{sROT}, 1\ns_lshl_b32 s{sROT}, s{sROT}, 2")
    else:
        e(f"s_mov_b32 s{sROT}, 0")
    e(f"""
    s_sub_u32 s{sLW}, s{sWAVE}, 4
    v_lshrrev_b32 v3, 3, v0
    v_and_b32 v4, 7, v0
    v_lshrrev_b32 v5, 4, v0
    v_xor_b32 v6, v4, v5
    v_lshlrev_b32 v6, 4, v6
    v_lshl_add_u32 v6, v3, 11, v6
    s_lshl_b32 s{sT+6}, s{sSEG}, 18
    s_lshl_b32 s{sT+7}, s{sPAR}, 10
    s_add_u32 s{sT+6}, s{sT+6}, s{sT+7}
    s_sub_u32 s{sHOFF}, s{sT+6}, 16384
    s_cmp_eq_u32 s{sSEG}, 0
    s_cselect_b32 s{sHOFF}, 0x40000000, s{sHOFF}
    s_lshl_b32 s{sT+7}, s{sLW}, 16
    s_add_u32 s{sT+6}, s{sT+6}, s{sT+7}
    v_add_u32 v{vX}, s{sT+6}, v6
    v_xor_b32 v{vX+1}, 64, v{vX}
    v_add_u32 v{vX+1}, 15360, v{vX+1}
    v_add_u32 v{vX+2}, 30720, v{vX}
    v_add_u32 v{vX+3}, 30720, v{vX+1}
    v_lshlrev_b32 v7, 1, v5
    v_xor_b32 v6, v4, v7
    v_lshlrev_b32 v6, 4, v6
    v_lshl_add_u32 v6, v3, 11, v6
    v_add_u32 v{vH}, s{sHOFF}, v6
    v_and_b32 v7, 2, v7
    v_xor_b32 v7, v7, v4
    v_lshlrev_b32 v7, 4, v7
    v_mul_u32_u24 v6, 3072, v3
    v_add_u32 v7, v7, v6
    s_mul_i32 s{sT+6}, s{sLW}, 49152
    s_lshl_b32 s{sT+7}, s{sG}, 7
    s_add_u32 s{sT+6}, s{sT+6}, s{sT+7}
    v_add_u32 v{vW}, s{sT+6}, v7
    v_xor_b32 v{vW+1}, 64, v{vW}
    v_add_u32 v{vW+1}, 24576, v{vW+1}
    s_lshl_b32 s{sXB}, s{sLW}, 12
    s_mul_i32 s{sWB}, s{sLW}, 6144
    s_lshl_b32 s{sT+6}, s{sLW}, 1
    s_add_u32 s{sT+6}, s{sT+6}, s{sROT}
    s_and_b32 s{sT+7}, s{sT+6}, 7
    s_lshl_b32 s{sT+7}, s{sT+7}, 7
    s_add_u32 s{sT+6}, s{sT+6}, 1
    s_and_b32 s{sT+6}, s{sT+6}, 7
    s_lshl_b32 s{sT+6}, s{sT+6}, 7
    s_lshl_b32 m0, s{sLW}, 11
    s_waitcnt lgkmcnt(0)
    s_cmp_eq_u32 s{sBR}, 0
    s_cselect_b32 s{sX}, s4, s10
    s_cselect_b32 s{sX+1}, s5, s11
    s_mov_b32 s{sX+2}, 0x200000
    s_mov_b32 s{sX+3}, 0x20000
    s_cselect_b32 s{sW}, s6, s12
    s_cselect_b32 s{sW+1}, s7, s13
    s_mov_b32 s{sW+2}, 0x180000
    s_mov_b32 s{sW+3}, 0x20000
    s_cselect_b32 s{sWO}, s8, s14
    s_cselect_b32 s{sWO+1}, s9, s15
    buffer_load_dwordx4 v{vH}, {srd(sX)}, s{sT+7} offen {cfg.dma_x} lds
    s_add_u32 m0, m0, 1024
    s_mov_b32 s{sWO+2}, 0x80000
    buffer_load_dwordx4 v{vH}, {srd(sX)}, s{sT+6} offen {cfg.dma_x} lds
    """)
    def issue(c):
        slot = SLOT0 + (c % 3) * SLOTSZ
        e(f"""
        s_add_u32 s{sT+6}, s{sROT}, {c}
        s_and_b32 s{sT+6}, s{sT+6}, 7
        s_add_u32 m0, s{sWB}, {slot + 16384}
        s_mul_i32 s{sWOFF}, s{sT+6}, 196608
        s_lshl_b32 s{sKO}, s{sT+6}, 7
        """)
        for p in range(3):
            e(f"buffer_load_dwordx4 v{vW}, {srd(sW)}, s{sWOFF} offen offset:{1024*p} {cfg.dma_w} lds")
        e(f"s_add_u32 m0, s{sWB}, {slot + 16384 + 3072}")
        for p in range(3):
            e(f"buffer_load_dwordx4 v{vW+1}, {srd(sW)}, s{sWOFF} offen offset:{1024*p} {cfg.dma_w} lds")
        e(f"s_add_u32 m0, s{sXB}, {slot}")
        for j in range(4):
            e(f"buffer_load_dwordx4 v{vX+j}, {srd(sX)}, s{sKO} offen offset:{1024*j} {cfg.dma_x} lds")
    issue(0)
    e(f"""
    s_mov_b32 s{sWO+3}, 0x20000
    s_mov_b32 s{sWS}, s20
    s_mov_b32 s{sWS+1}, s21
    s_mov_b32 s{sWS+2}, 0x10000000
    s_mov_b32 s{sWS+3}, 0x20000
    s_mov_b32 s{sDBG}, s18
    s_mov_b32 s{sDBG+1}, s19
    s_mov_b32 s{sDBG+2}, 256
    s_mov_b32 s{sDBG+3}, 0x20000
    """)
    sFL = sT + 8
    e(f"""
    s_lshl_b32 s{sFL}, s{sRT}, 3
    s_add_u32 s{sFL}, s{sFL}, s{sG}
    s_lshl_b32 s{sT+6}, s{sFL}, 7
    s_add_u32 s{sT+6}, s{sT+6}, {WS_FLAG}
    v_mov_b32 v16, 0
    s_cmp_eq_u32 s{sLW}, 0
    s_cbranch_scc0 L_noclr
    s_mov_b64 exec, 1
    buffer_store_dword v16, off, {srd(sWS)}, s{sT+6} sc1
    s_mov_b64 exec, -1
L_noclr:
    """)
    issue(1); issue(2)
    stamp()
    e("s_waitcnt vmcnt(20)\ns_barrier")
    stamp()
    e("s_waitcnt vmcnt(10)\ns_barrier")
    e(f"""
    s_cmp_eq_u32 s{sLW}, 0
    s_cbranch_scc0 L_noann
    s_getreg_b32 s{sT+6}, hwreg(HW_REG_XCC_ID, 0, 4)
    s_add_u32 s{sT+6}, s{sT+6}, 1
    v_mov_b32 v16, s{sT+6}
    s_mov_b64 exec, 1
    buffer_store_byte v16, off, {srd(sDBG)}, s{sFL} sc1
    s_mov_b64 exec, -1
L_noann:
    """)
    for c in range(2, 8):
        if c + 1 <= 7:
            issue(c + 1)
            e("s_waitcnt vmcnt(10)\ns_barrier")
        else:
            e("s_waitcnt vmcnt(0)\ns_barrier")
        stamp()
    e(f"""
    v_lshrrev_b32 v3, 3, v0
    v_and_b32 v4, 7, v0
    v_lshrrev_b32 v5, 2, v0
    v_and_b32 v5, 4, v5
    v_xor_b32 v4, v4, v5
    v_lshlrev_b32 v4, 4, v4
    v_lshl_add_u32 v4, v3, 10, v4
    s_lshl_b32 s{sT+6}, s{sLW}, 17
    s_lshl_b32 s{sT+7}, s{sG}, 7
    s_add_u32 s{sT+6}, s{sT+6}, s{sT+7}
    v_add_u32 v{vX}, s{sT+6}, v4
    v_add_u32 v{vX+1}, 7168, v{vX}
    v_add_u32 v{vX+2}, 14336, v{vX}
    v_add_u32 v{vX+3}, 21504, v{vX}
    s_lshl_b32 s{sXB}, s{sLW}, 14
    """)
    for gq in range(4):
        e(f"s_add_u32 m0, s{sXB}, {WO_L + 4096*gq}\ns_mov_b32 s{sKO}, {32768*gq}")
        for j in range(4):
            e(f"buffer_load_dwordx4 v{vX+j}, {srd(sWO)}, s{sKO} offen offset:{1024*j} lds")
    e(f"""
    s_cmp_eq_u32 s{sLW}, 0
    s_cbranch_scc1 L_sync
    s_waitcnt vmcnt(0)
    s_barrier
    s_barrier
    s_branch L_ldone
L_sync:
    s_lshl_b32 s{sT+6}, s{sRT}, 3
    s_mov_b32 s{sT+7}, 0x400000
    s_mov_b64 exec, 0xff
L_poll1:
    buffer_load_ubyte v16, v0, {srd(sDBG)}, s{sT+6} offen sc1
    s_sub_u32 s{sT+7}, s{sT+7}, 1
    s_cmp_eq_u32 s{sT+7}, 0
    s_cbranch_scc1 L_poll1x
    s_waitcnt vmcnt(0)
    v_cmp_eq_u32 vcc, 0, v16
    s_cbranch_vccnz L_poll1
L_poll1x:
    s_waitcnt vmcnt(0)
    s_lshl_b32 s{sT+6}, s{sFL}, 7
    s_add_u32 s{sT+6}, s{sT+6}, {WS_FLAG}
    v_mov_b32 v16, 1
    v_lshlrev_b32 v17, 7, v0
    s_barrier
    s_mov_b64 exec, 1
    buffer_store_dword v16, off, {srd(sWS)}, s{sT+6} sc1
    s_mov_b64 exec, 0xff
    s_lshl_b32 s{sT+6}, s{sRT}, 10
    s_add_u32 s{sT+6}, s{sT+6}, {WS_FLAG}
    s_mov_b32 s{sT+7}, 0x400000
L_poll2:
    buffer_load_dword v18, v17, {srd(sWS)}, s{sT+6} offen sc1
    s_sub_u32 s{sT+7}, s{sT+7}, 1
    s_cmp_eq_u32 s{sT+7}, 0
    s_cbranch_scc1 L_poll2x
    s_waitcnt vmcnt(0)
    v_cmp_ne_u32 vcc, 1, v18
    s_cbranch_vccnz L_poll2
L_poll2x:
    s_barrier
    s_mov_b64 exec, -1
L_ldone:
    """)
    stamp()
    dump_stamps(nst[0])
    e("s_endpgm")
    nst[0] = 1
    e("L_compute:")
    AQ = 0; AK = 32; AV = 68
    BUF = [104, 152]
    vXA = 200
    vWA = 206; vHA = 209
    vB = 212; vB0 = 216; vONE = 220
    vL = 224
    vT = 225
    def accQ(t): return AQ + 4*t
    def accK(t): return AK + 4*(t+1)
    def accV(t): return AV + 4*(t+1)
    sC = sT
    sSC = 56
    e(f"""
    v_mov_b32 v{vL}, v0
    v_and_b32 v1, 15, v0
    v_lshrrev_b32 v2, 4, v0
    v_bfe_u32 v3, v0, 1, 3
    v_xor_b32 v3, v3, v2
    v_lshlrev_b32 v3, 4, v3
    v_lshl_add_u32 v3, v1, 7, v3
    v_add_u32 v{vXA}, {SLOT0}, v3
    v_xor_b32 v{vXA+1}, 64, v{vXA}
    v_add_u32 v{vXA+2}, {SLOTSZ}, v{vXA}
    v_add_u32 v{vXA+3}, {SLOTSZ}, v{vXA+1}
    v_add_u32 v{vXA+4}, {2*SLOTSZ}, v{vXA}
    v_add_u32 v{vXA+5}, {2*SLOTSZ}, v{vXA+1}
    v_and_b32 v3, 6, v0
    v_xor_b32 v3, v3, v2
    v_lshlrev_b32 v3, 4, v3
    v_and_b32 v4, 7, v0
    v_lshl_add_u32 v{vHA}, v4, 7, v3
    v_xor_b32 v{vHA+1}, 64, v{vHA}
    v_bfe_u32 v3, v0, 3, 2
    v_xor_b32 v3, s{sWAVE}, v3
    v_lshlrev_b32 v3, 5, v3
    v_and_b32 v4, 3, v0
    v_lshl_add_u32 v3, v4, 3, v3
    v_bfe_u32 v4, v0, 2, 2
    v_lshl_add_u32 v3, v4, 7, v3
    v_mul_u32_u24 v4, 3072, v2
    v_add_u32 v3, v3, v4
    v_add_u32 v{vWA}, {SLOT0+16384}, v3
    v_add_u32 v{vWA+1}, {SLOT0+16384+SLOTSZ}, v3
    v_add_u32 v{vWA+2}, {SLOT0+16384+2*SLOTSZ}, v3
    v_lshlrev_b32 v3, 2, v2
    v_sub_u32 v3, v1, v3
    v_mov_b32 v5, 0xff800000
    s_cmp_eq_u32 s{sSEG}, 0
    s_cselect_b32 s{sT+4}, {f2u(-4e9)}, 0
    v_mov_b32 v6, s{sT+4}
    """)
    for r in range(4):
        e(f"""
        v_subrev_u32 v4, {r}, v3
        v_cmp_gt_i32 s[{sT+5}:{sT+6}], 0, v4
        v_and_b32 v4, 8, v4
        v_cmp_eq_u32 vcc, 0, v4
        v_cndmask_b32 v{vB0+r}, 0, v6, s[{sT+5}:{sT+6}]
        v_cndmask_b32 v{vB+r}, v5, 0, vcc
        v_cndmask_b32 v{vB0+r}, v5, v{vB0+r}, vcc
        v_mov_b32 v{vONE+r}, 0x3f803f80
        """)
    e(f"""
    s_mov_b32 s{sSC}, {f2u(0.25*1.4426950408889634)}
    s_mov_b32 s{sSC+1}, s{sSC}
    s_waitcnt lgkmcnt(0)
    s_mov_b32 s{sWS}, s20
    s_mov_b32 s{sWS+1}, s21
    s_mov_b32 s{sWS+2}, 0x10000000
    s_mov_b32 s{sWS+3}, 0x20000
    s_mov_b32 s{sOUT}, s16
    s_mov_b32 s{sOUT+1}, s17
    s_mov_b32 s{sOUT+2}, 0x400000
    s_mov_b32 s{sOUT+3}, 0x20000
    """)
    def reads(step):
        c, s = step >> 1, step & 1
        B = BUF[step & 1]; sl = c % 3
        R = []
        for p in (1, 2, 0):
            for j in range(2):
                R.append(f"ds_read_b64_tr_b16 v[{B+36+4*p+2*j}:{B+37+4*p+2*j}], v{vWA+sl} offset:{s*12288 + p*1024 + j*512}")
        R.append(f"ds_read_b128 v[{B}:{B+3}], v{vHA+s} offset:{c*1024}")
        for t in range(8):
            R.append(f"ds_read_b128 v[{B+4+4*t}:{B+7+4*t}], v{vXA+2*sl+s} offset:{t*2048}")
        return R
    def mfmas(step):
        B = BUF[step & 1]
        Wq, Wk, Wv = vr(B+36, 4), vr(B+40, 4), vr(B+44, 4)
        M = []
        for t in range(-1, 8):
            x = vr(B + 4*(t+1), 4)
            def c(a): return "0" if step == 0 else vr(a, 4)
            M.append(f"v_mfma_f32_16x16x32_bf16 {vr(accK(t),4)}, {Wk}, {x}, {c(accK(t))}")
            M.append(f"v_mfma_f32_16x16x32_bf16 {vr(accV(t),4)}, {x}, {Wv}, {c(accV(t))}")
            if t >= 0:
                M.append(f"v_mfma_f32_16x16x32_bf16 {vr(accQ(t),4)}, {Wq}, {x}, {c(accQ(t))}")
        return M
    stamp()
    e("s_barrier")
    stamp()
    for r in reads(0): e(r)
    QP = BUF[0]
    PP = [BUF[0] + 32 + 4*t if t < 4 else 232 + 4*(t-4) for t in range(8)]
    KP = BUF[1]
    VP = BUF[1] + 34
    for step in range(16):
        e("s_waitcnt lgkmcnt(0)")
        if step & 1 and step < 15:
            e("s_barrier")
            if step in (1, 7, 13): stamp()
        M = mfmas(step)
        if step < 15:
            F = reads(step + 1)
        else:
            F = [f"v_mov_b64 v[{a}:{a+1}], 0" for a in list(range(QP, QP+48, 2)) + list(range(232, 248, 2))]
        n = 0
        for i, m in enumerate(M):
            e(m)
            k = 1 if step < 15 else 2
            for _ in range(k):
                if n < len(F): e(F[n]); n += 1
        assert n == len(F)
    stamp()
    VP = 200
    VP = BUF[1] + 34
    def Vp(t): return VP + 2*(7 - t)
    def Kp(t): return KP + 4*t if t >= 0 else KP + 32
    cvt = lambda d, a: e(f"v_cvt_pk_bf16_f32 v{d}, v{a}, v{a+1}\nv_cvt_pk_bf16_f32 v{d+1}, v{a+2}, v{a+3}")
    sMH = 58
    e(f"s_mov_b32 s{sMH}, 0xff00ff00\ns_mov_b32 s{sMH+1}, 0xff00ff00")
    for t in range(-1, 8): cvt(Kp(t), accK(t))
    e(f"s_mov_b64 exec, s[{sMH}:{sMH+1}]")
    for t in range(8): cvt(QP + 4*t, accQ(t))
    e(f"s_not_b64 exec, exec")
    for t in range(8): cvt(QP + 4*t + 2, accQ(t))
    e(f"s_mov_b64 exec, -1")
    for t in range(8):
        for r in range(2):
            e(f"v_cndmask_b32 v{Kp(t)+2+r}, v{Kp(t)+r}, v{Kp(t-1)+r}, s[{sMH}:{sMH+1}]")
    for t in range(8):
        e(f"v_mfma_f32_16x16x32_bf16 {vr(accQ(t),4)}, {vr(Kp(t),4)}, {vr(QP+4*t,4)}, {vr(vB0 if t == 0 else vB,4)}")
        cvt(Vp(t), accV(t))
    cvt(Vp(-1), accV(-1))
    MX = [accK(t) for t in range(8)]
    for t in range(8):
        S = accQ(t)
        e(f"v_max3_f32 v{MX[t]}, v{S}, v{S+1}, v{S+2}")
    for t in range(8):
        S = accQ(t)
        e(f"v_max_f32 v{MX[t]}, v{MX[t]}, v{S+3}")
    for h in range(2):
        m = MX[4*h:4*h+4]
        e(f"v_permlane32_swap_b32 v{m[0]}, v{m[1]}\nv_permlane32_swap_b32 v{m[2]}, v{m[3]}")
    for h in range(2):
        m = MX[4*h:4*h+4]
        e(f"v_max_f32 v{m[0]}, v{m[0]}, v{m[1]}\nv_max_f32 v{m[2]}, v{m[2]}, v{m[3]}")
    for h in range(2):
        m = MX[4*h:4*h+4]
        e(f"v_permlane16_swap_b32 v{m[0]}, v{m[2]}")
    for h in range(2):
        m = MX[4*h:4*h+4]
        e(f"v_max_f32 v{m[0]}, v{m[0]}, v{m[2]}")
    for h in range(2):
        m = MX[4*h:4*h+4]
        e(f"v_mul_f32 v{m[2]}, s{sSC}, -v{m[0]}\nv_mul_f32 v{m[0]}, s{sSC}, -v{m[0]}")
    for h in range(2):
        m = MX[4*h:4*h+4]
        e(f"v_permlane16_swap_b32 v{m[0]}, v{m[2]}")
    for h in range(2):
        m = MX[4*h:4*h+4]
        e(f"v_mov_b32 v{m[1]}, v{m[0]}\nv_mov_b32 v{m[3]}, v{m[2]}")
    for h in range(2):
        m = MX[4*h:4*h+4]
        e(f"v_permlane32_swap_b32 v{m[0]}, v{m[1]}\nv_permlane32_swap_b32 v{m[2]}, v{m[3]}")
    for t in range(8):
        S = accQ(t)
        for r in (0, 2):
            e(f"v_pk_fma_f32 v[{S+r}:{S+r+1}], v[{S+r}:{S+r+1}], s[{sSC}:{sSC+1}], v[{MX[t]}:{MX[t]+1}] op_sel_hi:[1,1,0]")
    for t in range(8):
        S = accQ(t)
        for r in range(4):
            e(f"v_exp_f32 v{S+r}, v{S+r}")
    e(f"s_mov_b32 exec_lo, 0\ns_mov_b32 exec_hi, 0x00ff00ff")
    for t in range(8): cvt(PP[t] + 2, accQ(t))
    e(f"s_not_b64 exec, exec")
    for t in range(8): cvt(PP[t], accQ(t))
    e(f"s_mov_b64 exec, -1")
    for t in range(8):
        e(f"v_mfma_f32_16x16x32_bf16 {vr(accV(t),4)}, {vr(vONE,4)}, {vr(PP[t],4)}, 0")
        e(f"v_mfma_f32_16x16x32_bf16 {vr(accK(t),4)}, {vr(Vp(t),4)}, {vr(PP[t],4)}, 0")
    sOB = sT + 5
    e(f"""
    s_lshl_b32 s{sOB}, s{sRT}, 7
    s_lshl_b32 s{sT}, s{sG}, 2
    s_add_u32 s{sOB}, s{sOB}, s{sT}
    s_add_u32 s{sOB}, s{sOB}, s{sWAVE}
    s_lshl_b32 s{sOB}, s{sOB}, 10
    v_lshlrev_b32 v{vT}, 4, v{vL}
    """)
    for t in range(8): e(f"v_rcp_f32 v{accV(t)}, v{accV(t)}")
    OP = QP
    for q in range(4):
        for t in (2*q, 2*q+1):
            O = accK(t)
            for r in (0, 2):
                e(f"v_pk_mul_f32 v[{O+r}:{O+r+1}], v[{O+r}:{O+r+1}], v[{accV(t)}:{accV(t)+1}] op_sel_hi:[1,0]")
        for t in (2*q, 2*q+1):
            cvt(OP + 2*t, accK(t))
        if q > 0: e(f"s_add_u32 s{sOB}, s{sOB}, 32768")
        e(f"v_permlane16_swap_b32 v{OP+4*q}, v{OP+4*q+2}\nv_permlane16_swap_b32 v{OP+4*q+1}, v{OP+4*q+3}")
        e(f"buffer_store_dwordx4 {vr(OP+4*q,4)}, v{vT}, {srd(sWS)}, s{sOB} offen {cfg.st_flags}")
    stamp()
    vA0, vA1, vSW, vOA = vT+1, vT+2, vT+3, vT+7
    e(f"""
    v_and_b32 v1, 1, v{vL}
    v_bfe_u32 v2, v{vL}, 1, 1
    v_lshl_add_u32 v1, v1, 1, v2
    v_bfe_u32 v2, v{vL}, 4, 1
    v_lshl_add_u32 v1, v2, 2, v1
    v_lshlrev_b32 v1, 3, v1
    v_bfe_u32 v2, v{vL}, 3, 1
    v_lshl_add_u32 v1, v2, 6, v1
    v_bfe_u32 v2, v{vL}, 2, 2
    v_lshl_add_u32 v1, v2, 7, v1
    v_lshrrev_b32 v2, 5, v{vL}
    v_lshl_add_u32 v1, v2, 10, v1
    v_add_u32 v{vA0}, {WO_L}, v1
    v_xor_b32 v{vA1}, 64, v{vA0}
    v_and_b32 v1, 7, v{vL}
    v_xor_b32 v1, v1, v2
    v_lshlrev_b32 v1, 4, v1
    v_and_b32 v2, 31, v{vL}
    v_lshl_add_u32 v1, v2, 7, v1
    s_lshl_b32 s{sT}, s{sWAVE}, 12
    s_add_u32 s{sT}, s{sT}, {STAGE}
    v_add_u32 v{vSW}, s{sT}, v1
    v_xor_b32 v{vSW+1}, 32, v{vSW}
    v_xor_b32 v{vSW+2}, 64, v{vSW}
    v_xor_b32 v{vSW+3}, 96, v{vSW}
    v_add_u32 v{vOA+1}, s{sT}, v{vT}
    v_lshrrev_b32 v2, 3, v{vL}
    v_and_b32 v1, 7, v{vL}
    v_xor_b32 v1, v1, v2
    v_lshlrev_b32 v1, 4, v1
    v_lshl_add_u32 v{vOA}, v2, 12, v1
    s_lshl_b32 s{sT+6}, s{sSEG}, 19
    s_lshl_b32 s{sT}, s{sWAVE}, 17
    s_add_u32 s{sT+6}, s{sT+6}, s{sT}
    s_lshl_b32 s{sT}, s{sPAR}, 11
    s_add_u32 s{sT+6}, s{sT+6}, s{sT}
    s_lshl_b32 s{sT}, s{sBR}, 10
    s_add_u32 s{sT+6}, s{sT+6}, s{sT}
    s_lshl_b32 s{sT}, s{sG}, 7
    s_add_u32 s{sT+6}, s{sT+6}, s{sT}
    s_lshl_b32 s{sOB}, s{sRT}, 2
    s_add_u32 s{sOB}, s{sOB}, s{sWAVE}
    s_lshl_b32 s{sOB}, s{sOB}, 15
    s_waitcnt vmcnt(0)
    """)
    stamp()
    e("s_barrier")
    OF = 0
    ACC = 128
    WF = 160
    def wreads(hh):
        R = []
        for m in range(2):
            for j in range(2):
                d = WF + 8*(hh % 4) + 4*m + 2*j
                R.append(f"ds_read_b64_tr_b16 v[{d}:{d+1}], v{vA0+m} offset:{hh*2048 + j*512}")
        return R
    for hh in range(3):
        for r in wreads(hh): e(r)
    e("s_barrier")
    stamp()
    def oload(hh):
        if hh % 4 == 0 and hh > 0: e(f"s_add_u32 s{sOB}, s{sOB}, 4096")
        e(f"buffer_load_dwordx4 {vr(OF+4*hh,4)}, v{vT}, {srd(sWS)}, s{sOB} offen offset:{(hh%4)*1024} {cfg.ld_flags}")
    PRE = 12
    for hh in range(PRE): oload(hh)
    for hh in range(32):
        issued = min(32, hh + PRE)
        nl = 4 * min(2, 31 - hh)
        e(f"s_waitcnt vmcnt({issued-hh-1}) lgkmcnt({nl})")
        if hh == 0: stamp(); e(f"s_waitcnt lgkmcnt(0)") if cfg.stamps else None
        for m in range(2):
            cc = "0" if hh == 0 else vr(ACC+16*m, 16)
            e(f"v_mfma_f32_32x32x16_bf16 {vr(ACC+16*m,16)}, {vr(WF+8*(hh%4)+4*m,4)}, {vr(OF+4*hh,4)}, {cc}")
            if hh + 3 < 32:
                for r in wreads(hh + 3)[2*m:2*m+2]: e(r)
        if hh + PRE < 32: oload(hh + PRE)
    stamp()
    for m in range(2):
        for qq in range(2):
            a = ACC + 16*m + 8*qq; d = 8*m + 4*qq
            cvt(d, a); cvt(d + 2, a + 4)
            e(f"ds_write_b128 v{vSW + 2*m + qq}, {vr(d,4)}")
    e("s_waitcnt lgkmcnt(0)")
    for it in range(4):
        e(f"ds_read_b128 {vr(16+4*it,4)}, v{vOA+1} offset:{1024*it}")
    for it in range(4):
        e(f"s_waitcnt lgkmcnt({3-it})")
        if it > 0: e(f"s_add_u32 s{sT+6}, s{sT+6}, 32768")
        e(f"buffer_store_dwordx4 {vr(16+4*it,4)}, v{vOA}, {srd(sOUT)}, s{sT+6} offen {cfg.out_flags}")
    if cfg.stamps:
        stamp(); e("s_waitcnt vmcnt(0)"); stamp()
    dump_stamps(nst[0])
    e("L_end:\ns_endpgm")
    body, added = hz.fix("\n".join(L))
    hdr = open("cdna_kernels/" + NAME + ".s.ref").read().split("; Override")[0] if False else ""
    s = HDR.format(launch="; @launch grid=(256,1,1) block=(512,1,1) lds=163840") + kernel_head(K) + body + "\n"
    s += ".fill 64, 4, 0xbf800000\n"
    s += kernel_desc(K, 256, 256, 102)
    return s, added

if __name__ == "__main__":
    kw = {}
    for a in sys.argv[2:]:
        k, v = a.split("=")
        kw[k] = v if k.endswith("flags") or k.startswith("dma_") else int(v)
    s, added = gen(Cfg(**kw))
    open(sys.argv[1], "w").write(s)
    print("nops added", added)
```

```python
import sys, struct
from asmlib import *
import hz

def f2u(f): return struct.unpack("<I", struct.pack("<f", f))[0]

class Cfg:
    arr = 0
    rot = 0
    stamps = False
    st_flags = "sc1"
    ld_flags = "sc1"
    out_flags = ""
    dma_x = ""
    dma_w = ""
    diag = 0
    fl_flags = "sc1"
    early = 1
    gxor = 0
    def __init__(self, **kw):
        for k, v in kw.items():
            assert hasattr(self, k), k
            setattr(self, k, v)

HALO = 0; SLOT0 = 8192; SLOTSZ = 40960; WO_L = 98304; STAGE = 8192
WS_FLAG = 8 << 20; WS_STAMP = 16 << 20
sX, sW, sWO, sOUT, sWS, sDBG = 24, 28, 32, 36, 40, 44
sWAVE, sRT, sG, sBR, sPAR, sSEG, sROT = 48, 49, 50, 51, 52, 53, 54
sT = 55
sST = 64
sEP = 44
def srd(r): return f"s[{r}:{r+3}]"
def vr(a, n): return f"v[{a}:{a+n-1}]" if n > 1 else f"v{a}"

def gen(cfg):
    K = NAME + "_kernel"
    L = []
    def e(s):
        for ln in s.strip("\n").split("\n"):
            L.append(ln if ln.endswith(":") else "    " + ln.strip())
    nst = [0]
    def stamp(name=None):
        if cfg.stamps:
            i = nst[0]; nst[0] += 1
            e(f"s_memtime s[{sST+2*i}:{sST+2*i+1}]")
    def dump_stamps(n):
        if not cfg.stamps: return
        e("s_memrealtime s[96:97]\ns_waitcnt lgkmcnt(0)")
        e("v_mov_b32 v16, s98\nv_mov_b32 v17, s96")
        e(f"s_getreg_b32 s{sT}, hwreg(HW_REG_XCC_ID, 0, 4)\nv_mov_b32 v18, s{sT}")
        for i in range(1, 14):
            if i < n:
                e(f"s_sub_u32 s{sT}, s{sST+2*i}, s{sST}\nv_mov_b32 v{18+i}, s{sT}")
            else:
                e(f"v_mov_b32 v{18+i}, 0")
        e(f"""s_lshl_b32 s{sT}, s2, 3
        s_add_u32 s{sT}, s{sT}, s{sWAVE}
        s_lshl_b32 s{sT}, s{sT}, 6
        s_add_u32 s{sT}, s{sT}, {WS_STAMP}
        s_mov_b64 exec, 1
        v_mov_b32 v1, 0""")
        for i in range(4):
            e(f"buffer_store_dwordx4 v[{16+4*i}:{19+4*i}], v1, {srd(sWS)}, s{sT} offen offset:{16*i}")
        e("s_waitcnt vmcnt(0)")

    stamp()
    if cfg.stamps or cfg.diag: e("s_memrealtime s[98:99]")
    if cfg.diag: e("s_memtime s[94:95]")
    e(f"""
    s_cmp_ge_u32 s2, 256
    s_cbranch_scc1 L_end
    s_load_dwordx16 s[4:19], s[0:1], 0
    s_load_dwordx2 s[20:21], s[0:1], 64
    s_getpc_b64 s[22:23]
L_pc:
    v_lshlrev_b32 v1, 6, v0
    v_min_u32 v1, L_end-L_pc, v1
    global_load_dword v255, v1, s[22:23]
    v_lshrrev_b32 v3, 6, v0
    s_and_b32 s{sT}, s2, 7
    s_lshr_b32 s{sT+1}, s2, 3
    v_readfirstlane_b32 s{sWAVE}, v3
    v_and_b32 v0, 63, v0
    """)
    if cfg.arr == 0:
        e(f"""
        s_lshr_b32 s{sRT}, s{sT+1}, 3
        s_lshl_b32 s{sT}, s{sT}, 2
        s_add_u32 s{sRT}, s{sRT}, s{sT}
        s_and_b32 s{sG}, s{sT+1}, 7
        s_xor_b32 s{sG}, s{sG}, {cfg.gxor}
        """)
    else:
        e(f"""
        s_lshr_b32 s{sRT}, s{sT+1}, 2
        s_lshr_b32 s{sT+2}, s{sT}, 1
        s_lshl_b32 s{sT+2}, s{sT+2}, 3
        s_add_u32 s{sRT}, s{sRT}, s{sT+2}
        s_and_b32 s{sG}, s{sT+1}, 3
        s_and_b32 s{sT+2}, s{sT}, 1
        s_lshl_b32 s{sT+2}, s{sT+2}, 2
        s_add_u32 s{sG}, s{sG}, s{sT+2}
        """)
    e(f"""
    s_lshr_b32 s{sBR}, s{sRT}, 4
    s_bfe_u32 s{sPAR}, s{sRT}, 0x10003
    s_and_b32 s{sSEG}, s{sRT}, 7
    s_cmp_ge_u32 s{sWAVE}, 4
    s_cbranch_scc0 L_compute
    """)
    sLW, sXB, sWB, sKO, sWOFF, sHOFF = sT, sT+1, sT+2, sT+3, sT+4, sT+5
    vX, vW, vH = 8, 12, 14
    a, b = (sRT, sG) if cfg.arr == 0 else (sG, sRT)
    if cfg.rot == 1:
        e(f"s_lshl_b32 s{sROT}, s{a}, 1\ns_add_u32 s{sROT}, s{sROT}, s{b}\ns_and_b32 s{sROT}, s{sROT}, 7")
    elif cfg.rot == 2:
        e(f"s_add_u32 s{sROT}, s{a}, s{b}\ns_and_b32 s{sROT}, s{sROT}, 1\ns_lshl_b32 s{sROT}, s{sROT}, 2")
    elif cfg.rot == 4:
        e(f"s_add_u32 s{sROT}, s{a}, s{b}\ns_and_b32 s{sROT}, s{sROT}, 1\ns_lshl_b32 s{sROT}, s{sROT}, 2\ns_and_b32 s{sT+6}, s2, 3\ns_add_u32 s{sROT}, s{sROT}, s{sT+6}")
    elif cfg.rot == 5:
        e(f"s_and_b32 s{sROT}, s2, 3\ns_lshl_b32 s{sROT}, s{sROT}, 1")
    else:
        e(f"s_mov_b32 s{sROT}, 0")
    e(f"""
    s_sub_u32 s{sLW}, s{sWAVE}, 4
    v_lshrrev_b32 v3, 3, v0
    v_and_b32 v4, 7, v0
    v_lshrrev_b32 v5, 4, v0
    v_xor_b32 v6, v4, v5
    v_lshlrev_b32 v6, 4, v6
    v_lshl_add_u32 v6, v3, 11, v6
    s_lshl_b32 s{sT+6}, s{sSEG}, 18
    s_lshl_b32 s{sT+7}, s{sPAR}, 10
    s_add_u32 s{sT+6}, s{sT+6}, s{sT+7}
    s_sub_u32 s{sHOFF}, s{sT+6}, 16384
    s_cmp_eq_u32 s{sSEG}, 0
    s_cselect_b32 s{sHOFF}, 0x40000000, s{sHOFF}
    s_lshl_b32 s{sT+7}, s{sLW}, 16
    s_add_u32 s{sT+6}, s{sT+6}, s{sT+7}
    v_add_u32 v{vX}, s{sT+6}, v6
    v_xor_b32 v{vX+1}, 64, v{vX}
    v_add_u32 v{vX+1}, 15360, v{vX+1}
    v_add_u32 v{vX+2}, 30720, v{vX}
    v_add_u32 v{vX+3}, 30720, v{vX+1}
    v_lshlrev_b32 v7, 1, v5
    v_xor_b32 v6, v4, v7
    v_lshlrev_b32 v6, 4, v6
    v_lshl_add_u32 v6, v3, 11, v6
    v_add_u32 v{vH}, s{sHOFF}, v6
    v_and_b32 v7, 2, v7
    v_xor_b32 v7, v7, v4
    v_lshlrev_b32 v7, 4, v7
    v_mul_u32_u24 v6, 3072, v3
    v_add_u32 v7, v7, v6
    s_mul_i32 s{sT+6}, s{sLW}, 49152
    s_lshl_b32 s{sT+7}, s{sG}, 7
    s_add_u32 s{sT+6}, s{sT+6}, s{sT+7}
    v_add_u32 v{vW}, s{sT+6}, v7
    v_xor_b32 v{vW+1}, 64, v{vW}
    v_add_u32 v{vW+1}, 24576, v{vW+1}
    s_lshl_b32 s{sXB}, s{sLW}, 12
    s_mul_i32 s{sWB}, s{sLW}, 6144
    s_lshl_b32 s{sT+6}, s{sLW}, 1
    s_add_u32 s{sT+6}, s{sT+6}, s{sROT}
    s_and_b32 s{sT+7}, s{sT+6}, 7
    s_lshl_b32 s{sT+7}, s{sT+7}, 7
    s_add_u32 s{sT+6}, s{sT+6}, 1
    s_and_b32 s{sT+6}, s{sT+6}, 7
    s_lshl_b32 s{sT+6}, s{sT+6}, 7
    s_lshl_b32 m0, s{sLW}, 11
    s_waitcnt lgkmcnt(0)
    s_cmp_eq_u32 s{sBR}, 0
    s_cselect_b32 s{sX}, s4, s10
    s_cselect_b32 s{sX+1}, s5, s11
    s_mov_b32 s{sX+2}, 0x200000
    s_mov_b32 s{sX+3}, 0x20000
    s_cselect_b32 s{sW}, s6, s12
    s_cselect_b32 s{sW+1}, s7, s13
    s_mov_b32 s{sW+2}, 0x180000
    s_mov_b32 s{sW+3}, 0x20000
    s_cselect_b32 s{sWO}, s8, s14
    s_cselect_b32 s{sWO+1}, s9, s15
    buffer_load_dwordx4 v{vH}, {srd(sX)}, s{sT+7} offen {cfg.dma_x} lds
    s_add_u32 m0, m0, 1024
    s_mov_b32 s{sWO+2}, 0x80000
    buffer_load_dwordx4 v{vH}, {srd(sX)}, s{sT+6} offen {cfg.dma_x} lds
    """)
    def issue(c):
        slot = SLOT0 + (c % 3) * SLOTSZ
        e(f"""
        s_add_u32 s{sT+6}, s{sROT}, {c}
        s_and_b32 s{sT+6}, s{sT+6}, 7
        s_add_u32 m0, s{sWB}, {slot + 16384}
        s_mul_i32 s{sWOFF}, s{sT+6}, 196608
        s_lshl_b32 s{sKO}, s{sT+6}, 7
        """)
        for p in range(3):
            e(f"buffer_load_dwordx4 v{vW}, {srd(sW)}, s{sWOFF} offen offset:{1024*p} {cfg.dma_w} lds")
        e(f"s_add_u32 m0, s{sWB}, {slot + 16384 + 3072}")
        for p in range(3):
            e(f"buffer_load_dwordx4 v{vW+1}, {srd(sW)}, s{sWOFF} offen offset:{1024*p} {cfg.dma_w} lds")
        e(f"s_add_u32 m0, s{sXB}, {slot}")
        for j in range(4):
            e(f"buffer_load_dwordx4 v{vX+j}, {srd(sX)}, s{sKO} offen offset:{1024*j} {cfg.dma_x} lds")
    issue(0)
    e(f"""
    s_mov_b32 s{sWO+3}, 0x20000
    s_mov_b32 s{sWS}, s20
    s_mov_b32 s{sWS+1}, s21
    s_mov_b32 s{sWS+2}, 0x10000000
    s_mov_b32 s{sWS+3}, 0x20000
    s_mov_b32 s{sDBG}, s18
    s_mov_b32 s{sDBG+1}, s19
    s_mov_b32 s{sDBG+2}, 256
    s_mov_b32 s{sDBG+3}, 0x20000
    """)
    if cfg.early:
        issue(1)
        stamp()
        e("s_waitcnt vmcnt(10)\ns_barrier")
        stamp()
        issue(2)
        e("s_waitcnt vmcnt(10)\ns_barrier")
    else:
        issue(1); issue(2)
        stamp()
        e("s_waitcnt vmcnt(20)\ns_barrier")
        stamp()
        e("s_waitcnt vmcnt(10)\ns_barrier")
    for c in range(2, 8):
        if c + 1 <= 7:
            issue(c + 1)
            e("s_waitcnt vmcnt(10)\ns_barrier")
        else:
            e("s_waitcnt vmcnt(0)\ns_barrier")
        stamp()
    e(f"""
    v_lshrrev_b32 v3, 3, v0
    v_and_b32 v4, 7, v0
    v_lshrrev_b32 v5, 2, v0
    v_and_b32 v5, 4, v5
    v_xor_b32 v4, v4, v5
    v_lshlrev_b32 v4, 4, v4
    v_lshl_add_u32 v4, v3, 10, v4
    s_lshl_b32 s{sT+6}, s{sLW}, 17
    s_lshl_b32 s{sT+7}, s{sG}, 7
    s_add_u32 s{sT+6}, s{sT+6}, s{sT+7}
    v_add_u32 v{vX}, s{sT+6}, v4
    v_add_u32 v{vX+1}, 7168, v{vX}
    v_add_u32 v{vX+2}, 14336, v{vX}
    v_add_u32 v{vX+3}, 21504, v{vX}
    s_lshl_b32 s{sXB}, s{sLW}, 14
    """)
    for gq in range(4):
        e(f"s_add_u32 m0, s{sXB}, {WO_L + 4096*gq}\ns_mov_b32 s{sKO}, {32768*gq}")
        for j in range(4):
            e(f"buffer_load_dwordx4 v{vX+j}, {srd(sWO)}, s{sKO} offen offset:{1024*j} lds")
    e("s_waitcnt vmcnt(0)\ns_barrier")
    stamp()
    dump_stamps(nst[0])
    e("s_endpgm")
    nst[0] = 1
    e("L_compute:")
    AQ = 0; AK = 32; AV = 68
    BUF = [104, 152]
    vXA = 200
    vWA = 206; vHA = 209
    vB = 212; vB0 = 216; vONE = 220
    vL = 224
    vT = 225
    def accQ(t): return AQ + 4*t
    def accK(t): return AK + 4*(t+1)
    def accV(t): return AV + 4*(t+1)
    sC = sT
    sSC = 56
    e(f"""
    v_mov_b32 v{vL}, v0
    v_and_b32 v1, 15, v0
    v_lshrrev_b32 v2, 4, v0
    v_bfe_u32 v3, v0, 1, 3
    v_xor_b32 v3, v3, v2
    v_lshlrev_b32 v3, 4, v3
    v_lshl_add_u32 v3, v1, 7, v3
    v_add_u32 v{vXA}, {SLOT0}, v3
    v_xor_b32 v{vXA+1}, 64, v{vXA}
    v_add_u32 v{vXA+2}, {SLOTSZ}, v{vXA}
    v_add_u32 v{vXA+3}, {SLOTSZ}, v{vXA+1}
    v_add_u32 v{vXA+4}, {2*SLOTSZ}, v{vXA}
    v_add_u32 v{vXA+5}, {2*SLOTSZ}, v{vXA+1}
    v_and_b32 v3, 6, v0
    v_xor_b32 v3, v3, v2
    v_lshlrev_b32 v3, 4, v3
    v_and_b32 v4, 7, v0
    v_lshl_add_u32 v{vHA}, v4, 7, v3
    v_xor_b32 v{vHA+1}, 64, v{vHA}
    v_bfe_u32 v3, v0, 3, 2
    v_xor_b32 v3, s{sWAVE}, v3
    v_lshlrev_b32 v3, 5, v3
    v_and_b32 v4, 3, v0
    v_lshl_add_u32 v3, v4, 3, v3
    v_bfe_u32 v4, v0, 2, 2
    v_lshl_add_u32 v3, v4, 7, v3
    v_mul_u32_u24 v4, 3072, v2
    v_add_u32 v3, v3, v4
    v_add_u32 v{vWA}, {SLOT0+16384}, v3
    v_add_u32 v{vWA+1}, {SLOT0+16384+SLOTSZ}, v3
    v_add_u32 v{vWA+2}, {SLOT0+16384+2*SLOTSZ}, v3
    v_lshlrev_b32 v3, 2, v2
    v_sub_u32 v3, v1, v3
    v_mov_b32 v5, 0xff800000
    s_cmp_eq_u32 s{sSEG}, 0
    s_cselect_b32 s{sT+4}, {f2u(-4e9)}, 0
    v_mov_b32 v6, s{sT+4}
    """)
    for r in range(4):
        e(f"""
        v_subrev_u32 v4, {r}, v3
        v_cmp_gt_i32 s[{sT+5}:{sT+6}], 0, v4
        v_and_b32 v4, 8, v4
        v_cmp_eq_u32 vcc, 0, v4
        v_cndmask_b32 v{vB0+r}, 0, v6, s[{sT+5}:{sT+6}]
        v_cndmask_b32 v{vB+r}, v5, 0, vcc
        v_cndmask_b32 v{vB0+r}, v5, v{vB0+r}, vcc
        v_mov_b32 v{vONE+r}, 0x3f803f80
        """)
    e(f"""
    s_mov_b32 s{sSC}, {f2u(0.25*1.4426950408889634)}
    s_mov_b32 s{sSC+1}, s{sSC}
    s_waitcnt lgkmcnt(0)
    s_mov_b32 s{sWS}, s20
    s_mov_b32 s{sWS+1}, s21
    s_mov_b32 s{sWS+2}, 0x10000000
    s_mov_b32 s{sWS+3}, 0x20000
    s_mov_b32 s{sOUT}, s16
    s_mov_b32 s{sOUT+1}, s17
    s_mov_b32 s{sOUT+2}, 0x400000
    s_mov_b32 s{sOUT+3}, 0x20000
    s_lshl_b32 s{sT+5}, s{sRT}, 11
    s_add_u32 s{sT+5}, s{sT+5}, {WS_FLAG + 1024}
    s_load_dword s{sEP}, s[20:21], s{sT+5}
    s_waitcnt lgkmcnt(0)
    s_add_u32 s{sEP}, s{sEP}, 0x9e3779b9
    """)
    def reads(step):
        c, s = step >> 1, step & 1
        B = BUF[step & 1]; sl = c % 3
        R = []
        for p in (1, 2, 0):
            for j in range(2):
                R.append(f"ds_read_b64_tr_b16 v[{B+36+4*p+2*j}:{B+37+4*p+2*j}], v{vWA+sl} offset:{s*12288 + p*1024 + j*512}")
        R.append(f"ds_read_b128 v[{B}:{B+3}], v{vHA+s} offset:{c*1024}")
        for t in range(8):
            R.append(f"ds_read_b128 v[{B+4+4*t}:{B+7+4*t}], v{vXA+2*sl+s} offset:{t*2048}")
        return R
    def mfmas(step):
        B = BUF[step & 1]
        Wq, Wk, Wv = vr(B+36, 4), vr(B+40, 4), vr(B+44, 4)
        M = []
        for t in range(-1, 8):
            x = vr(B + 4*(t+1), 4)
            def c(a): return "0" if step == 0 else vr(a, 4)
            M.append(f"v_mfma_f32_16x16x32_bf16 {vr(accK(t),4)}, {Wk}, {x}, {c(accK(t))}")
            M.append(f"v_mfma_f32_16x16x32_bf16 {vr(accV(t),4)}, {x}, {Wv}, {c(accV(t))}")
            if t >= 0:
                M.append(f"v_mfma_f32_16x16x32_bf16 {vr(accQ(t),4)}, {Wq}, {x}, {c(accQ(t))}")
        return M
    stamp()
    e("s_barrier")
    stamp()
    for r in reads(0): e(r)
    QP = BUF[0]
    PP = [BUF[0] + 32 + 4*t if t < 4 else 232 + 4*(t-4) for t in range(8)]
    KP = BUF[1]
    VP = BUF[1] + 34
    for step in range(16):
        e("s_waitcnt lgkmcnt(0)")
        if step & 1 and step < 15:
            e("s_barrier")
            if step in (1, 7, 13): stamp()
        M = mfmas(step)
        if step < 15:
            F = reads(step + 1)
        else:
            F = [f"v_mov_b64 v[{a}:{a+1}], 0" for a in list(range(QP, QP+48, 2)) + list(range(232, 248, 2))]
        n = 0
        for i, m in enumerate(M):
            e(m)
            k = 1 if step < 15 else 2
            for _ in range(k):
                if n < len(F): e(F[n]); n += 1
        assert n == len(F)
    stamp()
    VP = 200
    VP = BUF[1] + 34
    def Vp(t): return VP + 2*(7 - t)
    def Kp(t): return KP + 4*t if t >= 0 else KP + 32
    cvt = lambda d, a: e(f"v_cvt_pk_bf16_f32 v{d}, v{a}, v{a+1}\nv_cvt_pk_bf16_f32 v{d+1}, v{a+2}, v{a+3}")
    sMH = 58
    e(f"s_mov_b32 s{sMH}, 0xff00ff00\ns_mov_b32 s{sMH+1}, 0xff00ff00")
    for t in range(-1, 8): cvt(Kp(t), accK(t))
    e(f"s_mov_b64 exec, s[{sMH}:{sMH+1}]")
    for t in range(8): cvt(QP + 4*t, accQ(t))
    e(f"s_not_b64 exec, exec")
    for t in range(8): cvt(QP + 4*t + 2, accQ(t))
    e(f"s_mov_b64 exec, -1")
    for t in range(8):
        for r in range(2):
            e(f"v_cndmask_b32 v{Kp(t)+2+r}, v{Kp(t)+r}, v{Kp(t-1)+r}, s[{sMH}:{sMH+1}]")
    for t in range(8):
        e(f"v_mfma_f32_16x16x32_bf16 {vr(accQ(t),4)}, {vr(Kp(t),4)}, {vr(QP+4*t,4)}, {vr(vB0 if t == 0 else vB,4)}")
        cvt(Vp(t), accV(t))
    cvt(Vp(-1), accV(-1))
    MX = [accK(t) for t in range(8)]
    for t in range(8):
        S = accQ(t)
        e(f"v_max3_f32 v{MX[t]}, v{S}, v{S+1}, v{S+2}")
    for t in range(8):
        S = accQ(t)
        e(f"v_max_f32 v{MX[t]}, v{MX[t]}, v{S+3}")
    for h in range(2):
        m = MX[4*h:4*h+4]
        e(f"v_permlane32_swap_b32 v{m[0]}, v{m[1]}\nv_permlane32_swap_b32 v{m[2]}, v{m[3]}")
    for h in range(2):
        m = MX[4*h:4*h+4]
        e(f"v_max_f32 v{m[0]}, v{m[0]}, v{m[1]}\nv_max_f32 v{m[2]}, v{m[2]}, v{m[3]}")
    for h in range(2):
        m = MX[4*h:4*h+4]
        e(f"v_permlane16_swap_b32 v{m[0]}, v{m[2]}")
    for h in range(2):
        m = MX[4*h:4*h+4]
        e(f"v_max_f32 v{m[0]}, v{m[0]}, v{m[2]}")
    for h in range(2):
        m = MX[4*h:4*h+4]
        e(f"v_mul_f32 v{m[2]}, s{sSC}, -v{m[0]}\nv_mul_f32 v{m[0]}, s{sSC}, -v{m[0]}")
    for h in range(2):
        m = MX[4*h:4*h+4]
        e(f"v_permlane16_swap_b32 v{m[0]}, v{m[2]}")
    for h in range(2):
        m = MX[4*h:4*h+4]
        e(f"v_mov_b32 v{m[1]}, v{m[0]}\nv_mov_b32 v{m[3]}, v{m[2]}")
    for h in range(2):
        m = MX[4*h:4*h+4]
        e(f"v_permlane32_swap_b32 v{m[0]}, v{m[1]}\nv_permlane32_swap_b32 v{m[2]}, v{m[3]}")
    for t in range(8):
        S = accQ(t)
        for r in (0, 2):
            e(f"v_pk_fma_f32 v[{S+r}:{S+r+1}], v[{S+r}:{S+r+1}], s[{sSC}:{sSC+1}], v[{MX[t]}:{MX[t]+1}] op_sel_hi:[1,1,0]")
    for t in range(8):
        S = accQ(t)
        for r in range(4):
            e(f"v_exp_f32 v{S+r}, v{S+r}")
    e(f"s_mov_b32 exec_lo, 0\ns_mov_b32 exec_hi, 0x00ff00ff")
    for t in range(8): cvt(PP[t] + 2, accQ(t))
    e(f"s_not_b64 exec, exec")
    for t in range(8): cvt(PP[t], accQ(t))
    e(f"s_mov_b64 exec, -1")
    for t in range(8):
        e(f"v_mfma_f32_16x16x32_bf16 {vr(accV(t),4)}, {vr(vONE,4)}, {vr(PP[t],4)}, 0")
        e(f"v_mfma_f32_16x16x32_bf16 {vr(accK(t),4)}, {vr(Vp(t),4)}, {vr(PP[t],4)}, 0")
    sOB = sT + 5
    e(f"""
    s_lshl_b32 s{sOB}, s{sRT}, 7
    s_lshl_b32 s{sT}, s{sG}, 2
    s_add_u32 s{sOB}, s{sOB}, s{sT}
    s_add_u32 s{sOB}, s{sOB}, s{sWAVE}
    s_lshl_b32 s{sOB}, s{sOB}, 10
    v_lshlrev_b32 v{vT}, 4, v{vL}
    """)
    for t in range(8): e(f"v_rcp_f32 v{accV(t)}, v{accV(t)}")
    OP = QP
    for q in range(4):
        for t in (2*q, 2*q+1):
            O = accK(t)
            for r in (0, 2):
                e(f"v_pk_mul_f32 v[{O+r}:{O+r+1}], v[{O+r}:{O+r+1}], v[{accV(t)}:{accV(t)+1}] op_sel_hi:[1,0]")
        for t in (2*q, 2*q+1):
            cvt(OP + 2*t, accK(t))
        if q > 0: e(f"s_add_u32 s{sOB}, s{sOB}, 32768")
        e(f"v_permlane16_swap_b32 v{OP+4*q}, v{OP+4*q+2}\nv_permlane16_swap_b32 v{OP+4*q+1}, v{OP+4*q+3}")
        e(f"buffer_store_dwordx4 {vr(OP+4*q,4)}, v{vT}, {srd(sWS)}, s{sOB} offen {cfg.st_flags}")
    stamp()
    vA0, vA1, vSW, vOA = vT+1, vT+2, vT+3, vT+7
    e(f"""
    v_and_b32 v1, 1, v{vL}
    v_bfe_u32 v2, v{vL}, 1, 1
    v_lshl_add_u32 v1, v1, 1, v2
    v_bfe_u32 v2, v{vL}, 4, 1
    v_lshl_add_u32 v1, v2, 2, v1
    v_lshlrev_b32 v1, 3, v1
    v_bfe_u32 v2, v{vL}, 3, 1
    v_lshl_add_u32 v1, v2, 6, v1
    v_bfe_u32 v2, v{vL}, 2, 2
    v_lshl_add_u32 v1, v2, 7, v1
    v_lshrrev_b32 v2, 5, v{vL}
    v_lshl_add_u32 v1, v2, 10, v1
    v_add_u32 v{vA0}, {WO_L}, v1
    v_xor_b32 v{vA1}, 64, v{vA0}
    v_and_b32 v1, 7, v{vL}
    v_xor_b32 v1, v1, v2
    v_lshlrev_b32 v1, 4, v1
    v_and_b32 v2, 31, v{vL}
    v_lshl_add_u32 v1, v2, 7, v1
    s_lshl_b32 s{sT}, s{sWAVE}, 12
    s_add_u32 s{sT}, s{sT}, {STAGE}
    v_add_u32 v{vSW}, s{sT}, v1
    v_xor_b32 v{vSW+1}, 32, v{vSW}
    v_xor_b32 v{vSW+2}, 64, v{vSW}
    v_xor_b32 v{vSW+3}, 96, v{vSW}
    v_add_u32 v{vOA+1}, s{sT}, v{vT}
    v_lshrrev_b32 v2, 3, v{vL}
    v_and_b32 v1, 7, v{vL}
    v_xor_b32 v1, v1, v2
    v_lshlrev_b32 v1, 4, v1
    v_lshl_add_u32 v{vOA}, v2, 12, v1
    s_lshl_b32 s{sT+6}, s{sSEG}, 19
    s_lshl_b32 s{sT}, s{sWAVE}, 17
    s_add_u32 s{sT+6}, s{sT+6}, s{sT}
    s_lshl_b32 s{sT}, s{sPAR}, 11
    s_add_u32 s{sT+6}, s{sT+6}, s{sT}
    s_lshl_b32 s{sT}, s{sBR}, 10
    s_add_u32 s{sT+6}, s{sT+6}, s{sT}
    s_lshl_b32 s{sT}, s{sG}, 7
    s_add_u32 s{sT+6}, s{sT+6}, s{sT}
    s_lshl_b32 s{sOB}, s{sRT}, 2
    s_add_u32 s{sOB}, s{sOB}, s{sWAVE}
    s_lshl_b32 s{sOB}, s{sOB}, 15
    s_lshl_b32 s45, s{sRT}, 11
    s_add_u32 s45, s45, {WS_FLAG}
    s_lshl_b32 s46, s{sG}, 7
    s_lshl_b32 s47, s{sWAVE}, 2
    s_add_u32 s46, s46, s47
    s_add_u32 s46, s46, s45
    v_mov_b32 v3, s{sEP}
    v_lshrrev_b32 v4, 2, v{vL}
    v_and_b32 v5, 3, v{vL}
    v_lshlrev_b32 v5, 2, v5
    v_lshl_add_u32 v4, v4, 7, v5
    s_mov_b64 exec, 1
    s_waitcnt vmcnt(0)
    buffer_store_dword v3, off, {srd(sWS)}, s46 {cfg.fl_flags}
    s_mov_b64 exec, -1
    """)
    stamp()
    e("s_barrier")
    OF = 0
    ACC = 128
    WF = 160
    def wreads(hh):
        R = []
        for m in range(2):
            for j in range(2):
                d = WF + 8*(hh % 4) + 4*m + 2*j
                R.append(f"ds_read_b64_tr_b16 v[{d}:{d+1}], v{vA0+m} offset:{hh*2048 + j*512}")
        return R
    for hh in range(3):
        for r in wreads(hh): e(r)
    e(f"""
    s_mov_b32 exec_hi, 0
    s_mov_b32 s47, 0x400000
L_poll:
    buffer_load_dword v5, v4, {srd(sWS)}, s45 offen sc1
    s_sub_u32 s47, s47, 1
    s_cmp_eq_u32 s47, 0
    s_cbranch_scc1 L_pollx
    s_waitcnt vmcnt(0)
    v_cmp_ne_u32 vcc, v3, v5
    s_cbranch_vccnz L_poll
L_pollx:
    s_or_b32 s47, s{sG}, s{sWAVE}
    s_cbranch_scc1 L_noep
    s_mov_b64 exec, 1
    buffer_store_dword v3, off, {srd(sWS)}, s45 offset:1024
L_noep:
    s_mov_b64 exec, -1
    """)
    stamp()
    def oload(hh):
        if hh % 4 == 0 and hh > 0: e(f"s_add_u32 s{sOB}, s{sOB}, 4096")
        e(f"buffer_load_dwordx4 {vr(OF+4*hh,4)}, v{vT}, {srd(sWS)}, s{sOB} offen offset:{(hh%4)*1024} {cfg.ld_flags}")
    PRE = 12
    for hh in range(PRE): oload(hh)
    for hh in range(32):
        issued = min(32, hh + PRE)
        nl = 4 * min(2, 31 - hh)
        e(f"s_waitcnt vmcnt({issued-hh-1}) lgkmcnt({nl})")
        if hh == 0: stamp(); e(f"s_waitcnt lgkmcnt(0)") if cfg.stamps else None
        for m in range(2):
            cc = "0" if hh == 0 else vr(ACC+16*m, 16)
            e(f"v_mfma_f32_32x32x16_bf16 {vr(ACC+16*m,16)}, {vr(WF+8*(hh%4)+4*m,4)}, {vr(OF+4*hh,4)}, {cc}")
            if hh + 3 < 32:
                for r in wreads(hh + 3)[2*m:2*m+2]: e(r)
        if hh + PRE < 32: oload(hh + PRE)
    stamp()
    for m in range(2):
        for qq in range(2):
            a = ACC + 16*m + 8*qq; d = 8*m + 4*qq
            cvt(d, a); cvt(d + 2, a + 4)
            e(f"ds_write_b128 v{vSW + 2*m + qq}, {vr(d,4)}")
    e("s_waitcnt lgkmcnt(0)")
    for it in range(4):
        e(f"ds_read_b128 {vr(16+4*it,4)}, v{vOA+1} offset:{1024*it}")
    for it in range(4):
        e(f"s_waitcnt lgkmcnt({3-it})")
        if it > 0: e(f"s_add_u32 s{sT+6}, s{sT+6}, 32768")
        e(f"buffer_store_dwordx4 {vr(16+4*it,4)}, v{vOA}, {srd(sOUT)}, s{sT+6} offen {cfg.out_flags}")
    if cfg.stamps:
        stamp(); e("s_waitcnt vmcnt(0)"); stamp()
    dump_stamps(nst[0])
    if cfg.diag == 1:
        e('''s_waitcnt vmcnt(0)
L_spin:
        s_memrealtime s[96:97]
        s_waitcnt lgkmcnt(0)
        s_sub_u32 s96, s96, s98
        s_cmp_lt_u32 s96, 4000
        s_cbranch_scc1 L_spin''')
    if cfg.diag == 2:
        e('''s_waitcnt vmcnt(0)
L_spin:
        s_memtime s[96:97]
        s_waitcnt lgkmcnt(0)
        s_sub_u32 s96, s96, s94
        s_cmp_lt_u32 s96, 96000
        s_cbranch_scc1 L_spin''')
    if cfg.diag == 3:
        e('''s_waitcnt vmcnt(0)
        s_memrealtime s[92:93]
        s_waitcnt lgkmcnt(0)
        s_sub_u32 s92, s92, s98
        s_lshl_b32 s92, s92, 2
L_spin:
        s_memrealtime s[96:97]
        s_waitcnt lgkmcnt(0)
        s_sub_u32 s96, s96, s98
        s_cmp_lt_u32 s96, s92
        s_cbranch_scc1 L_spin''')
    e("L_end:\ns_endpgm")
    body, added = hz.fix("\n".join(L))
    hdr = open("cdna_kernels/" + NAME + ".s.ref").read().split("; Override")[0] if False else ""
    s = HDR.format(launch="; @launch grid=(256,1,1) block=(512,1,1) lds=163840") + kernel_head(K) + body + "\n"
    s += ".fill 64, 4, 0xbf800000\n"
    s += kernel_desc(K, 256, 256, 102)
    return s, added

if __name__ == "__main__":
    kw = {}
    for a in sys.argv[2:]:
        k, v = a.split("=")
        kw[k] = v if k.endswith("flags") or k.startswith("dma_") else int(v)
    s, added = gen(Cfg(**kw))
    open(sys.argv[1], "w").write(s)
    print("nops added", added)
```

```python
import hz
class Item:
    def __init__(self, text, prio, after=None, tag=None, waitvm=None, urgent=False):
        self.text = text; self.prio = prio; self.after = after or []
        self.tag = tag; self.waitvm = waitvm; self.urgent = urgent
        self.ins = [I for I in (hz.parse(l) for l in text.split("\n")) if I is not None]
        self.dst = set(); self.src = set()
        for I in self.ins:
            self.dst |= set(I.dst); self.src |= set(I.src)
            if I.op.startswith("s_cmp") or (I.cls == "salu" and I.op.split("_")[1] in ("add", "sub", "and", "or", "xor", "lshl", "lshr", "not", "bfe")):
                self.dst.add(("s", "scc"))
            if I.op.startswith("s_cbranch_vcc"): self.src.add(("s", "vcc"))
            if I.op.startswith("s_cselect") or I.op.startswith("s_cbranch_scc"): self.src.add(("s", "scc"))
        f = self.ins[0]
        self.vm = sum(1 for I in self.ins if I.cls == "vmem")
        self.mfma = f.cls == "mfma"; self.dsr = f.cls == "ds" and bool(f.dst)
        self.cost = sum(8 if (I.cls == "mfma" or getattr(I, "trans", False)) else 4 for I in self.ins)
        self.pipe = (f.passes * 4) if self.mfma else 0
def schedule(items, mfma_first=True, ds_lat=128, verbose=False, t0=0):
    n = len(items)
    preds = [set() for _ in items]; lat = {}
    idx = {id(it): i for i, it in enumerate(items)}
    lastw = {}; readers = {}
    for i, it in enumerate(items):
        for r in it.src:
            if r in lastw:
                p = lastw[r]; preds[i].add(p)
                if items[p].dsr: lat[(p, i)] = max(lat.get((p, i), 0), ds_lat)
        for r in it.dst:
            if r in lastw: preds[i].add(lastw[r])
            for p in readers.get(r, []):
                if p != i:
                    preds[i].add(p)
                    if items[p].mfma and it.dsr: lat[(p, i)] = max(lat.get((p, i), 0), 16)
        for r in it.src: readers.setdefault(r, []).append(i)
        for r in it.dst: lastw[r] = i; readers[r] = [] if r not in it.src else [i]
        for (a, clk) in it.after:
            p = idx[id(a)]; preds[i].add(p); lat[(p, i)] = max(lat.get((p, i), 0), clk)
    done = {}; order = []; hist = []; t = t0; pipe = t0
    remaining = set(range(n)); stall = 0
    succ = [[] for _ in items]
    for i in range(n):
        for p in preds[i]: succ[p].append(i)
    cnt = [len(preds[i]) for i in range(n)]
    ready = {i for i in range(n) if cnt[i] == 0}
    while ready:
        best = None
        for i in ready:
            it = items[i]
            est = t
            for p in preds[i]:
                if (p, i) in lat: est = max(est, done[p] + lat[(p, i)])
            dist = 0; req = 0
            for (P, sl) in reversed(hist):
                r = hz.need(P, it.ins[0]) - dist
                if r > req: req = r
                dist += sl
                if dist >= 14: break
            est = max(est, t + 4 * req)
            if it.mfma: est = max(est, pipe)
            wait = est - t
            key = (wait > 0, wait if wait > 0 else 0, -1 if it.urgent else (0 if it.mfma else 1) if mfma_first else 0, it.prio, i)
            if best is None or key < best[0]: best = (key, i, est, req)
        _, i, est, req = best
        it = items[i]
        stall += est - t
        if req:
            N = hz.Ins(); N.cls = "nop"; N.dst = []; N.src = []; N.storedata = []; N.srcC = []; hist.append((N, req))
        done[i] = est; t = est + it.cost
        if it.mfma: pipe = est + it.pipe
        for I in it.ins: hist.append((I, I.n if I.cls == "nop" else 1))
        hist = hist[-24:]
        order.append(i); ready.remove(i)
        for s in succ[i]:
            cnt[s] -= 1
            if cnt[s] == 0: ready.add(s)
    assert len(order) == n
    out = []; pend = []; nvm = 0; vmat = {}
    for i in order:
        it = items[i]
        touch = it.src | it.dst
        k = -1
        for j, d in enumerate(pend):
            if d & touch: k = j
        if k >= 0:
            left = len(pend) - 1 - k
            out.append(f"s_waitcnt lgkmcnt({min(left, 15)})")
            pend = pend[k+1:] if left <= 15 else pend[len(pend)-15:]
        if it.ins[0].cls == "ds" and len(pend) >= 14:
            out.append("s_waitcnt lgkmcnt(9)"); pend = pend[len(pend)-9:]
        if it.waitvm is not None:
            out.append(f"s_waitcnt vmcnt({nvm - vmat[id(it.waitvm)]})")
        out.append(it.text)
        nvm += it.vm; vmat[id(it)] = nvm
        if it.ins[0].cls == "ds": pend.append(set(it.dst))
    if verbose:
        print("sched: end", t, "stall", stall, {it.tag: done[idx[id(it)]] for it in items if it.tag})
    return out, t
```

```python
import sys, struct
from asmlib import *
import hz
from sched import Item, schedule

def f2u(f): return struct.unpack("<I", struct.pack("<f", f))[0]

class Cfg:
    stamps = 0
    fast_flags = "nt"
    ffl_flags = ""
    ld_flags = "sc1"
    pt_flags = "sc1 nt"
    out_flags = "nt"
    dma_x = "nt"
    dma_w = ""
    order = 3
    hzero = 1
    tabA = 0x67452310
    tabB = 0x75634021
    R0 = 13
    VS = 13
    warm = 1
    LF = 600
    prio = 3
    lprio = 0
    nofast = 0
    kp = 0
    xwA = 8
    xwB = 8
    xoA = 8
    xoB = 8
    nw = 0
    ac = 5
    b8 = -1
    wsh = 0
    ht = 0
    pf0 = 2
    pf_flags = 'nt'
    pfi = -1
    hbad = 0
    nw1 = 0
    b9 = -1
    g3 = 1
    ap = 8
    lk = 10
    g2 = 1
    lp2 = 0
    nw0 = 0
    xa = -1
    xas = 0
    xap = 1
    xa_flags = ''
    sm = 0
    su = -1
    late = 1
    mf = 1
    dslat = 128
    verbose = 0
    def __init__(self, **kw):
        for k, v in kw.items():
            assert hasattr(self, k), k
            setattr(self, k, v)

HALO = 0; SLOT0 = 8192; SLOTSZ = 40960; WO_L = 98304; STAGE = 8192
WS_FLAG = 8 << 20; WS_E = WS_FLAG + 65536; WS_A = WS_FLAG + 131072; WS_STAMP = 16 << 20
K1 = 0x9e3779b9; K2 = 0x51ed270b
sX, sW, sWO, sOUT, sWS = 24, 28, 32, 36, 40
sEP = 44
sWAVE, sRT, sG, sBR, sPAR, sSEG, sCLS = 48, 49, 50, 51, 52, 53, 54
sT = 55
sST = 64
NST = 12
def srd(r): return f"s[{r}:{r+3}]"
def vr(a, n): return f"v[{a}:{a+n-1}]" if n > 1 else f"v{a}"

def gen(cfg):
    K = NAME + "_kernel"
    L = []
    def e(s):
        for ln in s.strip("\n").split("\n"):
            if ln.strip(): L.append(ln.strip() if ln.strip().endswith(":") else "    " + ln.strip())
    nst = [0]
    def stamp_text():
        i = nst[0]; nst[0] += 1
        assert i < NST
        return f"{'s_memrealtime' if cfg.stamps == 2 else 's_memtime'} s[{sST+2*i}:{sST+2*i+1}]"
    def stamp():
        if cfg.stamps: e(stamp_text())
    def dump_stamps(n, ld=False):
        if not cfg.stamps: return
        e("s_memrealtime s[96:97]\ns_waitcnt lgkmcnt(0)")
        e("v_mov_b32 v16, s98\nv_mov_b32 v17, s96")
        e(f"s_getreg_b32 s{sT}, hwreg(HW_REG_XCC_ID, 0, 4)\nv_mov_b32 v18, s{sT}")
        for i in range(1, 14):
            if i < n:
                e(f"s_sub_u32 s{sT}, s{sST+2*i}, s{sST}\nv_mov_b32 v{18+i}, s{sT}")
            elif i == 13 and ld:
                e(f"s_sub_u32 s{sT}, 0x10000000, s47\nv_mov_b32 v{18+i}, s{sT}")
            else:
                e(f"v_mov_b32 v{18+i}, 0")
        e(f"""s_lshl_b32 s{sT}, s2, 3
        s_add_u32 s{sT}, s{sT}, s{sWAVE}
        s_lshl_b32 s{sT}, s{sT}, 6
        s_add_u32 s{sT}, s{sT}, {WS_STAMP}
        s_mov_b64 exec, 1
        v_mov_b32 v1, 0""")
        for i in range(4):
            e(f"buffer_store_dwordx4 v[{16+4*i}:{19+4*i}], v1, {srd(sWS)}, s{sT} offen offset:{16*i}")
        e("s_waitcnt vmcnt(0)")

    stamp()
    if cfg.stamps: e("s_memrealtime s[98:99]")
    e(f"""
    s_cmp_ge_u32 s2, 256
    s_cbranch_scc1 L_end
    s_load_dwordx16 s[4:19], s[0:1], 0
    s_load_dwordx2 s[20:21], s[0:1], 64
    s_getpc_b64 s[22:23]
L_pc:
    s_bfe_u32 s{sT+2}, s2, 0x20003
    s_mul_i32 s{sT+2}, s{sT+2}, L_w1-L_w0
    v_lshlrev_b32 v1, 6, v0
    v_min_u32 v1, L_w1-L_pc, v1
    v_mov_b32 v2, s{sT+2}
    v_cmp_lt_u32 vcc, L_w0-L_pc, v1
    v_lshrrev_b32 v3, 6, v0
    s_and_b32 s{sT}, s2, 7
    v_cndmask_b32 v2, 0, v2, vcc
    v_add_u32 v1, v1, v2
    global_load_dword v255, v1, s[22:23]
    s_lshr_b32 s{sT+1}, s2, 3
    v_readfirstlane_b32 s{sWAVE}, v3
    v_and_b32 v0, 63, v0
    s_lshr_b32 s{sRT}, s{sT+1}, 3
    s_lshl_b32 s{sT}, s{sT}, 2
    s_add_u32 s{sRT}, s{sRT}, s{sT}
    s_and_b32 s{sG}, s{sT+1}, 7
    s_lshr_b32 s{sBR}, s{sRT}, 4
    s_bfe_u32 s{sPAR}, s{sRT}, 0x10003
    s_and_b32 s{sSEG}, s{sRT}, 7
    s_cmp_ge_u32 s{sWAVE}, 4
    s_cbranch_scc0 L_compute
    """)
    sLW, sXB, sWB, sKO, sWOFF, sHOFF = sT, sT+1, sT+2, sT+3, sT+4, sT+5
    vX, vW, vH = 8, 12, 14
    sMX, sMW, sA, sB, sHM = 88, 92, 94, 95, 100
    if cfg.lprio: e(f"s_setprio {cfg.lprio}")
    e(f"""
    s_add_u32 s{sCLS}, s{sRT}, s{sG}
    s_and_b32 s{sCLS}, s{sCLS}, 1
    s_lshr_b32 s{sA}, s{sG}, 1
    s_bfe_u32 s{sB}, s{sRT}, 0x10001
    s_cmp_eq_u32 s{sCLS}, 0
    s_mov_b32 s{sCLS}, {cfg.tabA}
    s_cselect_b32 s{sCLS}, s{sCLS}, {cfg.tabB}
    s_sub_u32 s{sLW}, s{sWAVE}, 4
    v_lshrrev_b32 v3, 3, v0
    v_and_b32 v4, 7, v0
    v_lshrrev_b32 v5, 4, v0
    v_xor_b32 v6, v4, v5
    v_lshlrev_b32 v6, 4, v6
    v_lshl_add_u32 v6, v3, 11, v6
    s_lshl_b32 s{sT+6}, s{sSEG}, 18
    s_lshl_b32 s{sT+7}, s{sPAR}, 10
    s_add_u32 s{sT+6}, s{sT+6}, s{sT+7}
    s_sub_u32 s{sHOFF}, s{sT+6}, 16384
    s_cmp_eq_u32 s{sSEG}, 0
    s_cselect_b32 s{sHOFF}, 0x40000000, s{sHOFF}
    s_lshl_b32 s{sT+7}, s{sLW}, 16
    s_add_u32 s{sT+6}, s{sT+6}, s{sT+7}
    s_lshl_b32 s{sXB}, s{sLW}, 12
    """)
    for j in range(4):
        e(f"""
        s_add_u32 s{sKO}, s{sA}, {j}
        s_and_b32 s{sKO}, s{sKO}, 3
        s_lshl_b32 s{sMX+j}, s{sKO}, 10
        s_add_u32 s{sMX+j}, s{sMX+j}, s{sXB}
        s_and_b32 s{sT+7}, s{sKO}, 1
        s_lshl_b32 s{sT+7}, s{sT+7}, 6
        s_lshl_b32 s{sKO}, s{sKO}, 14
        s_add_u32 s{sKO}, s{sKO}, s{sT+6}
        v_xor_b32 v{vX+j}, s{sT+7}, v6
        v_add_u32 v{vX+j}, s{sKO}, v{vX+j}
        """)
    e(f"""
    v_lshlrev_b32 v7, 1, v5
    v_xor_b32 v6, v4, v7
    v_lshlrev_b32 v6, 4, v6
    v_lshl_add_u32 v6, v3, 11, v6
    v_add_u32 v{vH}, s{sHOFF}, v6
    v_and_b32 v7, 2, v7
    v_xor_b32 v7, v7, v4
    v_lshlrev_b32 v7, 4, v7
    v_mul_u32_u24 v6, 3072, v3
    v_add_u32 v7, v7, v6
    s_mul_i32 s{sT+6}, s{sLW}, 49152
    s_lshl_b32 s{sT+7}, s{sG}, 7
    s_add_u32 s{sT+6}, s{sT+6}, s{sT+7}
    s_mul_i32 s{sWB}, s{sLW}, 6144
    """)
    for m in range(2):
        e(f"""
        s_xor_b32 s{sKO}, s{sB}, {m}
        s_mul_i32 s{sMW+m}, s{sKO}, 3072
        s_add_u32 s{sMW+m}, s{sMW+m}, s{sWB}
        s_lshl_b32 s{sT+7}, s{sKO}, 6
        s_mul_i32 s{sKO}, s{sKO}, 24576
        s_add_u32 s{sKO}, s{sKO}, s{sT+6}
        v_xor_b32 v{vW+m}, s{sT+7}, v7
        v_add_u32 v{vW+m}, s{sKO}, v{vW+m}
        """)
    e(f"""
    s_lshl_b32 s{sT+6}, s{sLW}, 4
    s_lshl_b64 s[{sHM}:{sHM+1}], 0xffff, s{sT+6}
    s_waitcnt lgkmcnt(0)
    """)
    stamp()
    e(f"""
    s_cmp_eq_u32 s{sBR}, 0
    s_cselect_b32 s{sX}, s4, s10
    s_cselect_b32 s{sX+1}, s5, s11
    s_mov_b32 s{sX+2}, 0x200000
    s_mov_b32 s{sX+3}, 0x20000
    s_cselect_b32 s{sW}, s6, s12
    s_cselect_b32 s{sW+1}, s7, s13
    s_mov_b32 s{sW+2}, 0x180000
    s_mov_b32 s{sW+3}, 0x20000
    s_cselect_b32 s{sWO}, s8, s14
    s_cselect_b32 s{sWO+1}, s9, s15
    s_mov_b32 s{sWO+2}, 0x80000
    """)
    def issue(c):
        slot = SLOT0 + (c % 3) * SLOTSZ
        e(f"""
        s_bfe_u32 s{sT+6}, s{sCLS}, {0x30000 + 4*c}
        s_add_u32 m0, s{sMW}, {slot + 16384}
        s_mul_i32 s{sWOFF}, s{sT+6}, 196608
        s_lshl_b32 s{sKO}, s{sT+6}, 7
        """)
        def wl(m):
            for p in range(3):
                e(f"buffer_load_dwordx4 v{vW+m}, {srd(sW)}, s{sWOFF} offen offset:{1024*p} {cfg.dma_w} lds")
        def xl(j):
            e(f"s_add_u32 m0, s{sMX+j}, {slot}")
            e(f"buffer_load_dwordx4 v{vX+j}, {srd(sX)}, s{sKO} offen {cfg.dma_x} lds")
        wl(0); xl(0)
        e(f"s_mov_b32 m0, {HALO + c*1024}\ns_mov_b64 exec, s[{sHM}:{sHM+1}]")
        e(f"buffer_load_dwordx4 v{vH}, {srd(sX)}, s{sKO} offen {cfg.dma_x} lds")
        e(f"s_add_u32 m0, s{sMW+1}, {slot + 16384}\ns_mov_b64 exec, -1")
        wl(1); xl(1); xl(2); xl(3)
    OF = 0; ACC = 128; WF = 160
    vA = 224
    vO0, vO1, vPO, vP = 232, 233, 234, 235
    vSW, vSR, vOA = 236, 240, 241
    vD = 242
    vWO = 246
    sSO = 12
    sFL, sOO, sSP = 45, 46, 47
    sAV = 18
    issue(0)
    e(f"""
    s_mov_b32 s{sWO+3}, 0x20000
    s_mov_b32 s{sWS}, s20
    s_mov_b32 s{sWS+1}, s21
    s_mov_b32 s{sWS+2}, 0x10000000
    s_mov_b32 s{sWS+3}, 0x20000
    s_mov_b32 s{sOUT}, s16
    s_mov_b32 s{sOUT+1}, s17
    s_mov_b32 s{sOUT+2}, 0x400000
    s_mov_b32 s{sOUT+3}, 0x20000
    """)
    vXw, vXo = 250, 252
    sXw, sXo = 16, 17
    e(f"""
    v_lshlrev_b32 v{vXw}, 6, v0
    v_and_b32 v1, 15, v0
    v_lshlrev_b32 v1, 6, v1
    v_lshrrev_b32 v2, 4, v0
    v_lshl_add_u32 v{vXo}, v2, 15, v1
    s_cmp_eq_u32 s{sCLS}, {cfg.tabA}
    s_cselect_b32 s{sT+6}, 0, 0x40000000
    s_cselect_b32 s{sT+7}, 0x40000000, 0
    v_add_u32 v{vXw+1}, s{sT+7}, v{vXw}
    v_add_u32 v{vXo+1}, s{sT+7}, v{vXo}
    v_add_u32 v{vXw}, s{sT+6}, v{vXw}
    v_add_u32 v{vXo}, s{sT+6}, v{vXo}
    s_and_b32 s{sXw}, s{sRT}, 3
    s_lshl_b32 s{sXw}, s{sXw}, 3
    s_add_u32 s{sXw}, s{sXw}, s{sG}
    s_lshl_b32 s{sXw}, s{sXw}, 2
    s_add_u32 s{sXw}, s{sXw}, s{sLW}
    s_lshl_b32 s{sXw}, s{sXw}, 12
    s_lshl_b32 s{sXo}, s{sRT}, 5
    s_add_u32 s{sXo}, s{sXo}, s{sG}
    s_lshl_b32 s{sXo}, s{sXo}, 2
    s_add_u32 s{sXo}, s{sXo}, s{sLW}
    s_lshl_b32 s{sXo}, s{sXo}, 10
    """)
    if cfg.xwA == cfg.xwB: e(f"v_min_u32 v{vXw}, v{vXw}, v{vXw+1}")
    if cfg.xoA == cfg.xoB: e(f"v_min_u32 v{vXo}, v{vXo}, v{vXo+1}")
    def acheck():
        e(f"""
        s_mov_b32 s19, s{sAV}
        s_waitcnt lgkmcnt(0)
        s_xor_b64 s[4:5], s[4:5], s[18:19]
        s_xor_b64 s[6:7], s[6:7], s[18:19]
        s_xor_b64 s[8:9], s[8:9], s[18:19]
        s_xor_b64 s[10:11], s[10:11], s[18:19]
        s_or_b64 s[4:5], s[4:5], s[6:7]
        s_or_b64 s[8:9], s[8:9], s[10:11]
        s_or_b64 s[4:5], s[4:5], s[8:9]
        s_cselect_b32 s4, 0, {0 if cfg.nofast else 1}
        v_mov_b32 v1, 0
        v_mov_b32 v2, s4
        ds_write_b32 v1, v2
        """)
        if cfg.b8 < 0:
            e(f"s_lshl_b32 s4, s{sLW}, 2\nv_mov_b32 v3, s4\nds_write_b32 v3, v1 offset:16")
    def xat(pos):
        n = 0
        for (pa, pb, v, sr, so, fl) in ((cfg.xwA, cfg.xwB, vXw, sWO, sXw, ""), (cfg.xoA, cfg.xoB, vXo, sWS, sXo, cfg.pt_flags)):
            if pa == pos:
                e(f"buffer_load_dword v{v}, v{v}, {srd(sr)}, s{so} offen {fl}"); n += 1
            elif pb == pos:
                e(f"buffer_load_dword v{v+1}, v{v+1}, {srd(sr)}, s{so} offen {fl}"); n += 1
        return n
    for c in range(8):
        nX = 0
        if c + 1 <= 7 and not (c == 0 and cfg.su < 0):
            nX = xat(c + 1); issue(c + 1)
            if c == 6: nX7 = xat(10); nX += nX7
        if c == 0:
            e(f"""
            s_lshl_b32 s19, s{sRT}, 7
            s_add_u32 s{sT+6}, s19, {WS_E}
            s_load_dword s{sEP}, s[20:21], s{sT+6}
            """)
        if c == max(cfg.su, 0):
            e(f"""
            v_and_b32 v1, 1, v0
            v_bfe_u32 v2, v0, 1, 1
            v_lshl_add_u32 v1, v1, 1, v2
            v_bfe_u32 v2, v0, 4, 1
            v_lshl_add_u32 v1, v2, 2, v1
            v_lshlrev_b32 v1, 3, v1
            v_bfe_u32 v2, v0, 3, 1
            v_lshl_add_u32 v1, v2, 6, v1
            v_bfe_u32 v2, v0, 2, 2
            v_lshl_add_u32 v1, v2, 7, v1
            v_lshrrev_b32 v2, 5, v0
            v_lshl_add_u32 v1, v2, 10, v1
            s_lshl_b32 s{sOO}, s{sRT}, 2
            s_add_u32 s{sOO}, s{sOO}, s{sLW}
            s_lshl_b32 s{sFL}, s{sOO}, 7
            s_add_u32 s{sFL}, s{sFL}, {WS_FLAG}
            s_lshl_b32 s{sOO}, s{sOO}, 15
            """)
            for r in range(4):
                e(f"""
                s_sub_u32 s{sT+6}, s{sLW}, {r}
                s_and_b32 s{sT+6}, s{sT+6}, 3
                s_lshl_b32 s{sT+7}, s{sT+6}, 12
                s_add_u32 s{sSO+r}, s{sT+7}, s{sOO}
                s_lshl_b32 s{sT+6}, s{sT+6}, 13
                s_add_u32 s{sT+6}, s{sT+6}, {WO_L}
                v_add_u32 v{vA+2*r}, s{sT+6}, v1
                v_xor_b32 v{vA+2*r+1}, 64, v{vA+2*r}
                """)
        if c == max(cfg.su, 0) * 2:
            e(f"""
            v_lshlrev_b32 v{vO0}, 4, v0
            v_add_u32 v{vO1}, 16384, v{vO0}
            v_and_b32 v1, 7, v0
            v_lshlrev_b32 v{vPO}, 2, v1
            v_lshrrev_b32 v2, 5, v0
            v_xor_b32 v1, v1, v2
            v_lshlrev_b32 v1, 4, v1
            v_and_b32 v2, 31, v0
            v_lshl_add_u32 v1, v2, 7, v1
            s_lshl_b32 s{sT+6}, s{sLW}, 12
            s_add_u32 s{sT+6}, s{sT+6}, {STAGE}
            v_add_u32 v{vSW}, s{sT+6}, v1
            v_xor_b32 v{vSW+1}, 32, v{vSW}
            v_xor_b32 v{vSW+2}, 64, v{vSW}
            v_xor_b32 v{vSW+3}, 96, v{vSW}
            v_add_u32 v{vSR}, s{sT+6}, v{vO0}
            v_lshrrev_b32 v2, 3, v0
            v_and_b32 v1, 7, v0
            v_xor_b32 v1, v1, v2
            v_lshlrev_b32 v1, 4, v1
            v_lshl_add_u32 v{vOA}, v2, 12, v1
            s_lshl_b32 s{sOO}, s{sSEG}, 19
            s_lshl_b32 s{sT+6}, s{sLW}, 17
            s_add_u32 s{sOO}, s{sOO}, s{sT+6}
            s_lshl_b32 s{sT+6}, s{sPAR}, 11
            s_add_u32 s{sOO}, s{sOO}, s{sT+6}
            s_lshl_b32 s{sT+6}, s{sBR}, 10
            s_add_u32 s{sOO}, s{sOO}, s{sT+6}
            s_lshl_b32 s{sT+6}, s{sG}, 7
            s_add_u32 s{sOO}, s{sOO}, s{sT+6}
            """)
        if c == max(cfg.su, 0) * 3:
            e(f"""
            v_lshrrev_b32 v3, 3, v0
            v_and_b32 v4, 7, v0
            v_lshrrev_b32 v5, 2, v0
            v_and_b32 v5, 4, v5
            v_xor_b32 v4, v4, v5
            v_lshlrev_b32 v4, 4, v4
            v_lshl_add_u32 v4, v3, 10, v4
            s_lshl_b32 s{sT+6}, s{sLW}, 17
            s_lshl_b32 s{sT+7}, s{sG}, 7
            s_add_u32 s{sT+6}, s{sT+6}, s{sT+7}
            v_add_u32 v{vWO}, s{sT+6}, v4
            v_add_u32 v{vWO+1}, 7168, v{vWO}
            v_add_u32 v{vWO+2}, 14336, v{vWO}
            v_add_u32 v{vWO+3}, 21504, v{vWO}
            """)
        if c == 0 and cfg.su < 0: issue(1)
        if c == 3:
            e(f"""
            s_getreg_b32 s{sAV}, hwreg(HW_REG_XCC_ID, 0, 4)
            s_waitcnt lgkmcnt(0)
            s_add_u32 s{sAV}, s{sAV}, s{sEP}
            s_add_u32 s{sAV}, s{sAV}, {K2}
            s_add_u32 s{sEP}, s{sEP}, {K1}
            """)
        if c == cfg.ac:
            e(f"""
            s_add_u32 s{sT+6}, s19, {WS_A}
            s_load_dwordx8 s[4:11], s[20:21], s{sT+6} glc
            """)
        if c == 6:
            if not cfg.late: acheck()
            e(f"""
            s_lshl_b32 s{sXB}, s{sLW}, 14
            s_waitcnt vmcnt({11 + nX}) {'' if cfg.late else 'lgkmcnt(0)'}
            """)
            nX7 += xat(11)
            e("s_barrier")
            stamp()
        elif c == 7:
            nX = xat(8) + nX7
            def wo(i):
                gq, j = i >> 2, i & 3
                if j == 0 and not cfg.wsh: e(f"s_add_u32 m0, s{sXB}, {WO_L + 4096*gq}\ns_mov_b32 s{sKO}, {32768*gq}")
                if j == 0 and cfg.wsh:
                    e(f"""
                    s_add_u32 s{sKO}, s{sRT}, {gq}
                    s_and_b32 s{sKO}, s{sKO}, 3
                    s_lshl_b32 s{sWOFF}, s{sKO}, 12
                    s_add_u32 s{sWOFF}, s{sWOFF}, s{sXB}
                    s_add_u32 m0, s{sWOFF}, {WO_L}
                    s_lshl_b32 s{sKO}, s{sKO}, 15
                    """)
                e(f"buffer_load_dwordx4 v{vWO+j}, {srd(sWO)}, s{sKO} offen offset:{1024*j} lds")
            for i in range(cfg.nw0): wo(i)
            e(f"s_waitcnt vmcnt({nX + cfg.nw0})")
            if cfg.sm == 1: stamp()
            for i in range(cfg.nw0, cfg.nw): wo(i)
            if cfg.late:
                acheck(); e("s_waitcnt lgkmcnt(0)")
            if cfg.sm == 1: stamp()
            e("s_barrier")
            stamp()
            for i in range(cfg.nw, cfg.nw1): wo(i)
            if cfg.b9 >= 0: e("s_barrier")
            for i in range(max(cfg.nw, cfg.nw1), 16): wo(i)
            nX = xat(9)
            e(f"buffer_load_dword v{vP}, v{vPO}, {srd(sWS)}, s{sFL} offen sc1")
            e(f"s_mov_b32 s{sSP}, {0x10000000 if cfg.stamps else 0x200000}\ns_waitcnt vmcnt({nX+1})")
        else:
            e(f"s_waitcnt vmcnt({11+nX})\ns_barrier")
            if c == 0: stamp()
    stamp()
    if cfg.lp2: e(f"s_setprio {cfg.lp2}")
    if cfg.b8 < 0: e("v_mov_b32 v2, 1\nds_write_b32 v3, v2 offset:16")
    def lsync():
        if cfg.b8 >= 0: e("s_barrier"); return
        e(f"""
L_ls:
        ds_read_b128 v[{WF}:{WF+3}], v{vD} offset:16
        s_sub_u32 s{sSP}, s{sSP}, 1
        s_cmp_lt_i32 s{sSP}, 0
        s_cbranch_scc1 L_lsx
        s_waitcnt lgkmcnt(0)
        v_and_b32 v{WF}, v{WF}, v{WF+1}
        v_and_b32 v{WF+2}, v{WF+2}, v{WF+3}
        v_and_b32 v{WF}, v{WF}, v{WF+2}
        v_cmp_eq_u32 vcc, 0, v{WF}
        s_cbranch_vccnz L_ls
L_lsx:
        """)
    e(f"v_mov_b32 v{vD}, 0")
    def wrd(H):
        r, i = H >> 3, H & 7
        R = []
        for m in range(2):
            for j in range(2):
                d = WF + 8*i + 4*m + 2*j
                R.append(f"ds_read_b64_tr_b16 v[{d}:{d+1}], v{vA+2*r+m} offset:{(i>>2)*32768 + (i&3)*2048 + j*512}")
        return R
    def oload(H):
        r, i = H >> 3, H & 7
        return f"buffer_load_dwordx4 {vr(OF+4*H,4)}, v{vO0 + (i>>2)}, {srd(sWS)}, s{sSO+r} offen offset:{(i&3)*1024} {cfg.ld_flags}"
    def poll(r): return f"buffer_load_dword v{vP}, v{vPO}, {srd(sWS)}, s{sFL} offen offset:{32*r} sc1"
    vq = []
    dq = []
    def ivm(tag, text): e(text); vq.append(tag)
    def ids(tag, text):
        if len(dq) >= 14:
            e(f"s_waitcnt lgkmcnt({cfg.lk})"); del dq[:len(dq) - cfg.lk]
        e(text); dq.append(tag)
    def wait(vt=None, dt=None):
        parts = []
        if vt is not None and vt in vq:
            k = len(vq) - 1 - max(i for i, t in enumerate(vq) if t == vt)
            parts.append(f"vmcnt({k})"); del vq[:len(vq) - k]
        if dt is not None and dt in dq:
            k = len(dq) - 1 - max(i for i, t in enumerate(dq) if t == dt)
            k2 = min(k, 15)
            parts.append(f"lgkmcnt({k2})"); del dq[:len(dq) - k2]
        if parts: e("s_waitcnt " + " ".join(parts))
    def check(r):
        wait(vt=("P", r))
        e(f"""
L_chk{r}:
        v_cmp_ne_u32 vcc, s{sEP}, v{vP}
        s_cbranch_vccnz L_spin{r}
L_ok{r}:
        """)
    def stage_loads(r):
        T = [(("L", 8*r + i), oload(8*r + i)) for i in range(8)]
        if r < 3: T.insert(cfg.kp, (("P", r + 1), poll(r + 1)))
        return T
    if cfg.g2 == 0:
        lsync()
        ivm(("P", 0), poll(0))
        for H in range(7):
            for x in wrd(H): ids(H, x)
        check(0)
        stamp()
        for t, x in stage_loads(0): ivm(t, x)
    else:
        vq.append(("P", 0))
        e("L_again:")
        check(0)
        stamp()
        for t, x in stage_loads(0): ivm(t, x)
        lsync()
        for H in range(7):
            for x in wrd(H): ids(H, x)
    alts = []
    def heads(r, pending, per):
        for i in range(8):
            H = 8*r + i
            wait(vt=("L", H), dt=H)
            for m in range(2):
                cc = "0" if H == 0 else vr(ACC+16*m, 16)
                e(f"v_mfma_f32_32x32x16_bf16 {vr(ACC+16*m,16)}, {vr(WF+8*i+4*m,4)}, {vr(OF+4*H,4)}, {cc}")
                if cfg.ht and m == 0 and i & 1:
                    c3 = "0" if H == 1 else f"v{vD+1}"
                    e(f"v_max3_u32 v{vD+1}, v{OF+4*H-4}, v{OF+4*H}, {c3}")
                if cfg.ht and m == 1 and H == 31:
                    e(f"v_cmp_eq_u32 vcc, -1, v{vD+1}\ns_cbranch_vccnz L_redo\nL_redox:")
                for _ in range(per[2*i + m]):
                    if pending:
                        t, x = pending.pop(0); ivm(t, x)
                if H + 7 < 32:
                    for x in wrd(H + 7)[2*m:2*m+2]: ids(H + 7, x)
        assert not pending
    if cfg.g3:
        assert cfg.kp == 0
        for r in range(4):
            if r < 3:
                wait(vt=("P", r + 1))
                e(f"v_cmp_ne_u32 vcc, s{sEP}, v{vP}\ns_cbranch_vccnz L_alt{r}")
                v0, d0 = list(vq), list(dq)
                pend = stage_loads(r + 1)
                t, x = pend.pop(0); ivm(t, x)
                heads(r, pend, [[1, 0]*8, [1, 1, 1, 0]*4, [1]*16][cfg.g3 - 1])
                e(f"L_join{r}:")
                stamp()
                v1, d1 = list(vq), list(dq)
                mark = len(L)
                vq[:] = v0; dq[:] = d0
                e(f"L_alt{r}:")
                if cfg.stamps: e(f"s_sub_u32 s{sSP}, s{sSP}, {0x100 << (4*r)}")
                heads(r, [(("P", r + 1), poll(r + 1))], [0]*cfg.ap + [1]*16)
                check(r + 1)
                for t, x in stage_loads(r + 1): ivm(t, x)
                e(f"s_branch L_join{r}")
                assert dq == d1 and vq[-len(v1):] == v1, (vq, v1)
                alts.append(L[mark:]); del L[mark:]
                vq[:] = v1
            else:
                heads(r, [], [0]*16)
    else:
        pending = []
        for H in range(32):
            r, i = H >> 3, H & 7
            if i == cfg.kp and r < 3:
                check(r + 1)
                if cfg.sm == 0 or r == 2: stamp()
                pending = stage_loads(r + 1)
                for _ in range(3):
                    t, x = pending.pop(0); ivm(t, x)
            wait(vt=("L", H), dt=H)
            for m in range(2):
                cc = "0" if H == 0 else vr(ACC+16*m, 16)
                e(f"v_mfma_f32_32x32x16_bf16 {vr(ACC+16*m,16)}, {vr(WF+8*i+4*m,4)}, {vr(OF+4*H,4)}, {cc}")
                if H + 7 < 32:
                    for x in wrd(H + 7)[2*m:2*m+2]: ids(H + 7, x)
                for _ in range(2):
                    if pending:
                        t, x = pending.pop(0); ivm(t, x)
    stamp()
    cvt = lambda d, a: e(f"v_cvt_pk_bf16_f32 v{d}, v{a}, v{a+1}\nv_cvt_pk_bf16_f32 v{d+1}, v{a+2}, v{a+3}")
    for m in range(2):
        for qq in range(2):
            a = ACC + 16*m + 8*qq; d = 8*m + 4*qq
            cvt(d, a); cvt(d + 2, a + 4)
            e(f"ds_write_b128 v{vSW + 2*m + qq}, {vr(d,4)}")
    e("s_waitcnt lgkmcnt(0)")
    for it in range(4):
        e(f"ds_read_b128 {vr(16+4*it,4)}, v{vSR} offset:{1024*it}")
    for it in range(4):
        e(f"s_waitcnt lgkmcnt({3-it})")
        if it > 0: e(f"s_add_u32 s{sOO}, s{sOO}, 32768")
        e(f"buffer_store_dwordx4 {vr(16+4*it,4)}, v{vOA}, {srd(sOUT)}, s{sOO} offen {cfg.out_flags}")
    e(f"""
    s_or_b32 s{sT+6}, s{sG}, s{sLW}
    s_cbranch_scc0 L_epoch
L_epochx:
    """)
    if cfg.stamps:
        e("s_waitcnt vmcnt(0)"); stamp()
    dump_stamps(nst[0], True)
    e("L_end:\ns_endpgm")
    for r in range(4):
        e(f"""
L_spin{r}:
        s_sub_u32 s{sSP}, s{sSP}, 1
        s_cmp_lt_i32 s{sSP}, 0
        s_cbranch_scc1 L_ok{r}
        {poll(r)}
        s_waitcnt vmcnt(0)
        s_branch L_chk{r}
        """)
    for al in alts: L.extend(al)
    if cfg.ht:
        e(f"""
L_redo:
        s_sub_u32 s{sSP}, s{sSP}, {0x80000 if cfg.stamps else 64}
        s_cmp_lt_i32 s{sSP}, 0
        s_cbranch_scc1 L_redox
        {poll(0)}
        s_branch L_again
        """)
    e(f"""
L_epoch:
    s_lshl_b32 s{sT+6}, s{sRT}, 7
    s_add_u32 s{sT+6}, s{sT+6}, {WS_E}
    v_mov_b32 v{vD}, s{sEP}
    s_mov_b64 exec, 1
    buffer_store_dword v{vD}, off, {srd(sWS)}, s{sT+6}
    s_mov_b64 exec, -1
    s_branch L_epochx
    """)
    nst[0] = 1
    e("L_compute:")
    AQ = 0; AK = 32; AV = 68
    BUF = [104, 152]
    W15 = 200
    vB = 212; vB0 = 216; vONE = 220
    vXA = 224; vWA = 230; vHA = 233
    vSO, vFO, vFV = 235, 236, 237
    VP = 238
    def accQ(t): return AQ + 4*t
    def accK(t): return AK + 4*(t+1)
    def accV(t): return AV + 4*(t+1)
    sSC = 56; sMH = 58; sPM = 60; sDO = 12; sFO = 45; sS = 46
    e(f"""
    v_and_b32 v1, 15, v0
    v_lshrrev_b32 v2, 4, v0
    v_bfe_u32 v3, v0, 1, 3
    v_xor_b32 v3, v3, v2
    v_lshlrev_b32 v3, 4, v3
    v_lshl_add_u32 v3, v1, 7, v3
    v_add_u32 v{vXA}, {SLOT0}, v3
    v_xor_b32 v{vXA+1}, 64, v{vXA}
    v_add_u32 v{vXA+2}, {SLOTSZ}, v{vXA}
    v_add_u32 v{vXA+3}, {SLOTSZ}, v{vXA+1}
    v_add_u32 v{vXA+4}, {2*SLOTSZ}, v{vXA}
    v_add_u32 v{vXA+5}, {2*SLOTSZ}, v{vXA+1}
    v_and_b32 v3, 6, v0
    v_xor_b32 v3, v3, v2
    v_lshlrev_b32 v3, 4, v3
    v_and_b32 v4, 7, v0
    v_lshl_add_u32 v{vHA}, v4, 7, v3
    {"v_and_b32 v4, 8, v0" if cfg.hzero else ""}
    {"v_xor_b32 v4, 8, v4" if cfg.hzero else ""}
    {f"v_lshl_add_u32 v{vHA}, v4, 15, v{vHA}" if cfg.hzero else ""}
    v_xor_b32 v{vHA+1}, 64, v{vHA}
    v_bfe_u32 v3, v0, 3, 2
    v_xor_b32 v3, s{sWAVE}, v3
    v_lshlrev_b32 v3, 5, v3
    v_and_b32 v4, 3, v0
    v_lshl_add_u32 v3, v4, 3, v3
    v_bfe_u32 v4, v0, 2, 2
    v_lshl_add_u32 v3, v4, 7, v3
    v_mul_u32_u24 v4, 3072, v2
    v_add_u32 v3, v3, v4
    v_add_u32 v{vWA}, {SLOT0+16384}, v3
    v_add_u32 v{vWA+1}, {SLOT0+16384+SLOTSZ}, v3
    v_add_u32 v{vWA+2}, {SLOT0+16384+2*SLOTSZ}, v3
    v_lshlrev_b32 v3, 2, v2
    v_sub_u32 v3, v1, v3
    v_mov_b32 v5, 0xff800000
    s_cmp_eq_u32 s{sSEG}, 0
    s_cselect_b32 s{sT}, {f2u(-4e9)}, 0
    v_mov_b32 v6, s{sT}
    """)
    for r in range(4):
        e(f"""
        v_subrev_u32 v4, {r}, v3
        v_cmp_gt_i32 s[62:63], 0, v4
        v_and_b32 v4, 8, v4
        v_cmp_eq_u32 vcc, 0, v4
        v_cndmask_b32 v{vB0+r}, 0, v6, s[62:63]
        v_cndmask_b32 v{vB+r}, v5, 0, vcc
        v_cndmask_b32 v{vB0+r}, v5, v{vB0+r}, vcc
        v_mov_b32 v{vONE+r}, 0x3f803f80
        """)
    e(f"""
    v_lshlrev_b32 v{vSO}, 4, v0
    v_mov_b32 v{VP+2}, 0
    v_mov_b32 v{VP+4}, -1
    v_mov_b32 v{VP+5}, -1
    v_mov_b32 v{VP+6}, -1
    v_mov_b32 v{VP+7}, -1
    v_lshlrev_b32 v1, 6, v1
    v_lshl_add_u32 v{VP+3}, v2, 15, v1
    v_min_u32 v{vFO}, 1, v0
    v_lshlrev_b32 v{vFO}, 30, v{vFO}
    s_mov_b32 s{sSC}, {f2u(0.25*1.4426950408889634)}
    s_mov_b32 s{sMH}, 0xff00ff00
    s_mov_b32 s{sMH+1}, 0xff00ff00
    s_mov_b32 s{sPM}, 0
    s_mov_b32 s{sPM+1}, 0x00ff00ff
    s_and_b32 s{sS}, s{sG}, 3
    s_lshl_b32 s{sT}, s{sRT}, 7
    s_add_u32 s47, s{sT}, {WS_E}
    s_waitcnt lgkmcnt(0)
    s_load_dword s{sEP}, s[20:21], s47
    s_mov_b32 s{sWS}, s20
    s_mov_b32 s{sWS+1}, s21
    s_mov_b32 s{sWS+2}, 0x10000000
    s_mov_b32 s{sWS+3}, 0x20000
    s_lshl_b32 s47, s{sG}, 2
    s_add_u32 s62, s47, s{sT}
    s_add_u32 s62, s62, {WS_A}
    s_add_u32 s47, s47, s{sWAVE}
    s_add_u32 s47, s47, s{sT}
    s_lshl_b32 s{sDO}, s47, 10
    s_add_u32 s{sDO+1}, s{sDO}, 32768
    s_add_u32 s{sDO+2}, s{sDO}, 65536
    s_add_u32 s{sDO+3}, s{sDO}, 98304
    s_lshl_b32 s{sFO}, s{sRT}, 7
    s_and_b32 s47, s{sG}, 4
    s_add_u32 s{sFO}, s{sFO}, s47
    s_add_u32 s{sFO}, s{sFO}, s{sWAVE}
    s_lshl_b32 s{sFO}, s{sFO}, 2
    s_add_u32 s{sFO}, s{sFO}, {WS_FLAG}
    s_getreg_b32 s63, hwreg(HW_REG_XCC_ID, 0, 4)
    """)
    if cfg.ht and cfg.pf0 == -10:
        for q in range(4): e(f"buffer_store_dwordx4 {vr(VP+4,4)}, v{vSO}, {srd(sWS)}, s{sDO + q} offen {cfg.pf_flags}")
    if cfg.xap > 1:
        sh = {2: 5, 4: 4}[cfg.xap]
        e(f"v_lshrrev_b32 v1, {sh}, v0\nv_mov_b32 v2, v{VP+3}\nv_bfrev_b32 v3, 2")
        for k in range(cfg.xap):
            e(f"v_cmp_eq_u32 vcc, {k}, v1\nv_cndmask_b32 v{VP+3+k}, v3, v2, vcc")
    def tree(lab):
        e(f"""
        s_cmp_eq_u32 s{sS}, 1
        s_cbranch_scc1 {lab}1
        s_cmp_eq_u32 s{sS}, 2
        s_cbranch_scc1 {lab}2
        s_cmp_eq_u32 s{sS}, 3
        s_cbranch_scc1 {lab}3
        s_branch {lab}0
        """)
    e(f"""
    s_waitcnt vmcnt({4 if cfg.ht and cfg.pf0 == -10 else 0}) lgkmcnt(0)
    s_add_u32 s63, s63, s{sEP}
    s_add_u32 s63, s63, {K2}
    s_add_u32 s{sEP}, s{sEP}, {K1}
    v_mov_b32 v1, s63
    v_mov_b32 v{vFV}, s{sEP}
    s_cmp_eq_u32 s{sWAVE}, 0
    s_cbranch_scc0 L_noann
    buffer_store_dword v1, v{vFO}, {srd(sWS)}, s62 offen sc1
L_noann:
    """)
    if cfg.ht and cfg.pf0 == -11:
        for q in range(4): e(f"buffer_store_dwordx4 {vr(VP+4,4)}, v{vSO}, {srd(sWS)}, s{sDO + q} offen {cfg.pf_flags}")
    if cfg.warm and cfg.VS > 0:
        tree("L_w")
        e("L_wback:")
    def xreg(step, t): return BUF[step & 1] + 4*(t + 1)
    def wbase(step): return W15 if (step == cfg.R0 + 2) else BUF[step & 1] + 36
    def wreads(step):
        c, s = step >> 1, step & 1
        R = []
        for p in (1, 2, 0):
            for j in range(2):
                d = wbase(step) + 4*p + 2*j
                R.append(f"ds_read_b64_tr_b16 v[{d}:{d+1}], v{vWA + c % 3} offset:{s*12288 + p*1024 + j*512}")
        return R
    def xread(step, t):
        c, s = step >> 1, step & 1
        d = xreg(step, t)
        if t < 0: return f"ds_read_b128 v[{d}:{d+3}], v{vHA+s} offset:{c*1024}"
        return f"ds_read_b128 v[{d}:{d+3}], v{vXA+2*(c % 3)+s} offset:{t*2048}"
    def reads(step): return wreads(step) + [xread(step, t) for t in range(-1, 8)]
    def mf(step, t, j):
        a = (accQ, accK, accV)[j](t); w = vr(wbase(step) + 4*j, 4); x = vr(xreg(step, t), 4)
        c = "0" if step == 0 else vr(a, 4)
        ops = f"{x}, {w}" if j == 2 else f"{w}, {x}"
        return f"v_mfma_f32_16x16x32_bf16 {vr(a,4)}, {ops}, {c}"
    def mfmas(step):
        if cfg.order == 3:
            M = [mf(step, -1, 1)]
            for t in range(8):
                M += [mf(step, t, 1), mf(step, t, 0)] if t % 2 == 0 else [mf(step, t, 0), mf(step, t, 1)]
            M += [mf(step, t, 2) for t in range(-1, 8)]
        else:
            M = []
            for t in range(-1, 8):
                M += [mf(step, t, 1), mf(step, t, 2)] + ([mf(step, t, 0)] if t >= 0 else [])
        return M
    def kstep(step):
        e("s_waitcnt lgkmcnt(0)")
        if step & 1 and step < 15:
            e("s_barrier")
            if step in (7,): stamp()
        if step == 12 and not cfg.late:
            e(f"v_cmp_ne_u32 vcc, 0, v{VP}")
        M = mfmas(step); F = reads(step + 1)
        if step == 11 and not cfg.late:
            F = F + [f"v_mov_b32 v{VP+1}, 0", f"ds_read_b32 v{VP}, v{VP+1}"]
        if cfg.ht and cfg.pfi >= 0 and step == cfg.pf0:
            F = F + [""] * (cfg.pfi - len(F))
            for q in range(4):
                F = F + [f"buffer_store_dwordx4 {vr(VP+4,4)}, v{vSO}, {srd(sWS)}, s{sDO + q} offen {cfg.pf_flags}", ""]
            assert len(F) <= 27
        if cfg.ht and cfg.pfi < 0 and cfg.pf0 <= step < cfg.pf0 + 4:
            F = F + [f"buffer_store_dwordx4 {vr(VP+4,4)}, v{vSO}, {srd(sWS)}, s{sDO + step - cfg.pf0} offen {cfg.pf_flags}"]
        if cfg.xa >= 0:
            at = lambda k: f"buffer_atomic_or v{VP+2}, v{VP+3+k}, {srd(sWS)}, s{sDO} offen {cfg.xa_flags}"
            if cfg.xap > 1:
                for k in range(cfg.xap):
                    if step == cfg.xa + k * cfg.xas: F = F + [at(k)]
            elif cfg.xas == 0:
                if step == cfg.xa: F = F + [at(0)]
            else:
                for w in range(4):
                    if step == cfg.xa + w * cfg.xas:
                        F = F + [f"s_cmp_eq_u32 s{sWAVE}, {w}", f"s_cbranch_scc0 L_xa{w}\n{at(0)}\nL_xa{w}:"]
        for i, m in enumerate(M):
            e(m)
            if i < len(F): e(F[i])
    def Vp(t): return VP + 2*(7 - t)
    def region(s):
        stubs = []
        R0 = cfg.R0
        units = []
        first = 2*s - 1
        units.append((0, first, (1, 2)))
        for r in range(4):
            q = (r + s) & 3
            if q == 0 and s != 0: units.append((r, -1, (1, 2)))
            a, b = 2*q, 2*q + 1
            units.append((r, a, (1, 0, 2)))
            units.append((r, b, (0,) if b == first else (1, 0, 2)))
        I = []
        seen = set()
        for step in range(R0, 16):
            if step > R0:
                for k, x in enumerate(wreads(step)): I.append(Item(x, (-2, step, k)))
                tl = []
                for u, (r, t, js) in enumerate(units):
                    if t not in tl:
                        tl.append(t); I.append(Item(xread(step, t), (-1, u, step)))
            for u, (r, t, js) in enumerate(units):
                for k, j in enumerate(js):
                    rr = 0 if (js == (0,) and step + 2 <= 15) else r
                    I.append(Item(mf(step, t, j), (rr, 0, 0 if rr != r else u, step, k), tag=(f"g{r}" if step == 15 and u == len(units) - 1 and j == js[-1] else None)))
        if cfg.late:
            I.append(Item(f"v_mov_b32 v{vXA}, 0", (-3, 0)))
            I.append(Item(f"ds_read_b32 v{vXA+1}, v{vXA}", (-1, 99)))
            I.append(Item(f"v_cmp_ne_u32 vcc, 0, v{vXA+1}", (0, 0)))
        cv = lambda d, a, n: f"v_cvt_pk_bf16_f32 v{d}, v{a+2*n}, v{a+2*n+1}"
        kdone = set()
        prev_store = None; prev_flag = None
        for r in range(4):
            q = (r + s) & 3
            a, b = 2*q, 2*q + 1
            n = [0]
            def add(text, **kw):
                n[0] += 1
                it = Item(text, (r, 1, n[0]), **kw); I.append(it); return it
            for t in (a - 1, a, b):
                if t not in kdone:
                    kdone.add(t)
                    add(cv(accK(t), accK(t), 0)); add(cv(accK(t) + 1, accK(t), 1))
                    add(cv(Vp(t), accV(t), 0)); add(cv(Vp(t) + 1, accV(t), 1))
            XE = lambda t: BUF[0] + 4*(t + 1)
            XO = lambda t: BUF[1] + 4*(t + 1)
            for t in (a, b):
                Q = accQ(t)
                for k in range(2): add(f"v_cndmask_b32 v{accK(t)+2+k}, v{accK(t)+k}, v{accK(t-1)+k}, s[{sMH}:{sMH+1}]")
                add(cv(Q, Q, 0)); add(cv(Q + 1, Q, 1))
                for k in range(2): add(f"v_cndmask_b32 v{Q+2+k}, v{Q+k}, 0, s[{sMH}:{sMH+1}]")
                for k in range(2): add(f"v_cndmask_b32 v{Q+k}, 0, v{Q+k}, s[{sMH}:{sMH+1}]")
                add(f"v_mfma_f32_16x16x32_bf16 {vr(XE(t),4)}, {vr(accK(t),4)}, {vr(Q,4)}, {vr(vB0 if t == 0 else vB,4)}")
            for t in (a, b):
                S = XE(t)
                add(f"v_max3_f32 v{XO(t)}, v{S}, v{S+1}, v{S+2}")
                add(f"v_max_f32 v{XO(t)}, v{XO(t)}, v{S+3}")
            ma, mb = XO(a), XO(b)
            add(f"v_permlane32_swap_b32 v{ma}, v{mb}")
            add(f"v_max_f32 v{ma+1}, v{ma}, v{mb}")
            add(f"v_max_f32 v{ma}, v{ma}, v{mb}")
            add(f"v_permlane16_swap_b32 v{ma}, v{ma+1}")
            add(f"v_max_f32 v{ma}, v{ma}, v{ma+1}")
            add(f"v_mul_f32 v{mb}, s{sSC}, -v{ma}")
            add(f"v_mul_f32 v{ma}, s{sSC}, -v{ma}")
            add(f"v_permlane32_swap_b32 v{ma}, v{mb}")
            for t in (a, b):
                S = XE(t); P = accQ(t)
                for k in range(4): add(f"v_fma_f32 v{S+k}, v{S+k}, s{sSC}, v{XO(t)}")
                for k in range(4): add(f"v_exp_f32 v{S+k}, v{S+k}")
                add(cv(P, S, 0)); add(cv(P + 1, S, 1))
                for k in range(2): add(f"v_cndmask_b32 v{P+2+k}, 0, v{P+k}, s[{sPM}:{sPM+1}]")
                for k in range(2): add(f"v_cndmask_b32 v{P+k}, v{P+k}, 0, s[{sPM}:{sPM+1}]")
                add(f"v_mfma_f32_16x16x32_bf16 {vr(XO(t),4)}, {vr(vONE,4)}, {vr(P,4)}, 0")
                add(f"v_mfma_f32_16x16x32_bf16 {vr(accV(t),4)}, {vr(Vp(t),4)}, {vr(P,4)}, 0")
            OP = XE(a)
            for t in (a, b):
                O = accV(t)
                add(f"v_rcp_f32 v{XO(t)}, v{XO(t)}")
                for k in range(4): add(f"v_mul_f32 v{O+k}, v{O+k}, v{XO(t)}")
                add(cv(OP + 2*(t - a), O, 0)); add(cv(OP + 2*(t - a) + 1, O, 1))
            add(f"v_permlane16_swap_b32 v{OP}, v{OP+2}")
            add(f"v_permlane16_swap_b32 v{OP+1}, v{OP+3}")
            st = f"buffer_store_dwordx4 {vr(OP,4)}, v{vSO}, {srd(sWS)}, s{sDO+q} offen"
            fl = f"buffer_store_dword v{vFV}, v{vFO}, {srd(sWS)}, s{sFO} offen offset:{q*128 + r*32}"
            sx = ("\n" + stamp_text()) if cfg.stamps else ""
            if cfg.ht:
                add(f"v_min_u32 v{OP}, -2, v{OP}")
                t1, t2 = (f"{st} {cfg.fast_flags}", f"{fl} {cfg.ffl_flags}")
                if cfg.hbad: t1, t2 = t2 + "\n" + "s_nop 15\n" * cfg.hbad, t1
                w0 = "s_waitcnt vmcnt(0)\n" if r == 0 else ""
                store = add(f"{w0}s_cbranch_vccz L_ss{s}{r}\n{t1}\n{t2}\nL_sb{s}{r}:{sx}", tag=f"st{r}", urgent=True,
                            after=[(prev_store, 0)] if prev_store else None)
                stubs.append(f"L_ss{s}{r}:\n{st} sc1\ns_waitcnt vmcnt(0)\n{fl} sc1\ns_branch L_sb{s}{r}")
                if r == cfg.b8 or r == cfg.b9: add("s_barrier", after=[(store, 0)], urgent=True)
                prev_store = store
                continue
            store = add(f"s_cbranch_vccz L_ss{s}{r}\n{st} {cfg.fast_flags}\nL_sb{s}{r}:{sx}", tag=f"st{r}", urgent=True,
                        after=[(prev_store, 0)] if prev_store else None)
            stubs.append(f"L_ss{s}{r}:\n{st} sc1\ns_branch L_sb{s}{r}")
            if r == cfg.b8 or r == cfg.b9: add("s_barrier", after=[(store, 0)], urgent=True)
            flag = add(f"s_cbranch_vccz L_fs{s}{r}\n{fl} {cfg.ffl_flags}\nL_fb{s}{r}:", tag=f"fl{r}", urgent=True, waitvm=store,
                       after=[(store, cfg.LF)] + ([(prev_flag, 0)] if prev_flag else []))
            stubs.append(f"L_fs{s}{r}:\n{fl} sc1\ns_branch L_fb{s}{r}")
            prev_store = store; prev_flag = flag
        e("s_waitcnt lgkmcnt(0)")
        if R0 & 1 and R0 < 15: e("s_barrier")
        stamp()
        if cfg.prio: e(f"s_setprio {cfg.prio}")
        out, t = schedule(I, mfma_first=bool(cfg.mf), ds_lat=cfg.dslat, verbose=cfg.verbose)
        for x in out: e(x)
        return stubs
    stamp()
    if cfg.VS > 0:
        e("s_barrier")
        stamp()
        for x in reads(0): e(x)
        for step in range(cfg.VS): kstep(step)
    tree("L_v")
    n0 = nst[0]
    for s in range(4):
        nst[0] = n0
        e(f".p2align 6\nL_w{s}:")
        e("s_branch L_wback\ns_nop 0" if cfg.warm and cfg.VS > 0 else "s_nop 0\ns_nop 0")
        e(f"L_v{s}:")
        if cfg.VS == 0:
            e("s_barrier")
            stamp()
            for x in reads(0): e(x)
        for step in range(cfg.VS, cfg.R0): kstep(step)
        stubs = region(s)
        stamp()
        dump_stamps(nst[0])
        e("s_endpgm")
        for x in stubs: e(x)
        e(f"L_ve{s}:")
    body, added = hz.fix("\n".join(L))
    return body, added

def finish(body, VSZ):
    K = NAME + "_kernel"
    for s in range(4):
        body = body.replace(f"L_ve{s}:", f"L_ve{s}:\n.fill ({VSZ}-(L_ve{s}-L_w{s}))/4, 4, 0xbf800000")
    s = HDR.format(launch="; @launch grid=(256,1,1) block=(512,1,1) lds=163840") + kernel_head(K) + body + "\n"
    s += ".fill 64, 4, 0xbf800000\n"
    s += kernel_desc(K, 256, 256, 102)
    return s

def build(cfg):
    import subprocess, re, os
    body, added = gen(cfg)
    tmp = f"g3_{os.getpid()}"
    open(tmp + ".s", "w").write(finish(body, 0).replace(".fill (0-", ".fill 0*(0-"))
    subprocess.run(["clang", "-x", "assembler", "-target", "amdgcn-amd-amdhsa", "-mcpu=gfx950", "-c", tmp + ".s", "-o", tmp + ".o"], check=True)
    sy = subprocess.run(["llvm-objdump", "-t", tmp + ".o"], capture_output=True, text=True).stdout
    A = {l.split()[-1]: int(l.split()[0], 16) for l in sy.strip().split("\n") if re.match(r"^[0-9a-f]{16} ", l)}
    sz = max(A[f"L_ve{s}"] - A[f"L_w{s}"] for s in range(4))
    sz = (sz + 63) // 64 * 64
    return finish(body, sz), added, (A["L_compute"], A["L_w0"], sz)

if __name__ == "__main__":
    kw = {}
    for a in sys.argv[2:]:
        k, v = a.split("=")
        kw[k] = v.replace("+", " ") if k.endswith("flags") or k.startswith("dma_") else int(v, 0)
    s, added, info = build(Cfg(**kw))
    open(sys.argv[1], "w").write(s)
    print("nops added", added, "sizes", info)
```

```python
import sys, struct
from asmlib import *
import hz
from sched import Item, schedule

def f2u(f): return struct.unpack("<I", struct.pack("<f", f))[0]

class Cfg:
    stamps = 0
    fast_flags = "nt"
    ffl_flags = ""
    ld_flags = "sc1"
    pt_flags = "sc1 nt"
    out_flags = "nt"
    dma_x = "nt"
    dma_w = ""
    order = 3
    hzero = 1
    tabA = 0x67452310
    tabB = 0x75634021
    R0 = 13
    VS = 13
    warm = 1
    LF = 600
    prio = 3
    lprio = 0
    nofast = 0
    kp = 0
    xwA = 8
    xwB = 8
    xoA = 8
    xoB = 8
    nw = 0
    ac = 5
    b8 = -1
    wsh = 0
    diag = 0
    ht = 0
    pf0 = 2
    pf_flags = 'nt'
    pfi = -1
    hbad = 0
    nw1 = 0
    b9 = -1
    g3 = 1
    ap = 8
    lk = 10
    g2 = 1
    lp2 = 0
    nw0 = 0
    xa = -1
    xas = 0
    xap = 1
    xa_flags = ''
    sm = 0
    su = -1
    late = 1
    mf = 1
    dslat = 128
    verbose = 0
    def __init__(self, **kw):
        for k, v in kw.items():
            assert hasattr(self, k), k
            setattr(self, k, v)

HALO = 0; SLOT0 = 8192; SLOTSZ = 40960; WO_L = 98304; STAGE = 8192
WS_FLAG = 8 << 20; WS_E = WS_FLAG + 65536; WS_A = WS_FLAG + 131072; WS_STAMP = 16 << 20
K1 = 0x9e3779b9; K2 = 0x51ed270b
sX, sW, sWO, sOUT, sWS = 24, 28, 32, 36, 40
sEP = 44
sWAVE, sRT, sG, sBR, sPAR, sSEG, sCLS = 48, 49, 50, 51, 52, 53, 54
sT = 55
sST = 64
NST = 12
def srd(r): return f"s[{r}:{r+3}]"
def vr(a, n): return f"v[{a}:{a+n-1}]" if n > 1 else f"v{a}"

def gen(cfg):
    K = NAME + "_kernel"
    L = []
    def e(s):
        for ln in s.strip("\n").split("\n"):
            if ln.strip(): L.append(ln.strip() if ln.strip().endswith(":") else "    " + ln.strip())
    nst = [0]
    def stamp_text():
        i = nst[0]; nst[0] += 1
        assert i < NST
        return f"{'s_memrealtime' if cfg.stamps == 2 else 's_memtime'} s[{sST+2*i}:{sST+2*i+1}]"
    def stamp():
        if cfg.stamps: e(stamp_text())
    def dump_stamps(n, ld=False):
        if not cfg.stamps: return
        e("s_memrealtime s[96:97]\ns_waitcnt lgkmcnt(0)")
        e("v_mov_b32 v16, s98\nv_mov_b32 v17, s96")
        e(f"s_getreg_b32 s{sT}, hwreg(HW_REG_XCC_ID, 0, 4)\nv_mov_b32 v18, s{sT}")
        for i in range(1, 14):
            if i < n:
                e(f"s_sub_u32 s{sT}, s{sST+2*i}, s{sST}\nv_mov_b32 v{18+i}, s{sT}")
            elif i == 13 and ld:
                e(f"s_sub_u32 s{sT}, 0x10000000, s47\nv_mov_b32 v{18+i}, s{sT}")
            else:
                e(f"v_mov_b32 v{18+i}, 0")
        e(f"""s_lshl_b32 s{sT}, s2, 3
        s_add_u32 s{sT}, s{sT}, s{sWAVE}
        s_lshl_b32 s{sT}, s{sT}, 6
        s_add_u32 s{sT}, s{sT}, {WS_STAMP}
        s_mov_b64 exec, 1
        v_mov_b32 v1, 0""")
        for i in range(4):
            e(f"buffer_store_dwordx4 v[{16+4*i}:{19+4*i}], v1, {srd(sWS)}, s{sT} offen offset:{16*i}")
        e("s_waitcnt vmcnt(0)")

    stamp()
    if cfg.stamps: e("s_memrealtime s[98:99]")
    e(f"""
    s_cmp_ge_u32 s2, 256
    s_cbranch_scc1 L_end
    s_load_dwordx16 s[4:19], s[0:1], 0
    s_load_dwordx2 s[20:21], s[0:1], 64
    s_getpc_b64 s[22:23]
L_pc:
    s_bfe_u32 s{sT+2}, s2, 0x20003
    s_mul_i32 s{sT+2}, s{sT+2}, L_w1-L_w0
    v_lshlrev_b32 v1, 6, v0
    v_min_u32 v1, L_w1-L_pc, v1
    v_mov_b32 v2, s{sT+2}
    v_cmp_lt_u32 vcc, L_w0-L_pc, v1
    v_lshrrev_b32 v3, 6, v0
    s_and_b32 s{sT}, s2, 7
    v_cndmask_b32 v2, 0, v2, vcc
    v_add_u32 v1, v1, v2
    global_load_dword v255, v1, s[22:23]
    s_lshr_b32 s{sT+1}, s2, 3
    v_readfirstlane_b32 s{sWAVE}, v3
    v_and_b32 v0, 63, v0
    s_lshr_b32 s{sRT}, s{sT+1}, 3
    s_lshl_b32 s{sT}, s{sT}, 2
    s_add_u32 s{sRT}, s{sRT}, s{sT}
    s_and_b32 s{sG}, s{sT+1}, 7
    s_lshr_b32 s{sBR}, s{sRT}, 4
    s_bfe_u32 s{sPAR}, s{sRT}, 0x10003
    s_and_b32 s{sSEG}, s{sRT}, 7
    s_cmp_ge_u32 s{sWAVE}, 4
    s_cbranch_scc0 L_compute
    """)
    sLW, sXB, sWB, sKO, sWOFF, sHOFF = sT, sT+1, sT+2, sT+3, sT+4, sT+5
    vX, vW, vH = 8, 12, 14
    sMX, sMW, sA, sB, sHM = 88, 92, 94, 95, 100
    if cfg.lprio: e(f"s_setprio {cfg.lprio}")
    e(f"""
    s_add_u32 s{sCLS}, s{sRT}, s{sG}
    s_and_b32 s{sCLS}, s{sCLS}, 1
    s_lshr_b32 s{sA}, s{sG}, 1
    s_bfe_u32 s{sB}, s{sRT}, 0x10001
    s_cmp_eq_u32 s{sCLS}, 0
    s_mov_b32 s{sCLS}, {cfg.tabA}
    s_cselect_b32 s{sCLS}, s{sCLS}, {cfg.tabB}
    s_sub_u32 s{sLW}, s{sWAVE}, 4
    v_lshrrev_b32 v3, 3, v0
    v_and_b32 v4, 7, v0
    v_lshrrev_b32 v5, 4, v0
    v_xor_b32 v6, v4, v5
    v_lshlrev_b32 v6, 4, v6
    v_lshl_add_u32 v6, v3, 11, v6
    s_lshl_b32 s{sT+6}, s{sSEG}, 18
    s_lshl_b32 s{sT+7}, s{sPAR}, 10
    s_add_u32 s{sT+6}, s{sT+6}, s{sT+7}
    s_sub_u32 s{sHOFF}, s{sT+6}, 16384
    s_cmp_eq_u32 s{sSEG}, 0
    s_cselect_b32 s{sHOFF}, 0x40000000, s{sHOFF}
    s_lshl_b32 s{sT+7}, s{sLW}, 16
    s_add_u32 s{sT+6}, s{sT+6}, s{sT+7}
    s_lshl_b32 s{sXB}, s{sLW}, 12
    """)
    for j in range(4):
        e(f"""
        s_add_u32 s{sKO}, s{sA}, {j}
        s_and_b32 s{sKO}, s{sKO}, 3
        s_lshl_b32 s{sMX+j}, s{sKO}, 10
        s_add_u32 s{sMX+j}, s{sMX+j}, s{sXB}
        s_and_b32 s{sT+7}, s{sKO}, 1
        s_lshl_b32 s{sT+7}, s{sT+7}, 6
        s_lshl_b32 s{sKO}, s{sKO}, 14
        s_add_u32 s{sKO}, s{sKO}, s{sT+6}
        v_xor_b32 v{vX+j}, s{sT+7}, v6
        v_add_u32 v{vX+j}, s{sKO}, v{vX+j}
        """)
    e(f"""
    v_lshlrev_b32 v7, 1, v5
    v_xor_b32 v6, v4, v7
    v_lshlrev_b32 v6, 4, v6
    v_lshl_add_u32 v6, v3, 11, v6
    v_add_u32 v{vH}, s{sHOFF}, v6
    v_and_b32 v7, 2, v7
    v_xor_b32 v7, v7, v4
    v_lshlrev_b32 v7, 4, v7
    v_mul_u32_u24 v6, 3072, v3
    v_add_u32 v7, v7, v6
    s_mul_i32 s{sT+6}, s{sLW}, 49152
    s_lshl_b32 s{sT+7}, s{sG}, 7
    s_add_u32 s{sT+6}, s{sT+6}, s{sT+7}
    s_mul_i32 s{sWB}, s{sLW}, 6144
    """)
    for m in range(2):
        e(f"""
        s_xor_b32 s{sKO}, s{sB}, {m}
        s_mul_i32 s{sMW+m}, s{sKO}, 3072
        s_add_u32 s{sMW+m}, s{sMW+m}, s{sWB}
        s_lshl_b32 s{sT+7}, s{sKO}, 6
        s_mul_i32 s{sKO}, s{sKO}, 24576
        s_add_u32 s{sKO}, s{sKO}, s{sT+6}
        v_xor_b32 v{vW+m}, s{sT+7}, v7
        v_add_u32 v{vW+m}, s{sKO}, v{vW+m}
        """)
    e(f"""
    s_lshl_b32 s{sT+6}, s{sLW}, 4
    s_lshl_b64 s[{sHM}:{sHM+1}], 0xffff, s{sT+6}
    s_waitcnt lgkmcnt(0)
    """)
    stamp()
    e(f"""
    s_cmp_eq_u32 s{sBR}, 0
    s_cselect_b32 s{sX}, s4, s10
    s_cselect_b32 s{sX+1}, s5, s11
    s_mov_b32 s{sX+2}, 0x200000
    s_mov_b32 s{sX+3}, 0x20000
    s_cselect_b32 s{sW}, s6, s12
    s_cselect_b32 s{sW+1}, s7, s13
    s_mov_b32 s{sW+2}, 0x180000
    s_mov_b32 s{sW+3}, 0x20000
    s_cselect_b32 s{sWO}, s8, s14
    s_cselect_b32 s{sWO+1}, s9, s15
    s_mov_b32 s{sWO+2}, 0x80000
    """)
    def issue(c):
        slot = SLOT0 + (c % 3) * SLOTSZ
        e(f"""
        s_bfe_u32 s{sT+6}, s{sCLS}, {0x30000 + 4*c}
        s_add_u32 m0, s{sMW}, {slot + 16384}
        s_mul_i32 s{sWOFF}, s{sT+6}, 196608
        s_lshl_b32 s{sKO}, s{sT+6}, 7
        """)
        def wl(m):
            for p in range(3):
                e(f"buffer_load_dwordx4 v{vW+m}, {srd(sW)}, s{sWOFF} offen offset:{1024*p} {cfg.dma_w} lds")
        def xl(j):
            e(f"s_add_u32 m0, s{sMX+j}, {slot}")
            e(f"buffer_load_dwordx4 v{vX+j}, {srd(sX)}, s{sKO} offen {cfg.dma_x} lds")
        wl(0); xl(0)
        e(f"s_mov_b32 m0, {HALO + c*1024}\ns_mov_b64 exec, s[{sHM}:{sHM+1}]")
        e(f"buffer_load_dwordx4 v{vH}, {srd(sX)}, s{sKO} offen {cfg.dma_x} lds")
        e(f"s_add_u32 m0, s{sMW+1}, {slot + 16384}\ns_mov_b64 exec, -1")
        wl(1); xl(1); xl(2); xl(3)
    OF = 0; ACC = 128; WF = 160
    vA = 224
    vO0, vO1, vPO, vP = 232, 233, 234, 235
    vSW, vSR, vOA = 236, 240, 241
    vD = 242
    vWO = 246
    sSO = 12
    sFL, sOO, sSP = 45, 46, 47
    sAV = 18
    issue(0)
    e(f"""
    s_mov_b32 s{sWO+3}, 0x20000
    s_mov_b32 s{sWS}, s20
    s_mov_b32 s{sWS+1}, s21
    s_mov_b32 s{sWS+2}, 0x10000000
    s_mov_b32 s{sWS+3}, 0x20000
    s_mov_b32 s{sOUT}, s16
    s_mov_b32 s{sOUT+1}, s17
    s_mov_b32 s{sOUT+2}, 0x400000
    s_mov_b32 s{sOUT+3}, 0x20000
    """)
    vXw, vXo = 250, 252
    sXw, sXo = 16, 17
    e(f"""
    v_lshlrev_b32 v{vXw}, 6, v0
    v_and_b32 v1, 15, v0
    v_lshlrev_b32 v1, 6, v1
    v_lshrrev_b32 v2, 4, v0
    v_lshl_add_u32 v{vXo}, v2, 15, v1
    s_cmp_eq_u32 s{sCLS}, {cfg.tabA}
    s_cselect_b32 s{sT+6}, 0, 0x40000000
    s_cselect_b32 s{sT+7}, 0x40000000, 0
    v_add_u32 v{vXw+1}, s{sT+7}, v{vXw}
    v_add_u32 v{vXo+1}, s{sT+7}, v{vXo}
    v_add_u32 v{vXw}, s{sT+6}, v{vXw}
    v_add_u32 v{vXo}, s{sT+6}, v{vXo}
    s_and_b32 s{sXw}, s{sRT}, 3
    s_lshl_b32 s{sXw}, s{sXw}, 3
    s_add_u32 s{sXw}, s{sXw}, s{sG}
    s_lshl_b32 s{sXw}, s{sXw}, 2
    s_add_u32 s{sXw}, s{sXw}, s{sLW}
    s_lshl_b32 s{sXw}, s{sXw}, 12
    s_lshl_b32 s{sXo}, s{sRT}, 5
    s_add_u32 s{sXo}, s{sXo}, s{sG}
    s_lshl_b32 s{sXo}, s{sXo}, 2
    s_add_u32 s{sXo}, s{sXo}, s{sLW}
    s_lshl_b32 s{sXo}, s{sXo}, 10
    """)
    if cfg.xwA == cfg.xwB: e(f"v_min_u32 v{vXw}, v{vXw}, v{vXw+1}")
    if cfg.xoA == cfg.xoB: e(f"v_min_u32 v{vXo}, v{vXo}, v{vXo+1}")
    def acheck():
        if cfg.diag:
            e(f"""
            s_mov_b32 s3, 0
            s_mov_b32 s{sSP}, 100000
            s_getreg_b32 s{sWOFF}, hwreg(HW_REG_XCC_ID, 0, 4)
            s_sub_u32 s{sWOFF}, s{sAV}, s{sWOFF}
L_dg:
            s_waitcnt lgkmcnt(0)
            s_mov_b32 s{sKO}, 0
            """)
            for i in range(8):
                e(f"s_sub_u32 s{sT+7}, s{4+i}, s{sWOFF}\ns_or_b32 s{sKO}, s{sKO}, s{sT+7}")
            e(f"""
            s_cmp_lt_u32 s{sKO}, 16
            s_cbranch_scc1 L_dgx
            s_mov_b32 s3, 800
            s_sub_u32 s{sSP}, s{sSP}, 1
            s_cbranch_scc1 L_dgx
            s_add_u32 s{sT+6}, s19, {WS_A}
            s_load_dwordx8 s[4:11], s[20:21], s{sT+6} glc
            s_branch L_dg
L_dgx:
            """)
        e(f"""
        s_mov_b32 s19, s{sAV}
        s_waitcnt lgkmcnt(0)
        s_xor_b64 s[4:5], s[4:5], s[18:19]
        s_xor_b64 s[6:7], s[6:7], s[18:19]
        s_xor_b64 s[8:9], s[8:9], s[18:19]
        s_xor_b64 s[10:11], s[10:11], s[18:19]
        s_or_b64 s[4:5], s[4:5], s[6:7]
        s_or_b64 s[8:9], s[8:9], s[10:11]
        s_or_b64 s[4:5], s[4:5], s[8:9]
        s_cselect_b32 s4, 0, {0 if cfg.nofast else 1}
        {"s_cselect_b32 s5, 1600, 0" if cfg.diag else ""}
        {"s_add_u32 s3, s3, s5" if cfg.diag else ""}
        v_mov_b32 v1, 0
        v_mov_b32 v2, s4
        ds_write_b32 v1, v2
        """)
        if cfg.b8 < 0:
            e(f"s_lshl_b32 s4, s{sLW}, 2\nv_mov_b32 v3, s4\nds_write_b32 v3, v1 offset:16")
    def xat(pos):
        n = 0
        for (pa, pb, v, sr, so, fl) in ((cfg.xwA, cfg.xwB, vXw, sWO, sXw, ""), (cfg.xoA, cfg.xoB, vXo, sWS, sXo, cfg.pt_flags)):
            if pa == pos:
                e(f"buffer_load_dword v{v}, v{v}, {srd(sr)}, s{so} offen {fl}"); n += 1
            elif pb == pos:
                e(f"buffer_load_dword v{v+1}, v{v+1}, {srd(sr)}, s{so} offen {fl}"); n += 1
        return n
    for c in range(8):
        nX = 0
        if c + 1 <= 7 and not (c == 0 and cfg.su < 0):
            nX = xat(c + 1); issue(c + 1)
            if c == 6: nX7 = xat(10); nX += nX7
        if c == 0:
            e(f"""
            s_lshl_b32 s19, s{sRT}, 7
            s_add_u32 s{sT+6}, s19, {WS_E}
            s_load_dword s{sEP}, s[20:21], s{sT+6}
            """)
        if c == max(cfg.su, 0):
            e(f"""
            v_and_b32 v1, 1, v0
            v_bfe_u32 v2, v0, 1, 1
            v_lshl_add_u32 v1, v1, 1, v2
            v_bfe_u32 v2, v0, 4, 1
            v_lshl_add_u32 v1, v2, 2, v1
            v_lshlrev_b32 v1, 3, v1
            v_bfe_u32 v2, v0, 3, 1
            v_lshl_add_u32 v1, v2, 6, v1
            v_bfe_u32 v2, v0, 2, 2
            v_lshl_add_u32 v1, v2, 7, v1
            v_lshrrev_b32 v2, 5, v0
            v_lshl_add_u32 v1, v2, 10, v1
            s_lshl_b32 s{sOO}, s{sRT}, 2
            s_add_u32 s{sOO}, s{sOO}, s{sLW}
            s_lshl_b32 s{sFL}, s{sOO}, 7
            s_add_u32 s{sFL}, s{sFL}, {WS_FLAG}
            s_lshl_b32 s{sOO}, s{sOO}, 15
            """)
            for r in range(4):
                e(f"""
                s_sub_u32 s{sT+6}, s{sLW}, {r}
                s_and_b32 s{sT+6}, s{sT+6}, 3
                s_lshl_b32 s{sT+7}, s{sT+6}, 12
                s_add_u32 s{sSO+r}, s{sT+7}, s{sOO}
                s_lshl_b32 s{sT+6}, s{sT+6}, 13
                s_add_u32 s{sT+6}, s{sT+6}, {WO_L}
                v_add_u32 v{vA+2*r}, s{sT+6}, v1
                v_xor_b32 v{vA+2*r+1}, 64, v{vA+2*r}
                """)
        if c == max(cfg.su, 0) * 2:
            e(f"""
            v_lshlrev_b32 v{vO0}, 4, v0
            v_add_u32 v{vO1}, 16384, v{vO0}
            v_and_b32 v1, 7, v0
            v_lshlrev_b32 v{vPO}, 2, v1
            v_lshrrev_b32 v2, 5, v0
            v_xor_b32 v1, v1, v2
            v_lshlrev_b32 v1, 4, v1
            v_and_b32 v2, 31, v0
            v_lshl_add_u32 v1, v2, 7, v1
            s_lshl_b32 s{sT+6}, s{sLW}, 12
            s_add_u32 s{sT+6}, s{sT+6}, {STAGE}
            v_add_u32 v{vSW}, s{sT+6}, v1
            v_xor_b32 v{vSW+1}, 32, v{vSW}
            v_xor_b32 v{vSW+2}, 64, v{vSW}
            v_xor_b32 v{vSW+3}, 96, v{vSW}
            v_add_u32 v{vSR}, s{sT+6}, v{vO0}
            v_lshrrev_b32 v2, 3, v0
            v_and_b32 v1, 7, v0
            v_xor_b32 v1, v1, v2
            v_lshlrev_b32 v1, 4, v1
            v_lshl_add_u32 v{vOA}, v2, 12, v1
            s_lshl_b32 s{sOO}, s{sSEG}, 19
            s_lshl_b32 s{sT+6}, s{sLW}, 17
            s_add_u32 s{sOO}, s{sOO}, s{sT+6}
            s_lshl_b32 s{sT+6}, s{sPAR}, 11
            s_add_u32 s{sOO}, s{sOO}, s{sT+6}
            s_lshl_b32 s{sT+6}, s{sBR}, 10
            s_add_u32 s{sOO}, s{sOO}, s{sT+6}
            s_lshl_b32 s{sT+6}, s{sG}, 7
            s_add_u32 s{sOO}, s{sOO}, s{sT+6}
            """)
        if c == max(cfg.su, 0) * 3:
            e(f"""
            v_lshrrev_b32 v3, 3, v0
            v_and_b32 v4, 7, v0
            v_lshrrev_b32 v5, 2, v0
            v_and_b32 v5, 4, v5
            v_xor_b32 v4, v4, v5
            v_lshlrev_b32 v4, 4, v4
            v_lshl_add_u32 v4, v3, 10, v4
            s_lshl_b32 s{sT+6}, s{sLW}, 17
            s_lshl_b32 s{sT+7}, s{sG}, 7
            s_add_u32 s{sT+6}, s{sT+6}, s{sT+7}
            v_add_u32 v{vWO}, s{sT+6}, v4
            v_add_u32 v{vWO+1}, 7168, v{vWO}
            v_add_u32 v{vWO+2}, 14336, v{vWO}
            v_add_u32 v{vWO+3}, 21504, v{vWO}
            """)
        if c == 0 and cfg.su < 0: issue(1)
        if c == 3:
            e(f"""
            s_getreg_b32 s{sAV}, hwreg(HW_REG_XCC_ID, 0, 4)
            s_waitcnt lgkmcnt(0)
            s_add_u32 s{sAV}, s{sAV}, s{sEP}
            s_add_u32 s{sAV}, s{sAV}, {K2}
            s_add_u32 s{sEP}, s{sEP}, {K1}
            """)
        if c == cfg.ac:
            e(f"""
            s_add_u32 s{sT+6}, s19, {WS_A}
            s_load_dwordx8 s[4:11], s[20:21], s{sT+6} glc
            """)
        if c == 6:
            if not cfg.late: acheck()
            e(f"""
            s_lshl_b32 s{sXB}, s{sLW}, 14
            s_waitcnt vmcnt({11 + nX}) {'' if cfg.late else 'lgkmcnt(0)'}
            """)
            nX7 += xat(11)
            e("s_barrier")
            stamp()
        elif c == 7:
            nX = xat(8) + nX7
            def wo(i):
                gq, j = i >> 2, i & 3
                if j == 0 and not cfg.wsh: e(f"s_add_u32 m0, s{sXB}, {WO_L + 4096*gq}\ns_mov_b32 s{sKO}, {32768*gq}")
                if j == 0 and cfg.wsh:
                    e(f"""
                    s_add_u32 s{sKO}, s{sRT}, {gq}
                    s_and_b32 s{sKO}, s{sKO}, 3
                    s_lshl_b32 s{sWOFF}, s{sKO}, 12
                    s_add_u32 s{sWOFF}, s{sWOFF}, s{sXB}
                    s_add_u32 m0, s{sWOFF}, {WO_L}
                    s_lshl_b32 s{sKO}, s{sKO}, 15
                    """)
                e(f"buffer_load_dwordx4 v{vWO+j}, {srd(sWO)}, s{sKO} offen offset:{1024*j} lds")
            for i in range(cfg.nw0): wo(i)
            e(f"s_waitcnt vmcnt({nX + cfg.nw0})")
            if cfg.sm == 1: stamp()
            for i in range(cfg.nw0, cfg.nw): wo(i)
            if cfg.late:
                acheck(); e("s_waitcnt lgkmcnt(0)")
            if cfg.sm == 1: stamp()
            e("s_barrier")
            stamp()
            for i in range(cfg.nw, cfg.nw1): wo(i)
            if cfg.b9 >= 0: e("s_barrier")
            for i in range(max(cfg.nw, cfg.nw1), 16): wo(i)
            nX = xat(9)
            e(f"buffer_load_dword v{vP}, v{vPO}, {srd(sWS)}, s{sFL} offen sc1")
            e(f"s_mov_b32 s{sSP}, {0x10000000 if cfg.stamps else 0x200000}\ns_waitcnt vmcnt({nX+1})")
        else:
            e(f"s_waitcnt vmcnt({11+nX})\ns_barrier")
            if c == 0: stamp()
    stamp()
    if cfg.lp2: e(f"s_setprio {cfg.lp2}")
    if cfg.b8 < 0: e("v_mov_b32 v2, 1\nds_write_b32 v3, v2 offset:16")
    def lsync():
        if cfg.b8 >= 0: e("s_barrier"); return
        e(f"""
L_ls:
        ds_read_b128 v[{WF}:{WF+3}], v{vD} offset:16
        s_sub_u32 s{sSP}, s{sSP}, 1
        s_cmp_lt_i32 s{sSP}, 0
        s_cbranch_scc1 L_lsx
        s_waitcnt lgkmcnt(0)
        v_and_b32 v{WF}, v{WF}, v{WF+1}
        v_and_b32 v{WF+2}, v{WF+2}, v{WF+3}
        v_and_b32 v{WF}, v{WF}, v{WF+2}
        v_cmp_eq_u32 vcc, 0, v{WF}
        s_cbranch_vccnz L_ls
L_lsx:
        """)
    e(f"v_mov_b32 v{vD}, 0")
    def wrd(H):
        r, i = H >> 3, H & 7
        R = []
        for m in range(2):
            for j in range(2):
                d = WF + 8*i + 4*m + 2*j
                R.append(f"ds_read_b64_tr_b16 v[{d}:{d+1}], v{vA+2*r+m} offset:{(i>>2)*32768 + (i&3)*2048 + j*512}")
        return R
    def oload(H):
        r, i = H >> 3, H & 7
        return f"buffer_load_dwordx4 {vr(OF+4*H,4)}, v{vO0 + (i>>2)}, {srd(sWS)}, s{sSO+r} offen offset:{(i&3)*1024} {cfg.ld_flags}"
    def poll(r): return f"buffer_load_dword v{vP}, v{vPO}, {srd(sWS)}, s{sFL} offen offset:{32*r} sc1"
    vq = []
    dq = []
    def ivm(tag, text): e(text); vq.append(tag)
    def ids(tag, text):
        if len(dq) >= 14:
            e(f"s_waitcnt lgkmcnt({cfg.lk})"); del dq[:len(dq) - cfg.lk]
        e(text); dq.append(tag)
    def wait(vt=None, dt=None):
        parts = []
        if vt is not None and vt in vq:
            k = len(vq) - 1 - max(i for i, t in enumerate(vq) if t == vt)
            parts.append(f"vmcnt({k})"); del vq[:len(vq) - k]
        if dt is not None and dt in dq:
            k = len(dq) - 1 - max(i for i, t in enumerate(dq) if t == dt)
            k2 = min(k, 15)
            parts.append(f"lgkmcnt({k2})"); del dq[:len(dq) - k2]
        if parts: e("s_waitcnt " + " ".join(parts))
    def check(r):
        wait(vt=("P", r))
        e(f"""
L_chk{r}:
        v_cmp_ne_u32 vcc, s{sEP}, v{vP}
        s_cbranch_vccnz L_spin{r}
L_ok{r}:
        """)
    def stage_loads(r):
        T = [(("L", 8*r + i), oload(8*r + i)) for i in range(8)]
        if r < 3: T.insert(cfg.kp, (("P", r + 1), poll(r + 1)))
        return T
    if cfg.g2 == 0:
        lsync()
        ivm(("P", 0), poll(0))
        for H in range(7):
            for x in wrd(H): ids(H, x)
        check(0)
        stamp()
        for t, x in stage_loads(0): ivm(t, x)
    else:
        vq.append(("P", 0))
        e("L_again:")
        check(0)
        stamp()
        for t, x in stage_loads(0): ivm(t, x)
        lsync()
        for H in range(7):
            for x in wrd(H): ids(H, x)
    alts = []
    def heads(r, pending, per):
        for i in range(8):
            H = 8*r + i
            wait(vt=("L", H), dt=H)
            for m in range(2):
                cc = "0" if H == 0 else vr(ACC+16*m, 16)
                e(f"v_mfma_f32_32x32x16_bf16 {vr(ACC+16*m,16)}, {vr(WF+8*i+4*m,4)}, {vr(OF+4*H,4)}, {cc}")
                if cfg.ht and m == 0 and i & 1:
                    c3 = "0" if H == 1 else f"v{vD+1}"
                    e(f"v_max3_u32 v{vD+1}, v{OF+4*H-4}, v{OF+4*H}, {c3}")
                if cfg.ht and m == 1 and H == 31:
                    e(f"v_cmp_eq_u32 vcc, -1, v{vD+1}\ns_cbranch_vccnz L_redo\nL_redox:")
                for _ in range(per[2*i + m]):
                    if pending:
                        t, x = pending.pop(0); ivm(t, x)
                if H + 7 < 32:
                    for x in wrd(H + 7)[2*m:2*m+2]: ids(H + 7, x)
        assert not pending
    if cfg.g3:
        assert cfg.kp == 0
        for r in range(4):
            if r < 3:
                wait(vt=("P", r + 1))
                e(f"v_cmp_ne_u32 vcc, s{sEP}, v{vP}\ns_cbranch_vccnz L_alt{r}")
                v0, d0 = list(vq), list(dq)
                pend = stage_loads(r + 1)
                t, x = pend.pop(0); ivm(t, x)
                heads(r, pend, [[1, 0]*8, [1, 1, 1, 0]*4, [1]*16][cfg.g3 - 1])
                e(f"L_join{r}:")
                stamp()
                v1, d1 = list(vq), list(dq)
                mark = len(L)
                vq[:] = v0; dq[:] = d0
                e(f"L_alt{r}:")
                if cfg.stamps: e(f"s_sub_u32 s{sSP}, s{sSP}, {0x100 << (4*r)}")
                heads(r, [(("P", r + 1), poll(r + 1))], [0]*cfg.ap + [1]*16)
                check(r + 1)
                for t, x in stage_loads(r + 1): ivm(t, x)
                e(f"s_branch L_join{r}")
                assert dq == d1 and vq[-len(v1):] == v1, (vq, v1)
                alts.append(L[mark:]); del L[mark:]
                vq[:] = v1
            else:
                heads(r, [], [0]*16)
    else:
        pending = []
        for H in range(32):
            r, i = H >> 3, H & 7
            if i == cfg.kp and r < 3:
                check(r + 1)
                if cfg.sm == 0 or r == 2: stamp()
                pending = stage_loads(r + 1)
                for _ in range(3):
                    t, x = pending.pop(0); ivm(t, x)
            wait(vt=("L", H), dt=H)
            for m in range(2):
                cc = "0" if H == 0 else vr(ACC+16*m, 16)
                e(f"v_mfma_f32_32x32x16_bf16 {vr(ACC+16*m,16)}, {vr(WF+8*i+4*m,4)}, {vr(OF+4*H,4)}, {cc}")
                if H + 7 < 32:
                    for x in wrd(H + 7)[2*m:2*m+2]: ids(H + 7, x)
                for _ in range(2):
                    if pending:
                        t, x = pending.pop(0); ivm(t, x)
    stamp()
    cvt = lambda d, a: e(f"v_cvt_pk_bf16_f32 v{d}, v{a}, v{a+1}\nv_cvt_pk_bf16_f32 v{d+1}, v{a+2}, v{a+3}")
    for m in range(2):
        for qq in range(2):
            a = ACC + 16*m + 8*qq; d = 8*m + 4*qq
            cvt(d, a); cvt(d + 2, a + 4)
            e(f"ds_write_b128 v{vSW + 2*m + qq}, {vr(d,4)}")
    e("s_waitcnt lgkmcnt(0)")
    for it in range(4):
        e(f"ds_read_b128 {vr(16+4*it,4)}, v{vSR} offset:{1024*it}")
    for it in range(4):
        e(f"s_waitcnt lgkmcnt({3-it})")
        if it > 0: e(f"s_add_u32 s{sOO}, s{sOO}, 32768")
        e(f"buffer_store_dwordx4 {vr(16+4*it,4)}, v{vOA}, {srd(sOUT)}, s{sOO} offen {cfg.out_flags}")
    e(f"""
    s_or_b32 s{sT+6}, s{sG}, s{sLW}
    s_cbranch_scc0 L_epoch
L_epochx:
    """)
    if cfg.diag:
        e("""
        s_memrealtime s[92:93]
L_dsp:
        s_memrealtime s[96:97]
        s_waitcnt lgkmcnt(0)
        s_sub_u32 s96, s96, s92
        s_cmp_lt_u32 s96, s3
        s_cbranch_scc1 L_dsp
        """)
    if cfg.stamps:
        e("s_waitcnt vmcnt(0)"); stamp()
    dump_stamps(nst[0], True)
    e("L_end:\ns_endpgm")
    for r in range(4):
        e(f"""
L_spin{r}:
        s_sub_u32 s{sSP}, s{sSP}, 1
        s_cmp_lt_i32 s{sSP}, 0
        s_cbranch_scc1 L_ok{r}
        {poll(r)}
        s_waitcnt vmcnt(0)
        s_branch L_chk{r}
        """)
    for al in alts: L.extend(al)
    if cfg.ht:
        e(f"""
L_redo:
        s_sub_u32 s{sSP}, s{sSP}, {0x80000 if cfg.stamps else 64}
        s_cmp_lt_i32 s{sSP}, 0
        s_cbranch_scc1 L_redox
        {poll(0)}
        s_branch L_again
        """)
    e(f"""
L_epoch:
    s_lshl_b32 s{sT+6}, s{sRT}, 7
    s_add_u32 s{sT+6}, s{sT+6}, {WS_E}
    v_mov_b32 v{vD}, s{sEP}
    s_mov_b64 exec, 1
    buffer_store_dword v{vD}, off, {srd(sWS)}, s{sT+6}
    s_mov_b64 exec, -1
    s_branch L_epochx
    """)
    nst[0] = 1
    e("L_compute:")
    AQ = 0; AK = 32; AV = 68
    BUF = [104, 152]
    W15 = 200
    vB = 212; vB0 = 216; vONE = 220
    vXA = 224; vWA = 230; vHA = 233
    vSO, vFO, vFV = 235, 236, 237
    VP = 238
    def accQ(t): return AQ + 4*t
    def accK(t): return AK + 4*(t+1)
    def accV(t): return AV + 4*(t+1)
    sSC = 56; sMH = 58; sPM = 60; sDO = 12; sFO = 45; sS = 46
    e(f"""
    v_and_b32 v1, 15, v0
    v_lshrrev_b32 v2, 4, v0
    v_bfe_u32 v3, v0, 1, 3
    v_xor_b32 v3, v3, v2
    v_lshlrev_b32 v3, 4, v3
    v_lshl_add_u32 v3, v1, 7, v3
    v_add_u32 v{vXA}, {SLOT0}, v3
    v_xor_b32 v{vXA+1}, 64, v{vXA}
    v_add_u32 v{vXA+2}, {SLOTSZ}, v{vXA}
    v_add_u32 v{vXA+3}, {SLOTSZ}, v{vXA+1}
    v_add_u32 v{vXA+4}, {2*SLOTSZ}, v{vXA}
    v_add_u32 v{vXA+5}, {2*SLOTSZ}, v{vXA+1}
    v_and_b32 v3, 6, v0
    v_xor_b32 v3, v3, v2
    v_lshlrev_b32 v3, 4, v3
    v_and_b32 v4, 7, v0
    v_lshl_add_u32 v{vHA}, v4, 7, v3
    {"v_and_b32 v4, 8, v0" if cfg.hzero else ""}
    {"v_xor_b32 v4, 8, v4" if cfg.hzero else ""}
    {f"v_lshl_add_u32 v{vHA}, v4, 15, v{vHA}" if cfg.hzero else ""}
    v_xor_b32 v{vHA+1}, 64, v{vHA}
    v_bfe_u32 v3, v0, 3, 2
    v_xor_b32 v3, s{sWAVE}, v3
    v_lshlrev_b32 v3, 5, v3
    v_and_b32 v4, 3, v0
    v_lshl_add_u32 v3, v4, 3, v3
    v_bfe_u32 v4, v0, 2, 2
    v_lshl_add_u32 v3, v4, 7, v3
    v_mul_u32_u24 v4, 3072, v2
    v_add_u32 v3, v3, v4
    v_add_u32 v{vWA}, {SLOT0+16384}, v3
    v_add_u32 v{vWA+1}, {SLOT0+16384+SLOTSZ}, v3
    v_add_u32 v{vWA+2}, {SLOT0+16384+2*SLOTSZ}, v3
    v_lshlrev_b32 v3, 2, v2
    v_sub_u32 v3, v1, v3
    v_mov_b32 v5, 0xff800000
    s_cmp_eq_u32 s{sSEG}, 0
    s_cselect_b32 s{sT}, {f2u(-4e9)}, 0
    v_mov_b32 v6, s{sT}
    """)
    for r in range(4):
        e(f"""
        v_subrev_u32 v4, {r}, v3
        v_cmp_gt_i32 s[62:63], 0, v4
        v_and_b32 v4, 8, v4
        v_cmp_eq_u32 vcc, 0, v4
        v_cndmask_b32 v{vB0+r}, 0, v6, s[62:63]
        v_cndmask_b32 v{vB+r}, v5, 0, vcc
        v_cndmask_b32 v{vB0+r}, v5, v{vB0+r}, vcc
        v_mov_b32 v{vONE+r}, 0x3f803f80
        """)
    e(f"""
    v_lshlrev_b32 v{vSO}, 4, v0
    v_mov_b32 v{VP+2}, 0
    v_mov_b32 v{VP+4}, -1
    v_mov_b32 v{VP+5}, -1
    v_mov_b32 v{VP+6}, -1
    v_mov_b32 v{VP+7}, -1
    v_lshlrev_b32 v1, 6, v1
    v_lshl_add_u32 v{VP+3}, v2, 15, v1
    v_min_u32 v{vFO}, 1, v0
    v_lshlrev_b32 v{vFO}, 30, v{vFO}
    s_mov_b32 s{sSC}, {f2u(0.25*1.4426950408889634)}
    s_mov_b32 s{sMH}, 0xff00ff00
    s_mov_b32 s{sMH+1}, 0xff00ff00
    s_mov_b32 s{sPM}, 0
    s_mov_b32 s{sPM+1}, 0x00ff00ff
    s_and_b32 s{sS}, s{sG}, 3
    s_lshl_b32 s{sT}, s{sRT}, 7
    s_add_u32 s47, s{sT}, {WS_E}
    s_waitcnt lgkmcnt(0)
    s_load_dword s{sEP}, s[20:21], s47
    s_mov_b32 s{sWS}, s20
    s_mov_b32 s{sWS+1}, s21
    s_mov_b32 s{sWS+2}, 0x10000000
    s_mov_b32 s{sWS+3}, 0x20000
    s_lshl_b32 s47, s{sG}, 2
    s_add_u32 s62, s47, s{sT}
    s_add_u32 s62, s62, {WS_A}
    s_add_u32 s47, s47, s{sWAVE}
    s_add_u32 s47, s47, s{sT}
    s_lshl_b32 s{sDO}, s47, 10
    s_add_u32 s{sDO+1}, s{sDO}, 32768
    s_add_u32 s{sDO+2}, s{sDO}, 65536
    s_add_u32 s{sDO+3}, s{sDO}, 98304
    s_lshl_b32 s{sFO}, s{sRT}, 7
    s_and_b32 s47, s{sG}, 4
    s_add_u32 s{sFO}, s{sFO}, s47
    s_add_u32 s{sFO}, s{sFO}, s{sWAVE}
    s_lshl_b32 s{sFO}, s{sFO}, 2
    s_add_u32 s{sFO}, s{sFO}, {WS_FLAG}
    s_getreg_b32 s63, hwreg(HW_REG_XCC_ID, 0, 4)
    """)
    if cfg.ht and cfg.pf0 == -10:
        for q in range(4): e(f"buffer_store_dwordx4 {vr(VP+4,4)}, v{vSO}, {srd(sWS)}, s{sDO + q} offen {cfg.pf_flags}")
    if cfg.xap > 1:
        sh = {2: 5, 4: 4}[cfg.xap]
        e(f"v_lshrrev_b32 v1, {sh}, v0\nv_mov_b32 v2, v{VP+3}\nv_bfrev_b32 v3, 2")
        for k in range(cfg.xap):
            e(f"v_cmp_eq_u32 vcc, {k}, v1\nv_cndmask_b32 v{VP+3+k}, v3, v2, vcc")
    def tree(lab):
        e(f"""
        s_cmp_eq_u32 s{sS}, 1
        s_cbranch_scc1 {lab}1
        s_cmp_eq_u32 s{sS}, 2
        s_cbranch_scc1 {lab}2
        s_cmp_eq_u32 s{sS}, 3
        s_cbranch_scc1 {lab}3
        s_branch {lab}0
        """)
    e(f"""
    s_waitcnt vmcnt({4 if cfg.ht and cfg.pf0 == -10 else 0}) lgkmcnt(0)
    s_add_u32 s63, s63, s{sEP}
    s_add_u32 s63, s63, {K2}
    s_add_u32 s{sEP}, s{sEP}, {K1}
    v_mov_b32 v1, s63
    v_mov_b32 v{vFV}, s{sEP}
    s_cmp_eq_u32 s{sWAVE}, 0
    s_cbranch_scc0 L_noann
    buffer_store_dword v1, v{vFO}, {srd(sWS)}, s62 offen sc1
L_noann:
    """)
    if cfg.ht and cfg.pf0 == -11:
        for q in range(4): e(f"buffer_store_dwordx4 {vr(VP+4,4)}, v{vSO}, {srd(sWS)}, s{sDO + q} offen {cfg.pf_flags}")
    if cfg.warm and cfg.VS > 0:
        tree("L_w")
        e("L_wback:")
    def xreg(step, t): return BUF[step & 1] + 4*(t + 1)
    def wbase(step): return W15 if (step == cfg.R0 + 2) else BUF[step & 1] + 36
    def wreads(step):
        c, s = step >> 1, step & 1
        R = []
        for p in (1, 2, 0):
            for j in range(2):
                d = wbase(step) + 4*p + 2*j
                R.append(f"ds_read_b64_tr_b16 v[{d}:{d+1}], v{vWA + c % 3} offset:{s*12288 + p*1024 + j*512}")
        return R
    def xread(step, t):
        c, s = step >> 1, step & 1
        d = xreg(step, t)
        if t < 0: return f"ds_read_b128 v[{d}:{d+3}], v{vHA+s} offset:{c*1024}"
        return f"ds_read_b128 v[{d}:{d+3}], v{vXA+2*(c % 3)+s} offset:{t*2048}"
    def reads(step): return wreads(step) + [xread(step, t) for t in range(-1, 8)]
    def mf(step, t, j):
        a = (accQ, accK, accV)[j](t); w = vr(wbase(step) + 4*j, 4); x = vr(xreg(step, t), 4)
        c = "0" if step == 0 else vr(a, 4)
        ops = f"{x}, {w}" if j == 2 else f"{w}, {x}"
        return f"v_mfma_f32_16x16x32_bf16 {vr(a,4)}, {ops}, {c}"
    def mfmas(step):
        if cfg.order == 3:
            M = [mf(step, -1, 1)]
            for t in range(8):
                M += [mf(step, t, 1), mf(step, t, 0)] if t % 2 == 0 else [mf(step, t, 0), mf(step, t, 1)]
            M += [mf(step, t, 2) for t in range(-1, 8)]
        else:
            M = []
            for t in range(-1, 8):
                M += [mf(step, t, 1), mf(step, t, 2)] + ([mf(step, t, 0)] if t >= 0 else [])
        return M
    def kstep(step):
        e("s_waitcnt lgkmcnt(0)")
        if step & 1 and step < 15:
            e("s_barrier")
            if step in (7,): stamp()
        if step == 12 and not cfg.late:
            e(f"v_cmp_ne_u32 vcc, 0, v{VP}")
        M = mfmas(step); F = reads(step + 1)
        if step == 11 and not cfg.late:
            F = F + [f"v_mov_b32 v{VP+1}, 0", f"ds_read_b32 v{VP}, v{VP+1}"]
        if cfg.ht and cfg.pfi >= 0 and step == cfg.pf0:
            F = F + [""] * (cfg.pfi - len(F))
            for q in range(4):
                F = F + [f"buffer_store_dwordx4 {vr(VP+4,4)}, v{vSO}, {srd(sWS)}, s{sDO + q} offen {cfg.pf_flags}", ""]
            assert len(F) <= 27
        if cfg.ht and cfg.pfi < 0 and cfg.pf0 <= step < cfg.pf0 + 4:
            F = F + [f"buffer_store_dwordx4 {vr(VP+4,4)}, v{vSO}, {srd(sWS)}, s{sDO + step - cfg.pf0} offen {cfg.pf_flags}"]
        if cfg.xa >= 0:
            at = lambda k: f"buffer_atomic_or v{VP+2}, v{VP+3+k}, {srd(sWS)}, s{sDO} offen {cfg.xa_flags}"
            if cfg.xap > 1:
                for k in range(cfg.xap):
                    if step == cfg.xa + k * cfg.xas: F = F + [at(k)]
            elif cfg.xas == 0:
                if step == cfg.xa: F = F + [at(0)]
            else:
                for w in range(4):
                    if step == cfg.xa + w * cfg.xas:
                        F = F + [f"s_cmp_eq_u32 s{sWAVE}, {w}", f"s_cbranch_scc0 L_xa{w}\n{at(0)}\nL_xa{w}:"]
        for i, m in enumerate(M):
            e(m)
            if i < len(F): e(F[i])
    def Vp(t): return VP + 2*(7 - t)
    def region(s):
        stubs = []
        R0 = cfg.R0
        units = []
        first = 2*s - 1
        units.append((0, first, (1, 2)))
        for r in range(4):
            q = (r + s) & 3
            if q == 0 and s != 0: units.append((r, -1, (1, 2)))
            a, b = 2*q, 2*q + 1
            units.append((r, a, (1, 0, 2)))
            units.append((r, b, (0,) if b == first else (1, 0, 2)))
        I = []
        seen = set()
        for step in range(R0, 16):
            if step > R0:
                for k, x in enumerate(wreads(step)): I.append(Item(x, (-2, step, k)))
                tl = []
                for u, (r, t, js) in enumerate(units):
                    if t not in tl:
                        tl.append(t); I.append(Item(xread(step, t), (-1, u, step)))
            for u, (r, t, js) in enumerate(units):
                for k, j in enumerate(js):
                    rr = 0 if (js == (0,) and step + 2 <= 15) else r
                    I.append(Item(mf(step, t, j), (rr, 0, 0 if rr != r else u, step, k), tag=(f"g{r}" if step == 15 and u == len(units) - 1 and j == js[-1] else None)))
        if cfg.late:
            I.append(Item(f"v_mov_b32 v{vXA}, 0", (-3, 0)))
            I.append(Item(f"ds_read_b32 v{vXA+1}, v{vXA}", (-1, 99)))
            I.append(Item(f"v_cmp_ne_u32 vcc, 0, v{vXA+1}", (0, 0)))
        cv = lambda d, a, n: f"v_cvt_pk_bf16_f32 v{d}, v{a+2*n}, v{a+2*n+1}"
        kdone = set()
        prev_store = None; prev_flag = None
        for r in range(4):
            q = (r + s) & 3
            a, b = 2*q, 2*q + 1
            n = [0]
            def add(text, **kw):
                n[0] += 1
                it = Item(text, (r, 1, n[0]), **kw); I.append(it); return it
            for t in (a - 1, a, b):
                if t not in kdone:
                    kdone.add(t)
                    add(cv(accK(t), accK(t), 0)); add(cv(accK(t) + 1, accK(t), 1))
                    add(cv(Vp(t), accV(t), 0)); add(cv(Vp(t) + 1, accV(t), 1))
            XE = lambda t: BUF[0] + 4*(t + 1)
            XO = lambda t: BUF[1] + 4*(t + 1)
            for t in (a, b):
                Q = accQ(t)
                for k in range(2): add(f"v_cndmask_b32 v{accK(t)+2+k}, v{accK(t)+k}, v{accK(t-1)+k}, s[{sMH}:{sMH+1}]")
                add(cv(Q, Q, 0)); add(cv(Q + 1, Q, 1))
                for k in range(2): add(f"v_cndmask_b32 v{Q+2+k}, v{Q+k}, 0, s[{sMH}:{sMH+1}]")
                for k in range(2): add(f"v_cndmask_b32 v{Q+k}, 0, v{Q+k}, s[{sMH}:{sMH+1}]")
                add(f"v_mfma_f32_16x16x32_bf16 {vr(XE(t),4)}, {vr(accK(t),4)}, {vr(Q,4)}, {vr(vB0 if t == 0 else vB,4)}")
            for t in (a, b):
                S = XE(t)
                add(f"v_max3_f32 v{XO(t)}, v{S}, v{S+1}, v{S+2}")
                add(f"v_max_f32 v{XO(t)}, v{XO(t)}, v{S+3}")
            ma, mb = XO(a), XO(b)
            add(f"v_permlane32_swap_b32 v{ma}, v{mb}")
            add(f"v_max_f32 v{ma+1}, v{ma}, v{mb}")
            add(f"v_max_f32 v{ma}, v{ma}, v{mb}")
            add(f"v_permlane16_swap_b32 v{ma}, v{ma+1}")
            add(f"v_max_f32 v{ma}, v{ma}, v{ma+1}")
            add(f"v_mul_f32 v{mb}, s{sSC}, -v{ma}")
            add(f"v_mul_f32 v{ma}, s{sSC}, -v{ma}")
            add(f"v_permlane32_swap_b32 v{ma}, v{mb}")
            for t in (a, b):
                S = XE(t); P = accQ(t)
                for k in range(4): add(f"v_fma_f32 v{S+k}, v{S+k}, s{sSC}, v{XO(t)}")
                for k in range(4): add(f"v_exp_f32 v{S+k}, v{S+k}")
                add(cv(P, S, 0)); add(cv(P + 1, S, 1))
                for k in range(2): add(f"v_cndmask_b32 v{P+2+k}, 0, v{P+k}, s[{sPM}:{sPM+1}]")
                for k in range(2): add(f"v_cndmask_b32 v{P+k}, v{P+k}, 0, s[{sPM}:{sPM+1}]")
                add(f"v_mfma_f32_16x16x32_bf16 {vr(XO(t),4)}, {vr(vONE,4)}, {vr(P,4)}, 0")
                add(f"v_mfma_f32_16x16x32_bf16 {vr(accV(t),4)}, {vr(Vp(t),4)}, {vr(P,4)}, 0")
            OP = XE(a)
            for t in (a, b):
                O = accV(t)
                add(f"v_rcp_f32 v{XO(t)}, v{XO(t)}")
                for k in range(4): add(f"v_mul_f32 v{O+k}, v{O+k}, v{XO(t)}")
                add(cv(OP + 2*(t - a), O, 0)); add(cv(OP + 2*(t - a) + 1, O, 1))
            add(f"v_permlane16_swap_b32 v{OP}, v{OP+2}")
            add(f"v_permlane16_swap_b32 v{OP+1}, v{OP+3}")
            st = f"buffer_store_dwordx4 {vr(OP,4)}, v{vSO}, {srd(sWS)}, s{sDO+q} offen"
            fl = f"buffer_store_dword v{vFV}, v{vFO}, {srd(sWS)}, s{sFO} offen offset:{q*128 + r*32}"
            sx = ("\n" + stamp_text()) if cfg.stamps else ""
            if cfg.ht:
                add(f"v_min_u32 v{OP}, -2, v{OP}")
                t1, t2 = (f"{st} {cfg.fast_flags}", f"{fl} {cfg.ffl_flags}")
                if cfg.hbad: t1, t2 = t2 + "\n" + "s_nop 15\n" * cfg.hbad, t1
                w0 = "s_waitcnt vmcnt(0)\n" if r == 0 else ""
                store = add(f"{w0}s_cbranch_vccz L_ss{s}{r}\n{t1}\n{t2}\nL_sb{s}{r}:{sx}", tag=f"st{r}", urgent=True,
                            after=[(prev_store, 0)] if prev_store else None)
                stubs.append(f"L_ss{s}{r}:\n{st} sc1\ns_waitcnt vmcnt(0)\n{fl} sc1\ns_branch L_sb{s}{r}")
                if r == cfg.b8 or r == cfg.b9: add("s_barrier", after=[(store, 0)], urgent=True)
                prev_store = store
                continue
            store = add(f"s_cbranch_vccz L_ss{s}{r}\n{st} {cfg.fast_flags}\nL_sb{s}{r}:{sx}", tag=f"st{r}", urgent=True,
                        after=[(prev_store, 0)] if prev_store else None)
            stubs.append(f"L_ss{s}{r}:\n{st} sc1\ns_branch L_sb{s}{r}")
            if r == cfg.b8 or r == cfg.b9: add("s_barrier", after=[(store, 0)], urgent=True)
            flag = add(f"s_cbranch_vccz L_fs{s}{r}\n{fl} {cfg.ffl_flags}\nL_fb{s}{r}:", tag=f"fl{r}", urgent=True, waitvm=store,
                       after=[(store, cfg.LF)] + ([(prev_flag, 0)] if prev_flag else []))
            stubs.append(f"L_fs{s}{r}:\n{fl} sc1\ns_branch L_fb{s}{r}")
            prev_store = store; prev_flag = flag
        e("s_waitcnt lgkmcnt(0)")
        if R0 & 1 and R0 < 15: e("s_barrier")
        stamp()
        if cfg.prio: e(f"s_setprio {cfg.prio}")
        out, t = schedule(I, mfma_first=bool(cfg.mf), ds_lat=cfg.dslat, verbose=cfg.verbose)
        for x in out: e(x)
        return stubs
    stamp()
    if cfg.VS > 0:
        e("s_barrier")
        stamp()
        for x in reads(0): e(x)
        for step in range(cfg.VS): kstep(step)
    tree("L_v")
    n0 = nst[0]
    for s in range(4):
        nst[0] = n0
        e(f".p2align 6\nL_w{s}:")
        e("s_branch L_wback\ns_nop 0" if cfg.warm and cfg.VS > 0 else "s_nop 0\ns_nop 0")
        e(f"L_v{s}:")
        if cfg.VS == 0:
            e("s_barrier")
            stamp()
            for x in reads(0): e(x)
        for step in range(cfg.VS, cfg.R0): kstep(step)
        stubs = region(s)
        stamp()
        dump_stamps(nst[0])
        e("s_endpgm")
        for x in stubs: e(x)
        e(f"L_ve{s}:")
    body, added = hz.fix("\n".join(L))
    return body, added

def finish(body, VSZ):
    K = NAME + "_kernel"
    for s in range(4):
        body = body.replace(f"L_ve{s}:", f"L_ve{s}:\n.fill ({VSZ}-(L_ve{s}-L_w{s}))/4, 4, 0xbf800000")
    s = HDR.format(launch="; @launch grid=(256,1,1) block=(512,1,1) lds=163840") + kernel_head(K) + body + "\n"
    s += ".fill 64, 4, 0xbf800000\n"
    s += kernel_desc(K, 256, 256, 102)
    return s

def build(cfg):
    import subprocess, re, os
    body, added = gen(cfg)
    tmp = f"g3_{os.getpid()}"
    open(tmp + ".s", "w").write(finish(body, 0).replace(".fill (0-", ".fill 0*(0-"))
    subprocess.run(["clang", "-x", "assembler", "-target", "amdgcn-amd-amdhsa", "-mcpu=gfx950", "-c", tmp + ".s", "-o", tmp + ".o"], check=True)
    sy = subprocess.run(["llvm-objdump", "-t", tmp + ".o"], capture_output=True, text=True).stdout
    A = {l.split()[-1]: int(l.split()[0], 16) for l in sy.strip().split("\n") if re.match(r"^[0-9a-f]{16} ", l)}
    sz = max(A[f"L_ve{s}"] - A[f"L_w{s}"] for s in range(4))
    sz = (sz + 63) // 64 * 64
    return finish(body, sz), added, (A["L_compute"], A["L_w0"], sz)

if __name__ == "__main__":
    kw = {}
    for a in sys.argv[2:]:
        k, v = a.split("=")
        kw[k] = v.replace("+", " ") if k.endswith("flags") or k.startswith("dma_") else int(v, 0)
    s, added, info = build(Cfg(**kw))
    open(sys.argv[1], "w").write(s)
    print("nops added", added, "sizes", info)
```

```python
import sys, struct
from asmlib import *
import hz
from sched import Item, schedule

def f2u(f): return struct.unpack("<I", struct.pack("<f", f))[0]

class Cfg:
    stamps = 0
    fast_flags = "nt"
    ffl_flags = ""
    ld_flags = "sc1"
    pt_flags = "sc1 nt"
    out_flags = "nt"
    dma_x = "nt"
    dma_w = ""
    order = 3
    hzero = 1
    tabA = 0x67452310
    tabB = 0x75634021
    R0 = 13
    VS = 13
    warm = 1
    LF = 600
    prio = 3
    lprio = 0
    nofast = 0
    kp = 0
    xwA = 8
    xwB = 8
    xoA = 8
    xoB = 8
    nw = 0
    ac = 5
    b8 = -1
    wsh = 0
    diag = 0
    di = -1
    dc = -1
    dm = 4
    ht = 0
    pf0 = 2
    pf_flags = 'nt'
    pfi = -1
    hbad = 0
    nw1 = 0
    b9 = -1
    g3 = 1
    ap = 8
    lk = 10
    g2 = 1
    lp2 = 0
    nw0 = 0
    xa = -1
    xas = 0
    xap = 1
    xa_flags = ''
    sm = 0
    su = -1
    late = 1
    mf = 1
    dslat = 128
    verbose = 0
    def __init__(self, **kw):
        for k, v in kw.items():
            assert hasattr(self, k), k
            setattr(self, k, v)

HALO = 0; SLOT0 = 8192; SLOTSZ = 40960; WO_L = 98304; STAGE = 8192
WS_FLAG = 8 << 20; WS_E = WS_FLAG + 65536; WS_A = WS_FLAG + 131072; WS_STAMP = 16 << 20
K1 = 0x9e3779b9; K2 = 0x51ed270b
sX, sW, sWO, sOUT, sWS = 24, 28, 32, 36, 40
sEP = 44
sWAVE, sRT, sG, sBR, sPAR, sSEG, sCLS = 48, 49, 50, 51, 52, 53, 54
sT = 55
sST = 64
NST = 12
def srd(r): return f"s[{r}:{r+3}]"
def vr(a, n): return f"v[{a}:{a+n-1}]" if n > 1 else f"v{a}"

def gen(cfg):
    K = NAME + "_kernel"
    L = []
    def e(s):
        for ln in s.strip("\n").split("\n"):
            if ln.strip(): L.append(ln.strip() if ln.strip().endswith(":") else "    " + ln.strip())
    nst = [0]
    def stamp_text():
        i = nst[0]; nst[0] += 1
        assert i < NST
        return f"{'s_memrealtime' if cfg.stamps == 2 else 's_memtime'} s[{sST+2*i}:{sST+2*i+1}]"
    def stamp():
        if cfg.stamps: e(stamp_text())
    dcount = [0]
    def dump_stamps(n, ld=False):
        if not cfg.stamps: return
        if cfg.di >= 0 or cfg.dc >= 0:
            i = cfg.di if ld else cfg.dc
            if i < 0: return
            dcount[0] += 1
            e(f"""
            s_waitcnt vmcnt(0) lgkmcnt(0)
            s_sub_u32 s92, s{sST+2*i}, s{sST}
            s_mul_i32 s92, s92, {cfg.dm}
            s_min_u32 s92, s92, 40000
            s_add_u32 s92, s92, 4000
L_dd{dcount[0]}:
            s_memrealtime s[96:97]
            s_waitcnt lgkmcnt(0)
            s_sub_u32 s96, s96, s{sST}
            s_cmp_lt_u32 s96, s92
            s_cbranch_scc1 L_dd{dcount[0]}
            """)
            return
        e("s_memrealtime s[96:97]\ns_waitcnt lgkmcnt(0)")
        e("v_mov_b32 v16, s98\nv_mov_b32 v17, s96")
        e(f"s_getreg_b32 s{sT}, hwreg(HW_REG_XCC_ID, 0, 4)\nv_mov_b32 v18, s{sT}")
        for i in range(1, 14):
            if i < n:
                e(f"s_sub_u32 s{sT}, s{sST+2*i}, s{sST}\nv_mov_b32 v{18+i}, s{sT}")
            elif i == 13 and ld:
                e(f"s_sub_u32 s{sT}, 0x10000000, s47\nv_mov_b32 v{18+i}, s{sT}")
            else:
                e(f"v_mov_b32 v{18+i}, 0")
        e(f"""s_lshl_b32 s{sT}, s2, 3
        s_add_u32 s{sT}, s{sT}, s{sWAVE}
        s_lshl_b32 s{sT}, s{sT}, 6
        s_add_u32 s{sT}, s{sT}, {WS_STAMP}
        s_mov_b64 exec, 1
        v_mov_b32 v1, 0""")
        for i in range(4):
            e(f"buffer_store_dwordx4 v[{16+4*i}:{19+4*i}], v1, {srd(sWS)}, s{sT} offen offset:{16*i}")
        e("s_waitcnt vmcnt(0)")

    stamp()
    if cfg.stamps: e("s_memrealtime s[98:99]")
    e(f"""
    s_cmp_ge_u32 s2, 256
    s_cbranch_scc1 L_end
    s_load_dwordx16 s[4:19], s[0:1], 0
    s_load_dwordx2 s[20:21], s[0:1], 64
    s_getpc_b64 s[22:23]
L_pc:
    s_bfe_u32 s{sT+2}, s2, 0x20003
    s_mul_i32 s{sT+2}, s{sT+2}, L_w1-L_w0
    v_lshlrev_b32 v1, 6, v0
    v_min_u32 v1, L_w1-L_pc, v1
    v_mov_b32 v2, s{sT+2}
    v_cmp_lt_u32 vcc, L_w0-L_pc, v1
    v_lshrrev_b32 v3, 6, v0
    s_and_b32 s{sT}, s2, 7
    v_cndmask_b32 v2, 0, v2, vcc
    v_add_u32 v1, v1, v2
    global_load_dword v255, v1, s[22:23]
    s_lshr_b32 s{sT+1}, s2, 3
    v_readfirstlane_b32 s{sWAVE}, v3
    v_and_b32 v0, 63, v0
    s_lshr_b32 s{sRT}, s{sT+1}, 3
    s_lshl_b32 s{sT}, s{sT}, 2
    s_add_u32 s{sRT}, s{sRT}, s{sT}
    s_and_b32 s{sG}, s{sT+1}, 7
    s_lshr_b32 s{sBR}, s{sRT}, 4
    s_bfe_u32 s{sPAR}, s{sRT}, 0x10003
    s_and_b32 s{sSEG}, s{sRT}, 7
    s_cmp_ge_u32 s{sWAVE}, 4
    s_cbranch_scc0 L_compute
    """)
    sLW, sXB, sWB, sKO, sWOFF, sHOFF = sT, sT+1, sT+2, sT+3, sT+4, sT+5
    vX, vW, vH = 8, 12, 14
    sMX, sMW, sA, sB, sHM = 88, 92, 94, 95, 100
    if cfg.lprio: e(f"s_setprio {cfg.lprio}")
    e(f"""
    s_add_u32 s{sCLS}, s{sRT}, s{sG}
    s_and_b32 s{sCLS}, s{sCLS}, 1
    s_lshr_b32 s{sA}, s{sG}, 1
    s_bfe_u32 s{sB}, s{sRT}, 0x10001
    s_cmp_eq_u32 s{sCLS}, 0
    s_mov_b32 s{sCLS}, {cfg.tabA}
    s_cselect_b32 s{sCLS}, s{sCLS}, {cfg.tabB}
    s_sub_u32 s{sLW}, s{sWAVE}, 4
    v_lshrrev_b32 v3, 3, v0
    v_and_b32 v4, 7, v0
    v_lshrrev_b32 v5, 4, v0
    v_xor_b32 v6, v4, v5
    v_lshlrev_b32 v6, 4, v6
    v_lshl_add_u32 v6, v3, 11, v6
    s_lshl_b32 s{sT+6}, s{sSEG}, 18
    s_lshl_b32 s{sT+7}, s{sPAR}, 10
    s_add_u32 s{sT+6}, s{sT+6}, s{sT+7}
    s_sub_u32 s{sHOFF}, s{sT+6}, 16384
    s_cmp_eq_u32 s{sSEG}, 0
    s_cselect_b32 s{sHOFF}, 0x40000000, s{sHOFF}
    s_lshl_b32 s{sT+7}, s{sLW}, 16
    s_add_u32 s{sT+6}, s{sT+6}, s{sT+7}
    s_lshl_b32 s{sXB}, s{sLW}, 12
    """)
    for j in range(4):
        e(f"""
        s_add_u32 s{sKO}, s{sA}, {j}
        s_and_b32 s{sKO}, s{sKO}, 3
        s_lshl_b32 s{sMX+j}, s{sKO}, 10
        s_add_u32 s{sMX+j}, s{sMX+j}, s{sXB}
        s_and_b32 s{sT+7}, s{sKO}, 1
        s_lshl_b32 s{sT+7}, s{sT+7}, 6
        s_lshl_b32 s{sKO}, s{sKO}, 14
        s_add_u32 s{sKO}, s{sKO}, s{sT+6}
        v_xor_b32 v{vX+j}, s{sT+7}, v6
        v_add_u32 v{vX+j}, s{sKO}, v{vX+j}
        """)
    e(f"""
    v_lshlrev_b32 v7, 1, v5
    v_xor_b32 v6, v4, v7
    v_lshlrev_b32 v6, 4, v6
    v_lshl_add_u32 v6, v3, 11, v6
    v_add_u32 v{vH}, s{sHOFF}, v6
    v_and_b32 v7, 2, v7
    v_xor_b32 v7, v7, v4
    v_lshlrev_b32 v7, 4, v7
    v_mul_u32_u24 v6, 3072, v3
    v_add_u32 v7, v7, v6
    s_mul_i32 s{sT+6}, s{sLW}, 49152
    s_lshl_b32 s{sT+7}, s{sG}, 7
    s_add_u32 s{sT+6}, s{sT+6}, s{sT+7}
    s_mul_i32 s{sWB}, s{sLW}, 6144
    """)
    for m in range(2):
        e(f"""
        s_xor_b32 s{sKO}, s{sB}, {m}
        s_mul_i32 s{sMW+m}, s{sKO}, 3072
        s_add_u32 s{sMW+m}, s{sMW+m}, s{sWB}
        s_lshl_b32 s{sT+7}, s{sKO}, 6
        s_mul_i32 s{sKO}, s{sKO}, 24576
        s_add_u32 s{sKO}, s{sKO}, s{sT+6}
        v_xor_b32 v{vW+m}, s{sT+7}, v7
        v_add_u32 v{vW+m}, s{sKO}, v{vW+m}
        """)
    e(f"""
    s_lshl_b32 s{sT+6}, s{sLW}, 4
    s_lshl_b64 s[{sHM}:{sHM+1}], 0xffff, s{sT+6}
    s_waitcnt lgkmcnt(0)
    """)
    stamp()
    e(f"""
    s_cmp_eq_u32 s{sBR}, 0
    s_cselect_b32 s{sX}, s4, s10
    s_cselect_b32 s{sX+1}, s5, s11
    s_mov_b32 s{sX+2}, 0x200000
    s_mov_b32 s{sX+3}, 0x20000
    s_cselect_b32 s{sW}, s6, s12
    s_cselect_b32 s{sW+1}, s7, s13
    s_mov_b32 s{sW+2}, 0x180000
    s_mov_b32 s{sW+3}, 0x20000
    s_cselect_b32 s{sWO}, s8, s14
    s_cselect_b32 s{sWO+1}, s9, s15
    s_mov_b32 s{sWO+2}, 0x80000
    """)
    def issue(c):
        slot = SLOT0 + (c % 3) * SLOTSZ
        e(f"""
        s_bfe_u32 s{sT+6}, s{sCLS}, {0x30000 + 4*c}
        s_add_u32 m0, s{sMW}, {slot + 16384}
        s_mul_i32 s{sWOFF}, s{sT+6}, 196608
        s_lshl_b32 s{sKO}, s{sT+6}, 7
        """)
        def wl(m):
            for p in range(3):
                e(f"buffer_load_dwordx4 v{vW+m}, {srd(sW)}, s{sWOFF} offen offset:{1024*p} {cfg.dma_w} lds")
        def xl(j):
            e(f"s_add_u32 m0, s{sMX+j}, {slot}")
            e(f"buffer_load_dwordx4 v{vX+j}, {srd(sX)}, s{sKO} offen {cfg.dma_x} lds")
        wl(0); xl(0)
        e(f"s_mov_b32 m0, {HALO + c*1024}\ns_mov_b64 exec, s[{sHM}:{sHM+1}]")
        e(f"buffer_load_dwordx4 v{vH}, {srd(sX)}, s{sKO} offen {cfg.dma_x} lds")
        e(f"s_add_u32 m0, s{sMW+1}, {slot + 16384}\ns_mov_b64 exec, -1")
        wl(1); xl(1); xl(2); xl(3)
    OF = 0; ACC = 128; WF = 160
    vA = 224
    vO0, vO1, vPO, vP = 232, 233, 234, 235
    vSW, vSR, vOA = 236, 240, 241
    vD = 242
    vWO = 246
    sSO = 12
    sFL, sOO, sSP = 45, 46, 47
    sAV = 18
    issue(0)
    e(f"""
    s_mov_b32 s{sWO+3}, 0x20000
    s_mov_b32 s{sWS}, s20
    s_mov_b32 s{sWS+1}, s21
    s_mov_b32 s{sWS+2}, 0x10000000
    s_mov_b32 s{sWS+3}, 0x20000
    s_mov_b32 s{sOUT}, s16
    s_mov_b32 s{sOUT+1}, s17
    s_mov_b32 s{sOUT+2}, 0x400000
    s_mov_b32 s{sOUT+3}, 0x20000
    """)
    vXw, vXo = 250, 252
    sXw, sXo = 16, 17
    e(f"""
    v_lshlrev_b32 v{vXw}, 6, v0
    v_and_b32 v1, 15, v0
    v_lshlrev_b32 v1, 6, v1
    v_lshrrev_b32 v2, 4, v0
    v_lshl_add_u32 v{vXo}, v2, 15, v1
    s_cmp_eq_u32 s{sCLS}, {cfg.tabA}
    s_cselect_b32 s{sT+6}, 0, 0x40000000
    s_cselect_b32 s{sT+7}, 0x40000000, 0
    v_add_u32 v{vXw+1}, s{sT+7}, v{vXw}
    v_add_u32 v{vXo+1}, s{sT+7}, v{vXo}
    v_add_u32 v{vXw}, s{sT+6}, v{vXw}
    v_add_u32 v{vXo}, s{sT+6}, v{vXo}
    s_and_b32 s{sXw}, s{sRT}, 3
    s_lshl_b32 s{sXw}, s{sXw}, 3
    s_add_u32 s{sXw}, s{sXw}, s{sG}
    s_lshl_b32 s{sXw}, s{sXw}, 2
    s_add_u32 s{sXw}, s{sXw}, s{sLW}
    s_lshl_b32 s{sXw}, s{sXw}, 12
    s_lshl_b32 s{sXo}, s{sRT}, 5
    s_add_u32 s{sXo}, s{sXo}, s{sG}
    s_lshl_b32 s{sXo}, s{sXo}, 2
    s_add_u32 s{sXo}, s{sXo}, s{sLW}
    s_lshl_b32 s{sXo}, s{sXo}, 10
    """)
    if cfg.xwA == cfg.xwB: e(f"v_min_u32 v{vXw}, v{vXw}, v{vXw+1}")
    if cfg.xoA == cfg.xoB: e(f"v_min_u32 v{vXo}, v{vXo}, v{vXo+1}")
    def acheck():
        if cfg.diag:
            e(f"""
            s_mov_b32 s3, 0
            s_mov_b32 s{sSP}, 100000
            s_getreg_b32 s{sWOFF}, hwreg(HW_REG_XCC_ID, 0, 4)
            s_sub_u32 s{sWOFF}, s{sAV}, s{sWOFF}
L_dg:
            s_waitcnt lgkmcnt(0)
            s_mov_b32 s{sKO}, 0
            """)
            for i in range(8):
                e(f"s_sub_u32 s{sT+7}, s{4+i}, s{sWOFF}\ns_or_b32 s{sKO}, s{sKO}, s{sT+7}")
            e(f"""
            s_cmp_lt_u32 s{sKO}, 16
            s_cbranch_scc1 L_dgx
            s_mov_b32 s3, 800
            s_sub_u32 s{sSP}, s{sSP}, 1
            s_cbranch_scc1 L_dgx
            s_add_u32 s{sT+6}, s19, {WS_A}
            s_load_dwordx8 s[4:11], s[20:21], s{sT+6} glc
            s_branch L_dg
L_dgx:
            """)
        e(f"""
        s_mov_b32 s19, s{sAV}
        s_waitcnt lgkmcnt(0)
        s_xor_b64 s[4:5], s[4:5], s[18:19]
        s_xor_b64 s[6:7], s[6:7], s[18:19]
        s_xor_b64 s[8:9], s[8:9], s[18:19]
        s_xor_b64 s[10:11], s[10:11], s[18:19]
        s_or_b64 s[4:5], s[4:5], s[6:7]
        s_or_b64 s[8:9], s[8:9], s[10:11]
        s_or_b64 s[4:5], s[4:5], s[8:9]
        s_cselect_b32 s4, 0, {0 if cfg.nofast else 1}
        {"s_cselect_b32 s5, 1600, 0" if cfg.diag else ""}
        {"s_add_u32 s3, s3, s5" if cfg.diag else ""}
        v_mov_b32 v1, 0
        v_mov_b32 v2, s4
        ds_write_b32 v1, v2
        """)
        if cfg.b8 < 0:
            e(f"s_lshl_b32 s4, s{sLW}, 2\nv_mov_b32 v3, s4\nds_write_b32 v3, v1 offset:16")
    def xat(pos):
        n = 0
        for (pa, pb, v, sr, so, fl) in ((cfg.xwA, cfg.xwB, vXw, sWO, sXw, ""), (cfg.xoA, cfg.xoB, vXo, sWS, sXo, cfg.pt_flags)):
            if pa == pos:
                e(f"buffer_load_dword v{v}, v{v}, {srd(sr)}, s{so} offen {fl}"); n += 1
            elif pb == pos:
                e(f"buffer_load_dword v{v+1}, v{v+1}, {srd(sr)}, s{so} offen {fl}"); n += 1
        return n
    for c in range(8):
        nX = 0
        if c + 1 <= 7 and not (c == 0 and cfg.su < 0):
            nX = xat(c + 1); issue(c + 1)
            if c == 6: nX7 = xat(10); nX += nX7
        if c == 0:
            e(f"""
            s_lshl_b32 s19, s{sRT}, 7
            s_add_u32 s{sT+6}, s19, {WS_E}
            s_load_dword s{sEP}, s[20:21], s{sT+6}
            """)
        if c == max(cfg.su, 0):
            e(f"""
            v_and_b32 v1, 1, v0
            v_bfe_u32 v2, v0, 1, 1
            v_lshl_add_u32 v1, v1, 1, v2
            v_bfe_u32 v2, v0, 4, 1
            v_lshl_add_u32 v1, v2, 2, v1
            v_lshlrev_b32 v1, 3, v1
            v_bfe_u32 v2, v0, 3, 1
            v_lshl_add_u32 v1, v2, 6, v1
            v_bfe_u32 v2, v0, 2, 2
            v_lshl_add_u32 v1, v2, 7, v1
            v_lshrrev_b32 v2, 5, v0
            v_lshl_add_u32 v1, v2, 10, v1
            s_lshl_b32 s{sOO}, s{sRT}, 2
            s_add_u32 s{sOO}, s{sOO}, s{sLW}
            s_lshl_b32 s{sFL}, s{sOO}, 7
            s_add_u32 s{sFL}, s{sFL}, {WS_FLAG}
            s_lshl_b32 s{sOO}, s{sOO}, 15
            """)
            for r in range(4):
                e(f"""
                s_sub_u32 s{sT+6}, s{sLW}, {r}
                s_and_b32 s{sT+6}, s{sT+6}, 3
                s_lshl_b32 s{sT+7}, s{sT+6}, 12
                s_add_u32 s{sSO+r}, s{sT+7}, s{sOO}
                s_lshl_b32 s{sT+6}, s{sT+6}, 13
                s_add_u32 s{sT+6}, s{sT+6}, {WO_L}
                v_add_u32 v{vA+2*r}, s{sT+6}, v1
                v_xor_b32 v{vA+2*r+1}, 64, v{vA+2*r}
                """)
        if c == max(cfg.su, 0) * 2:
            e(f"""
            v_lshlrev_b32 v{vO0}, 4, v0
            v_add_u32 v{vO1}, 16384, v{vO0}
            v_and_b32 v1, 7, v0
            v_lshlrev_b32 v{vPO}, 2, v1
            v_lshrrev_b32 v2, 5, v0
            v_xor_b32 v1, v1, v2
            v_lshlrev_b32 v1, 4, v1
            v_and_b32 v2, 31, v0
            v_lshl_add_u32 v1, v2, 7, v1
            s_lshl_b32 s{sT+6}, s{sLW}, 12
            s_add_u32 s{sT+6}, s{sT+6}, {STAGE}
            v_add_u32 v{vSW}, s{sT+6}, v1
            v_xor_b32 v{vSW+1}, 32, v{vSW}
            v_xor_b32 v{vSW+2}, 64, v{vSW}
            v_xor_b32 v{vSW+3}, 96, v{vSW}
            v_add_u32 v{vSR}, s{sT+6}, v{vO0}
            v_lshrrev_b32 v2, 3, v0
            v_and_b32 v1, 7, v0
            v_xor_b32 v1, v1, v2
            v_lshlrev_b32 v1, 4, v1
            v_lshl_add_u32 v{vOA}, v2, 12, v1
            s_lshl_b32 s{sOO}, s{sSEG}, 19
            s_lshl_b32 s{sT+6}, s{sLW}, 17
            s_add_u32 s{sOO}, s{sOO}, s{sT+6}
            s_lshl_b32 s{sT+6}, s{sPAR}, 11
            s_add_u32 s{sOO}, s{sOO}, s{sT+6}
            s_lshl_b32 s{sT+6}, s{sBR}, 10
            s_add_u32 s{sOO}, s{sOO}, s{sT+6}
            s_lshl_b32 s{sT+6}, s{sG}, 7
            s_add_u32 s{sOO}, s{sOO}, s{sT+6}
            """)
        if c == max(cfg.su, 0) * 3:
            e(f"""
            v_lshrrev_b32 v3, 3, v0
            v_and_b32 v4, 7, v0
            v_lshrrev_b32 v5, 2, v0
            v_and_b32 v5, 4, v5
            v_xor_b32 v4, v4, v5
            v_lshlrev_b32 v4, 4, v4
            v_lshl_add_u32 v4, v3, 10, v4
            s_lshl_b32 s{sT+6}, s{sLW}, 17
            s_lshl_b32 s{sT+7}, s{sG}, 7
            s_add_u32 s{sT+6}, s{sT+6}, s{sT+7}
            v_add_u32 v{vWO}, s{sT+6}, v4
            v_add_u32 v{vWO+1}, 7168, v{vWO}
            v_add_u32 v{vWO+2}, 14336, v{vWO}
            v_add_u32 v{vWO+3}, 21504, v{vWO}
            """)
        if c == 0 and cfg.su < 0: issue(1)
        if c == 3:
            e(f"""
            s_getreg_b32 s{sAV}, hwreg(HW_REG_XCC_ID, 0, 4)
            s_waitcnt lgkmcnt(0)
            s_add_u32 s{sAV}, s{sAV}, s{sEP}
            s_add_u32 s{sAV}, s{sAV}, {K2}
            s_add_u32 s{sEP}, s{sEP}, {K1}
            """)
        if c == cfg.ac:
            e(f"""
            s_add_u32 s{sT+6}, s19, {WS_A}
            s_load_dwordx8 s[4:11], s[20:21], s{sT+6} glc
            """)
        if c == 6:
            if not cfg.late: acheck()
            e(f"""
            s_lshl_b32 s{sXB}, s{sLW}, 14
            s_waitcnt vmcnt({11 + nX}) {'' if cfg.late else 'lgkmcnt(0)'}
            """)
            nX7 += xat(11)
            e("s_barrier")
            stamp()
        elif c == 7:
            nX = xat(8) + nX7
            def wo(i):
                gq, j = i >> 2, i & 3
                if j == 0 and not cfg.wsh: e(f"s_add_u32 m0, s{sXB}, {WO_L + 4096*gq}\ns_mov_b32 s{sKO}, {32768*gq}")
                if j == 0 and cfg.wsh:
                    e(f"""
                    s_add_u32 s{sKO}, s{sRT}, {gq}
                    s_and_b32 s{sKO}, s{sKO}, 3
                    s_lshl_b32 s{sWOFF}, s{sKO}, 12
                    s_add_u32 s{sWOFF}, s{sWOFF}, s{sXB}
                    s_add_u32 m0, s{sWOFF}, {WO_L}
                    s_lshl_b32 s{sKO}, s{sKO}, 15
                    """)
                e(f"buffer_load_dwordx4 v{vWO+j}, {srd(sWO)}, s{sKO} offen offset:{1024*j} lds")
            for i in range(cfg.nw0): wo(i)
            e(f"s_waitcnt vmcnt({nX + cfg.nw0})")
            if cfg.sm == 1: stamp()
            for i in range(cfg.nw0, cfg.nw): wo(i)
            if cfg.late:
                acheck(); e("s_waitcnt lgkmcnt(0)")
            if cfg.sm == 1: stamp()
            e("s_barrier")
            stamp()
            for i in range(cfg.nw, cfg.nw1): wo(i)
            if cfg.b9 >= 0: e("s_barrier")
            for i in range(max(cfg.nw, cfg.nw1), 16): wo(i)
            nX = xat(9)
            e(f"buffer_load_dword v{vP}, v{vPO}, {srd(sWS)}, s{sFL} offen sc1")
            e(f"s_mov_b32 s{sSP}, {0x10000000 if cfg.stamps else 0x200000}\ns_waitcnt vmcnt({nX+1})")
        else:
            e(f"s_waitcnt vmcnt({11+nX})\ns_barrier")
            if c == 0: stamp()
    stamp()
    if cfg.lp2: e(f"s_setprio {cfg.lp2}")
    if cfg.b8 < 0: e("v_mov_b32 v2, 1\nds_write_b32 v3, v2 offset:16")
    def lsync():
        if cfg.b8 >= 0: e("s_barrier"); return
        e(f"""
L_ls:
        ds_read_b128 v[{WF}:{WF+3}], v{vD} offset:16
        s_sub_u32 s{sSP}, s{sSP}, 1
        s_cmp_lt_i32 s{sSP}, 0
        s_cbranch_scc1 L_lsx
        s_waitcnt lgkmcnt(0)
        v_and_b32 v{WF}, v{WF}, v{WF+1}
        v_and_b32 v{WF+2}, v{WF+2}, v{WF+3}
        v_and_b32 v{WF}, v{WF}, v{WF+2}
        v_cmp_eq_u32 vcc, 0, v{WF}
        s_cbranch_vccnz L_ls
L_lsx:
        """)
    e(f"v_mov_b32 v{vD}, 0")
    def wrd(H):
        r, i = H >> 3, H & 7
        R = []
        for m in range(2):
            for j in range(2):
                d = WF + 8*i + 4*m + 2*j
                R.append(f"ds_read_b64_tr_b16 v[{d}:{d+1}], v{vA+2*r+m} offset:{(i>>2)*32768 + (i&3)*2048 + j*512}")
        return R
    def oload(H):
        r, i = H >> 3, H & 7
        return f"buffer_load_dwordx4 {vr(OF+4*H,4)}, v{vO0 + (i>>2)}, {srd(sWS)}, s{sSO+r} offen offset:{(i&3)*1024} {cfg.ld_flags}"
    def poll(r): return f"buffer_load_dword v{vP}, v{vPO}, {srd(sWS)}, s{sFL} offen offset:{32*r} sc1"
    vq = []
    dq = []
    def ivm(tag, text): e(text); vq.append(tag)
    def ids(tag, text):
        if len(dq) >= 14:
            e(f"s_waitcnt lgkmcnt({cfg.lk})"); del dq[:len(dq) - cfg.lk]
        e(text); dq.append(tag)
    def wait(vt=None, dt=None):
        parts = []
        if vt is not None and vt in vq:
            k = len(vq) - 1 - max(i for i, t in enumerate(vq) if t == vt)
            parts.append(f"vmcnt({k})"); del vq[:len(vq) - k]
        if dt is not None and dt in dq:
            k = len(dq) - 1 - max(i for i, t in enumerate(dq) if t == dt)
            k2 = min(k, 15)
            parts.append(f"lgkmcnt({k2})"); del dq[:len(dq) - k2]
        if parts: e("s_waitcnt " + " ".join(parts))
    def check(r):
        wait(vt=("P", r))
        e(f"""
L_chk{r}:
        v_cmp_ne_u32 vcc, s{sEP}, v{vP}
        s_cbranch_vccnz L_spin{r}
L_ok{r}:
        """)
    def stage_loads(r):
        T = [(("L", 8*r + i), oload(8*r + i)) for i in range(8)]
        if r < 3: T.insert(cfg.kp, (("P", r + 1), poll(r + 1)))
        return T
    if cfg.g2 == 0:
        lsync()
        ivm(("P", 0), poll(0))
        for H in range(7):
            for x in wrd(H): ids(H, x)
        check(0)
        stamp()
        for t, x in stage_loads(0): ivm(t, x)
    else:
        vq.append(("P", 0))
        e("L_again:")
        check(0)
        stamp()
        for t, x in stage_loads(0): ivm(t, x)
        lsync()
        for H in range(7):
            for x in wrd(H): ids(H, x)
    alts = []
    def heads(r, pending, per):
        for i in range(8):
            H = 8*r + i
            wait(vt=("L", H), dt=H)
            for m in range(2):
                cc = "0" if H == 0 else vr(ACC+16*m, 16)
                e(f"v_mfma_f32_32x32x16_bf16 {vr(ACC+16*m,16)}, {vr(WF+8*i+4*m,4)}, {vr(OF+4*H,4)}, {cc}")
                if cfg.ht and m == 0 and i & 1:
                    c3 = "0" if H == 1 else f"v{vD+1}"
                    e(f"v_max3_u32 v{vD+1}, v{OF+4*H-4}, v{OF+4*H}, {c3}")
                if cfg.ht and m == 1 and H == 31:
                    e(f"v_cmp_eq_u32 vcc, -1, v{vD+1}\ns_cbranch_vccnz L_redo\nL_redox:")
                for _ in range(per[2*i + m]):
                    if pending:
                        t, x = pending.pop(0); ivm(t, x)
                if H + 7 < 32:
                    for x in wrd(H + 7)[2*m:2*m+2]: ids(H + 7, x)
        assert not pending
    if cfg.g3:
        assert cfg.kp == 0
        for r in range(4):
            if r < 3:
                wait(vt=("P", r + 1))
                e(f"v_cmp_ne_u32 vcc, s{sEP}, v{vP}\ns_cbranch_vccnz L_alt{r}")
                v0, d0 = list(vq), list(dq)
                pend = stage_loads(r + 1)
                t, x = pend.pop(0); ivm(t, x)
                heads(r, pend, [[1, 0]*8, [1, 1, 1, 0]*4, [1]*16][cfg.g3 - 1])
                e(f"L_join{r}:")
                if cfg.sm == 0 or r == 2: stamp()
                v1, d1 = list(vq), list(dq)
                mark = len(L)
                vq[:] = v0; dq[:] = d0
                e(f"L_alt{r}:")
                if cfg.stamps: e(f"s_sub_u32 s{sSP}, s{sSP}, {0x100 << (4*r)}")
                heads(r, [(("P", r + 1), poll(r + 1))], [0]*cfg.ap + [1]*16)
                check(r + 1)
                for t, x in stage_loads(r + 1): ivm(t, x)
                e(f"s_branch L_join{r}")
                assert dq == d1 and vq[-len(v1):] == v1, (vq, v1)
                alts.append(L[mark:]); del L[mark:]
                vq[:] = v1
            else:
                heads(r, [], [0]*16)
    else:
        pending = []
        for H in range(32):
            r, i = H >> 3, H & 7
            if i == cfg.kp and r < 3:
                check(r + 1)
                if cfg.sm == 0 or r == 2: stamp()
                pending = stage_loads(r + 1)
                for _ in range(3):
                    t, x = pending.pop(0); ivm(t, x)
            wait(vt=("L", H), dt=H)
            for m in range(2):
                cc = "0" if H == 0 else vr(ACC+16*m, 16)
                e(f"v_mfma_f32_32x32x16_bf16 {vr(ACC+16*m,16)}, {vr(WF+8*i+4*m,4)}, {vr(OF+4*H,4)}, {cc}")
                if H + 7 < 32:
                    for x in wrd(H + 7)[2*m:2*m+2]: ids(H + 7, x)
                for _ in range(2):
                    if pending:
                        t, x = pending.pop(0); ivm(t, x)
    stamp()
    cvt = lambda d, a: e(f"v_cvt_pk_bf16_f32 v{d}, v{a}, v{a+1}\nv_cvt_pk_bf16_f32 v{d+1}, v{a+2}, v{a+3}")
    for m in range(2):
        for qq in range(2):
            a = ACC + 16*m + 8*qq; d = 8*m + 4*qq
            cvt(d, a); cvt(d + 2, a + 4)
            e(f"ds_write_b128 v{vSW + 2*m + qq}, {vr(d,4)}")
    e("s_waitcnt lgkmcnt(0)")
    for it in range(4):
        e(f"ds_read_b128 {vr(16+4*it,4)}, v{vSR} offset:{1024*it}")
    for it in range(4):
        e(f"s_waitcnt lgkmcnt({3-it})")
        if it > 0: e(f"s_add_u32 s{sOO}, s{sOO}, 32768")
        e(f"buffer_store_dwordx4 {vr(16+4*it,4)}, v{vOA}, {srd(sOUT)}, s{sOO} offen {cfg.out_flags}")
    e(f"""
    s_or_b32 s{sT+6}, s{sG}, s{sLW}
    s_cbranch_scc0 L_epoch
L_epochx:
    """)
    if cfg.diag:
        e("""
        s_memrealtime s[92:93]
L_dsp:
        s_memrealtime s[96:97]
        s_waitcnt lgkmcnt(0)
        s_sub_u32 s96, s96, s92
        s_cmp_lt_u32 s96, s3
        s_cbranch_scc1 L_dsp
        """)
    if cfg.stamps:
        e("s_waitcnt vmcnt(0)"); stamp()
    dump_stamps(nst[0], True)
    e("L_end:\ns_endpgm")
    for r in range(4):
        e(f"""
L_spin{r}:
        s_sub_u32 s{sSP}, s{sSP}, 1
        s_cmp_lt_i32 s{sSP}, 0
        s_cbranch_scc1 L_ok{r}
        {poll(r)}
        s_waitcnt vmcnt(0)
        s_branch L_chk{r}
        """)
    for al in alts: L.extend(al)
    if cfg.ht:
        e(f"""
L_redo:
        s_sub_u32 s{sSP}, s{sSP}, {0x80000 if cfg.stamps else 64}
        s_cmp_lt_i32 s{sSP}, 0
        s_cbranch_scc1 L_redox
        {poll(0)}
        s_branch L_again
        """)
    e(f"""
L_epoch:
    s_lshl_b32 s{sT+6}, s{sRT}, 7
    s_add_u32 s{sT+6}, s{sT+6}, {WS_E}
    v_mov_b32 v{vD}, s{sEP}
    s_mov_b64 exec, 1
    buffer_store_dword v{vD}, off, {srd(sWS)}, s{sT+6}
    s_mov_b64 exec, -1
    s_branch L_epochx
    """)
    nst[0] = 1
    e("L_compute:")
    AQ = 0; AK = 32; AV = 68
    BUF = [104, 152]
    W15 = 200
    vB = 212; vB0 = 216; vONE = 220
    vXA = 224; vWA = 230; vHA = 233
    vSO, vFO, vFV = 235, 236, 237
    VP = 238
    def accQ(t): return AQ + 4*t
    def accK(t): return AK + 4*(t+1)
    def accV(t): return AV + 4*(t+1)
    sSC = 56; sMH = 58; sPM = 60; sDO = 12; sFO = 45; sS = 46
    e(f"""
    v_and_b32 v1, 15, v0
    v_lshrrev_b32 v2, 4, v0
    v_bfe_u32 v3, v0, 1, 3
    v_xor_b32 v3, v3, v2
    v_lshlrev_b32 v3, 4, v3
    v_lshl_add_u32 v3, v1, 7, v3
    v_add_u32 v{vXA}, {SLOT0}, v3
    v_xor_b32 v{vXA+1}, 64, v{vXA}
    v_add_u32 v{vXA+2}, {SLOTSZ}, v{vXA}
    v_add_u32 v{vXA+3}, {SLOTSZ}, v{vXA+1}
    v_add_u32 v{vXA+4}, {2*SLOTSZ}, v{vXA}
    v_add_u32 v{vXA+5}, {2*SLOTSZ}, v{vXA+1}
    v_and_b32 v3, 6, v0
    v_xor_b32 v3, v3, v2
    v_lshlrev_b32 v3, 4, v3
    v_and_b32 v4, 7, v0
    v_lshl_add_u32 v{vHA}, v4, 7, v3
    {"v_and_b32 v4, 8, v0" if cfg.hzero else ""}
    {"v_xor_b32 v4, 8, v4" if cfg.hzero else ""}
    {f"v_lshl_add_u32 v{vHA}, v4, 15, v{vHA}" if cfg.hzero else ""}
    v_xor_b32 v{vHA+1}, 64, v{vHA}
    v_bfe_u32 v3, v0, 3, 2
    v_xor_b32 v3, s{sWAVE}, v3
    v_lshlrev_b32 v3, 5, v3
    v_and_b32 v4, 3, v0
    v_lshl_add_u32 v3, v4, 3, v3
    v_bfe_u32 v4, v0, 2, 2
    v_lshl_add_u32 v3, v4, 7, v3
    v_mul_u32_u24 v4, 3072, v2
    v_add_u32 v3, v3, v4
    v_add_u32 v{vWA}, {SLOT0+16384}, v3
    v_add_u32 v{vWA+1}, {SLOT0+16384+SLOTSZ}, v3
    v_add_u32 v{vWA+2}, {SLOT0+16384+2*SLOTSZ}, v3
    v_lshlrev_b32 v3, 2, v2
    v_sub_u32 v3, v1, v3
    v_mov_b32 v5, 0xff800000
    s_cmp_eq_u32 s{sSEG}, 0
    s_cselect_b32 s{sT}, {f2u(-4e9)}, 0
    v_mov_b32 v6, s{sT}
    """)
    for r in range(4):
        e(f"""
        v_subrev_u32 v4, {r}, v3
        v_cmp_gt_i32 s[62:63], 0, v4
        v_and_b32 v4, 8, v4
        v_cmp_eq_u32 vcc, 0, v4
        v_cndmask_b32 v{vB0+r}, 0, v6, s[62:63]
        v_cndmask_b32 v{vB+r}, v5, 0, vcc
        v_cndmask_b32 v{vB0+r}, v5, v{vB0+r}, vcc
        v_mov_b32 v{vONE+r}, 0x3f803f80
        """)
    e(f"""
    v_lshlrev_b32 v{vSO}, 4, v0
    v_mov_b32 v{VP+2}, 0
    v_mov_b32 v{VP+4}, -1
    v_mov_b32 v{VP+5}, -1
    v_mov_b32 v{VP+6}, -1
    v_mov_b32 v{VP+7}, -1
    v_lshlrev_b32 v1, 6, v1
    v_lshl_add_u32 v{VP+3}, v2, 15, v1
    v_min_u32 v{vFO}, 1, v0
    v_lshlrev_b32 v{vFO}, 30, v{vFO}
    s_mov_b32 s{sSC}, {f2u(0.25*1.4426950408889634)}
    s_mov_b32 s{sMH}, 0xff00ff00
    s_mov_b32 s{sMH+1}, 0xff00ff00
    s_mov_b32 s{sPM}, 0
    s_mov_b32 s{sPM+1}, 0x00ff00ff
    s_and_b32 s{sS}, s{sG}, 3
    s_lshl_b32 s{sT}, s{sRT}, 7
    s_add_u32 s47, s{sT}, {WS_E}
    s_waitcnt lgkmcnt(0)
    s_load_dword s{sEP}, s[20:21], s47
    s_mov_b32 s{sWS}, s20
    s_mov_b32 s{sWS+1}, s21
    s_mov_b32 s{sWS+2}, 0x10000000
    s_mov_b32 s{sWS+3}, 0x20000
    s_lshl_b32 s47, s{sG}, 2
    s_add_u32 s62, s47, s{sT}
    s_add_u32 s62, s62, {WS_A}
    s_add_u32 s47, s47, s{sWAVE}
    s_add_u32 s47, s47, s{sT}
    s_lshl_b32 s{sDO}, s47, 10
    s_add_u32 s{sDO+1}, s{sDO}, 32768
    s_add_u32 s{sDO+2}, s{sDO}, 65536
    s_add_u32 s{sDO+3}, s{sDO}, 98304
    s_lshl_b32 s{sFO}, s{sRT}, 7
    s_and_b32 s47, s{sG}, 4
    s_add_u32 s{sFO}, s{sFO}, s47
    s_add_u32 s{sFO}, s{sFO}, s{sWAVE}
    s_lshl_b32 s{sFO}, s{sFO}, 2
    s_add_u32 s{sFO}, s{sFO}, {WS_FLAG}
    s_getreg_b32 s63, hwreg(HW_REG_XCC_ID, 0, 4)
    """)
    if cfg.ht and cfg.pf0 == -10:
        for q in range(4): e(f"buffer_store_dwordx4 {vr(VP+4,4)}, v{vSO}, {srd(sWS)}, s{sDO + q} offen {cfg.pf_flags}")
    if cfg.xap > 1:
        sh = {2: 5, 4: 4}[cfg.xap]
        e(f"v_lshrrev_b32 v1, {sh}, v0\nv_mov_b32 v2, v{VP+3}\nv_bfrev_b32 v3, 2")
        for k in range(cfg.xap):
            e(f"v_cmp_eq_u32 vcc, {k}, v1\nv_cndmask_b32 v{VP+3+k}, v3, v2, vcc")
    def tree(lab):
        e(f"""
        s_cmp_eq_u32 s{sS}, 1
        s_cbranch_scc1 {lab}1
        s_cmp_eq_u32 s{sS}, 2
        s_cbranch_scc1 {lab}2
        s_cmp_eq_u32 s{sS}, 3
        s_cbranch_scc1 {lab}3
        s_branch {lab}0
        """)
    e(f"""
    s_waitcnt vmcnt({4 if cfg.ht and cfg.pf0 == -10 else 0}) lgkmcnt(0)
    s_add_u32 s63, s63, s{sEP}
    s_add_u32 s63, s63, {K2}
    s_add_u32 s{sEP}, s{sEP}, {K1}
    v_mov_b32 v1, s63
    v_mov_b32 v{vFV}, s{sEP}
    s_cmp_eq_u32 s{sWAVE}, 0
    s_cbranch_scc0 L_noann
    buffer_store_dword v1, v{vFO}, {srd(sWS)}, s62 offen sc1
L_noann:
    """)
    if cfg.ht and cfg.pf0 == -11:
        for q in range(4): e(f"buffer_store_dwordx4 {vr(VP+4,4)}, v{vSO}, {srd(sWS)}, s{sDO + q} offen {cfg.pf_flags}")
    if cfg.warm and cfg.VS > 0:
        tree("L_w")
        e("L_wback:")
    def xreg(step, t): return BUF[step & 1] + 4*(t + 1)
    def wbase(step): return W15 if (step == cfg.R0 + 2) else BUF[step & 1] + 36
    def wreads(step):
        c, s = step >> 1, step & 1
        R = []
        for p in (1, 2, 0):
            for j in range(2):
                d = wbase(step) + 4*p + 2*j
                R.append(f"ds_read_b64_tr_b16 v[{d}:{d+1}], v{vWA + c % 3} offset:{s*12288 + p*1024 + j*512}")
        return R
    def xread(step, t):
        c, s = step >> 1, step & 1
        d = xreg(step, t)
        if t < 0: return f"ds_read_b128 v[{d}:{d+3}], v{vHA+s} offset:{c*1024}"
        return f"ds_read_b128 v[{d}:{d+3}], v{vXA+2*(c % 3)+s} offset:{t*2048}"
    def reads(step): return wreads(step) + [xread(step, t) for t in range(-1, 8)]
    def mf(step, t, j):
        a = (accQ, accK, accV)[j](t); w = vr(wbase(step) + 4*j, 4); x = vr(xreg(step, t), 4)
        c = "0" if step == 0 else vr(a, 4)
        ops = f"{x}, {w}" if j == 2 else f"{w}, {x}"
        return f"v_mfma_f32_16x16x32_bf16 {vr(a,4)}, {ops}, {c}"
    def mfmas(step):
        if cfg.order == 3:
            M = [mf(step, -1, 1)]
            for t in range(8):
                M += [mf(step, t, 1), mf(step, t, 0)] if t % 2 == 0 else [mf(step, t, 0), mf(step, t, 1)]
            M += [mf(step, t, 2) for t in range(-1, 8)]
        else:
            M = []
            for t in range(-1, 8):
                M += [mf(step, t, 1), mf(step, t, 2)] + ([mf(step, t, 0)] if t >= 0 else [])
        return M
    def kstep(step):
        e("s_waitcnt lgkmcnt(0)")
        if step & 1 and step < 15:
            e("s_barrier")
            if step in (7,): stamp()
        if step == 12 and not cfg.late:
            e(f"v_cmp_ne_u32 vcc, 0, v{VP}")
        M = mfmas(step); F = reads(step + 1)
        if step == 11 and not cfg.late:
            F = F + [f"v_mov_b32 v{VP+1}, 0", f"ds_read_b32 v{VP}, v{VP+1}"]
        if cfg.ht and cfg.pfi >= 0 and step == cfg.pf0:
            F = F + [""] * (cfg.pfi - len(F))
            for q in range(4):
                F = F + [f"buffer_store_dwordx4 {vr(VP+4,4)}, v{vSO}, {srd(sWS)}, s{sDO + q} offen {cfg.pf_flags}", ""]
            assert len(F) <= 27
        if cfg.ht and cfg.pfi < 0 and cfg.pf0 <= step < cfg.pf0 + 4:
            F = F + [f"buffer_store_dwordx4 {vr(VP+4,4)}, v{vSO}, {srd(sWS)}, s{sDO + step - cfg.pf0} offen {cfg.pf_flags}"]
        if cfg.xa >= 0:
            at = lambda k: f"buffer_atomic_or v{VP+2}, v{VP+3+k}, {srd(sWS)}, s{sDO} offen {cfg.xa_flags}"
            if cfg.xap > 1:
                for k in range(cfg.xap):
                    if step == cfg.xa + k * cfg.xas: F = F + [at(k)]
            elif cfg.xas == 0:
                if step == cfg.xa: F = F + [at(0)]
            else:
                for w in range(4):
                    if step == cfg.xa + w * cfg.xas:
                        F = F + [f"s_cmp_eq_u32 s{sWAVE}, {w}", f"s_cbranch_scc0 L_xa{w}\n{at(0)}\nL_xa{w}:"]
        for i, m in enumerate(M):
            e(m)
            if i < len(F): e(F[i])
    def Vp(t): return VP + 2*(7 - t)
    def region(s):
        stubs = []
        R0 = cfg.R0
        units = []
        first = 2*s - 1
        units.append((0, first, (1, 2)))
        for r in range(4):
            q = (r + s) & 3
            if q == 0 and s != 0: units.append((r, -1, (1, 2)))
            a, b = 2*q, 2*q + 1
            units.append((r, a, (1, 0, 2)))
            units.append((r, b, (0,) if b == first else (1, 0, 2)))
        I = []
        seen = set()
        for step in range(R0, 16):
            if step > R0:
                for k, x in enumerate(wreads(step)): I.append(Item(x, (-2, step, k)))
                tl = []
                for u, (r, t, js) in enumerate(units):
                    if t not in tl:
                        tl.append(t); I.append(Item(xread(step, t), (-1, u, step)))
            for u, (r, t, js) in enumerate(units):
                for k, j in enumerate(js):
                    rr = 0 if (js == (0,) and step + 2 <= 15) else r
                    I.append(Item(mf(step, t, j), (rr, 0, 0 if rr != r else u, step, k), tag=(f"g{r}" if step == 15 and u == len(units) - 1 and j == js[-1] else None)))
        if cfg.late:
            I.append(Item(f"v_mov_b32 v{vXA}, 0", (-3, 0)))
            I.append(Item(f"ds_read_b32 v{vXA+1}, v{vXA}", (-1, 99)))
            I.append(Item(f"v_cmp_ne_u32 vcc, 0, v{vXA+1}", (0, 0)))
        cv = lambda d, a, n: f"v_cvt_pk_bf16_f32 v{d}, v{a+2*n}, v{a+2*n+1}"
        kdone = set()
        prev_store = None; prev_flag = None
        for r in range(4):
            q = (r + s) & 3
            a, b = 2*q, 2*q + 1
            n = [0]
            def add(text, **kw):
                n[0] += 1
                it = Item(text, (r, 1, n[0]), **kw); I.append(it); return it
            for t in (a - 1, a, b):
                if t not in kdone:
                    kdone.add(t)
                    add(cv(accK(t), accK(t), 0)); add(cv(accK(t) + 1, accK(t), 1))
                    add(cv(Vp(t), accV(t), 0)); add(cv(Vp(t) + 1, accV(t), 1))
            XE = lambda t: BUF[0] + 4*(t + 1)
            XO = lambda t: BUF[1] + 4*(t + 1)
            for t in (a, b):
                Q = accQ(t)
                for k in range(2): add(f"v_cndmask_b32 v{accK(t)+2+k}, v{accK(t)+k}, v{accK(t-1)+k}, s[{sMH}:{sMH+1}]")
                add(cv(Q, Q, 0)); add(cv(Q + 1, Q, 1))
                for k in range(2): add(f"v_cndmask_b32 v{Q+2+k}, v{Q+k}, 0, s[{sMH}:{sMH+1}]")
                for k in range(2): add(f"v_cndmask_b32 v{Q+k}, 0, v{Q+k}, s[{sMH}:{sMH+1}]")
                add(f"v_mfma_f32_16x16x32_bf16 {vr(XE(t),4)}, {vr(accK(t),4)}, {vr(Q,4)}, {vr(vB0 if t == 0 else vB,4)}")
            for t in (a, b):
                S = XE(t)
                add(f"v_max3_f32 v{XO(t)}, v{S}, v{S+1}, v{S+2}")
                add(f"v_max_f32 v{XO(t)}, v{XO(t)}, v{S+3}")
            ma, mb = XO(a), XO(b)
            add(f"v_permlane32_swap_b32 v{ma}, v{mb}")
            add(f"v_max_f32 v{ma+1}, v{ma}, v{mb}")
            add(f"v_max_f32 v{ma}, v{ma}, v{mb}")
            add(f"v_permlane16_swap_b32 v{ma}, v{ma+1}")
            add(f"v_max_f32 v{ma}, v{ma}, v{ma+1}")
            add(f"v_mul_f32 v{mb}, s{sSC}, -v{ma}")
            add(f"v_mul_f32 v{ma}, s{sSC}, -v{ma}")
            add(f"v_permlane32_swap_b32 v{ma}, v{mb}")
            for t in (a, b):
                S = XE(t); P = accQ(t)
                for k in range(4): add(f"v_fma_f32 v{S+k}, v{S+k}, s{sSC}, v{XO(t)}")
                for k in range(4): add(f"v_exp_f32 v{S+k}, v{S+k}")
                add(cv(P, S, 0)); add(cv(P + 1, S, 1))
                for k in range(2): add(f"v_cndmask_b32 v{P+2+k}, 0, v{P+k}, s[{sPM}:{sPM+1}]")
                for k in range(2): add(f"v_cndmask_b32 v{P+k}, v{P+k}, 0, s[{sPM}:{sPM+1}]")
                add(f"v_mfma_f32_16x16x32_bf16 {vr(XO(t),4)}, {vr(vONE,4)}, {vr(P,4)}, 0")
                add(f"v_mfma_f32_16x16x32_bf16 {vr(accV(t),4)}, {vr(Vp(t),4)}, {vr(P,4)}, 0")
            OP = XE(a)
            for t in (a, b):
                O = accV(t)
                add(f"v_rcp_f32 v{XO(t)}, v{XO(t)}")
                for k in range(4): add(f"v_mul_f32 v{O+k}, v{O+k}, v{XO(t)}")
                add(cv(OP + 2*(t - a), O, 0)); add(cv(OP + 2*(t - a) + 1, O, 1))
            add(f"v_permlane16_swap_b32 v{OP}, v{OP+2}")
            add(f"v_permlane16_swap_b32 v{OP+1}, v{OP+3}")
            st = f"buffer_store_dwordx4 {vr(OP,4)}, v{vSO}, {srd(sWS)}, s{sDO+q} offen"
            fl = f"buffer_store_dword v{vFV}, v{vFO}, {srd(sWS)}, s{sFO} offen offset:{q*128 + r*32}"
            sx = ("\n" + stamp_text()) if cfg.stamps else ""
            if cfg.ht:
                add(f"v_min_u32 v{OP}, -2, v{OP}")
                t1, t2 = (f"{st} {cfg.fast_flags}", f"{fl} {cfg.ffl_flags}")
                if cfg.hbad: t1, t2 = t2 + "\n" + "s_nop 15\n" * cfg.hbad, t1
                w0 = "s_waitcnt vmcnt(0)\n" if r == 0 else ""
                store = add(f"{w0}s_cbranch_vccz L_ss{s}{r}\n{t1}\n{t2}\nL_sb{s}{r}:{sx}", tag=f"st{r}", urgent=True,
                            after=[(prev_store, 0)] if prev_store else None)
                stubs.append(f"L_ss{s}{r}:\n{st} sc1\ns_waitcnt vmcnt(0)\n{fl} sc1\ns_branch L_sb{s}{r}")
                if r == cfg.b8 or r == cfg.b9: add("s_barrier", after=[(store, 0)], urgent=True)
                prev_store = store
                continue
            store = add(f"s_cbranch_vccz L_ss{s}{r}\n{st} {cfg.fast_flags}\nL_sb{s}{r}:{sx}", tag=f"st{r}", urgent=True,
                        after=[(prev_store, 0)] if prev_store else None)
            stubs.append(f"L_ss{s}{r}:\n{st} sc1\ns_branch L_sb{s}{r}")
            if r == cfg.b8 or r == cfg.b9: add("s_barrier", after=[(store, 0)], urgent=True)
            flag = add(f"s_cbranch_vccz L_fs{s}{r}\n{fl} {cfg.ffl_flags}\nL_fb{s}{r}:", tag=f"fl{r}", urgent=True, waitvm=store,
                       after=[(store, cfg.LF)] + ([(prev_flag, 0)] if prev_flag else []))
            stubs.append(f"L_fs{s}{r}:\n{fl} sc1\ns_branch L_fb{s}{r}")
            prev_store = store; prev_flag = flag
        e("s_waitcnt lgkmcnt(0)")
        if R0 & 1 and R0 < 15: e("s_barrier")
        stamp()
        if cfg.prio: e(f"s_setprio {cfg.prio}")
        out, t = schedule(I, mfma_first=bool(cfg.mf), ds_lat=cfg.dslat, verbose=cfg.verbose)
        for x in out: e(x)
        return stubs
    stamp()
    if cfg.VS > 0:
        e("s_barrier")
        stamp()
        for x in reads(0): e(x)
        for step in range(cfg.VS): kstep(step)
    tree("L_v")
    n0 = nst[0]
    for s in range(4):
        nst[0] = n0
        e(f".p2align 6\nL_w{s}:")
        e("s_branch L_wback\ns_nop 0" if cfg.warm and cfg.VS > 0 else "s_nop 0\ns_nop 0")
        e(f"L_v{s}:")
        if cfg.VS == 0:
            e("s_barrier")
            stamp()
            for x in reads(0): e(x)
        for step in range(cfg.VS, cfg.R0): kstep(step)
        stubs = region(s)
        stamp()
        dump_stamps(nst[0])
        e("s_endpgm")
        for x in stubs: e(x)
        e(f"L_ve{s}:")
    body, added = hz.fix("\n".join(L))
    return body, added

def finish(body, VSZ):
    K = NAME + "_kernel"
    for s in range(4):
        body = body.replace(f"L_ve{s}:", f"L_ve{s}:\n.fill ({VSZ}-(L_ve{s}-L_w{s}))/4, 4, 0xbf800000")
    s = HDR.format(launch="; @launch grid=(256,1,1) block=(512,1,1) lds=163840") + kernel_head(K) + body + "\n"
    s += ".fill 64, 4, 0xbf800000\n"
    s += kernel_desc(K, 256, 256, 102)
    return s

def build(cfg):
    import subprocess, re, os
    body, added = gen(cfg)
    tmp = f"g3_{os.getpid()}"
    open(tmp + ".s", "w").write(finish(body, 0).replace(".fill (0-", ".fill 0*(0-"))
    subprocess.run(["clang", "-x", "assembler", "-target", "amdgcn-amd-amdhsa", "-mcpu=gfx950", "-c", tmp + ".s", "-o", tmp + ".o"], check=True)
    sy = subprocess.run(["llvm-objdump", "-t", tmp + ".o"], capture_output=True, text=True).stdout
    A = {l.split()[-1]: int(l.split()[0], 16) for l in sy.strip().split("\n") if re.match(r"^[0-9a-f]{16} ", l)}
    sz = max(A[f"L_ve{s}"] - A[f"L_w{s}"] for s in range(4))
    sz = (sz + 63) // 64 * 64
    return finish(body, sz), added, (A["L_compute"], A["L_w0"], sz)

if __name__ == "__main__":
    kw = {}
    for a in sys.argv[2:]:
        k, v = a.split("=")
        kw[k] = v.replace("+", " ") if k.endswith("flags") or k.startswith("dma_") else int(v, 0)
    s, added, info = build(Cfg(**kw))
    open(sys.argv[1], "w").write(s)
    print("nops added", added, "sizes", info)
```

```python
import sys, struct
from asmlib import *
import hz

def f2u(f): return struct.unpack("<I", struct.pack("<f", f))[0]

class Cfg:
    arr = 0
    rot = 0
    stamps = False
    st_flags = "sc1"
    ld_flags = "sc1"
    out_flags = ""
    dma_x = ""
    dma_w = ""
    diag = 0
    fl_flags = "sc1"
    early = 1
    gxor = 0
    alt = 0
    share = 1
    xrot = 0
    order = 0
    hzero = 0
    nolds = 0
    nodma = 0
    nomfma = 0
    tabA = 0x67452310
    tabB = 0x75634021
    def __init__(self, **kw):
        for k, v in kw.items():
            assert hasattr(self, k), k
            setattr(self, k, v)

HALO = 0; SLOT0 = 8192; SLOTSZ = 40960; WO_L = 98304; STAGE = 8192
WS_FLAG = 8 << 20; WS_STAMP = 16 << 20
sX, sW, sWO, sOUT, sWS, sDBG = 24, 28, 32, 36, 40, 44
sWAVE, sRT, sG, sBR, sPAR, sSEG, sROT = 48, 49, 50, 51, 52, 53, 54
sT = 55
sST = 64
sEP = 44
def srd(r): return f"s[{r}:{r+3}]"
def vr(a, n): return f"v[{a}:{a+n-1}]" if n > 1 else f"v{a}"

def gen(cfg):
    K = NAME + "_kernel"
    L = []
    def e(s):
        for ln in s.strip("\n").split("\n"):
            L.append(ln if ln.endswith(":") else "    " + ln.strip())
    nst = [0]
    def stamp(name=None):
        if cfg.stamps:
            i = nst[0]; nst[0] += 1
            e(f"{'s_memrealtime' if cfg.stamps == 2 else 's_memtime'} s[{sST+2*i}:{sST+2*i+1}]")
    def dump_stamps(n):
        if not cfg.stamps: return
        e("s_memrealtime s[96:97]\ns_waitcnt lgkmcnt(0)")
        e("v_mov_b32 v16, s98\nv_mov_b32 v17, s96")
        e(f"s_getreg_b32 s{sT}, hwreg(HW_REG_XCC_ID, 0, 4)\nv_mov_b32 v18, s{sT}")
        for i in range(1, 14):
            if i < n:
                e(f"s_sub_u32 s{sT}, s{sST+2*i}, s{sST}\nv_mov_b32 v{18+i}, s{sT}")
            else:
                e(f"v_mov_b32 v{18+i}, 0")
        e(f"""s_lshl_b32 s{sT}, s2, 3
        s_add_u32 s{sT}, s{sT}, s{sWAVE}
        s_lshl_b32 s{sT}, s{sT}, 6
        s_add_u32 s{sT}, s{sT}, {WS_STAMP}
        s_mov_b64 exec, 1
        v_mov_b32 v1, 0""")
        for i in range(4):
            e(f"buffer_store_dwordx4 v[{16+4*i}:{19+4*i}], v1, {srd(sWS)}, s{sT} offen offset:{16*i}")
        e("s_waitcnt vmcnt(0)")

    stamp()
    if cfg.stamps or cfg.diag: e("s_memrealtime s[98:99]")
    if cfg.diag: e("s_memtime s[94:95]")
    e(f"""
    s_cmp_ge_u32 s2, 256
    s_cbranch_scc1 L_end
    s_load_dwordx16 s[4:19], s[0:1], 0
    s_load_dwordx2 s[20:21], s[0:1], 64
    s_getpc_b64 s[22:23]
L_pc:
    v_lshlrev_b32 v1, 6, v0
    v_min_u32 v1, L_end-L_pc, v1
    global_load_dword v255, v1, s[22:23]
    v_lshrrev_b32 v3, 6, v0
    s_and_b32 s{sT}, s2, 7
    s_lshr_b32 s{sT+1}, s2, 3
    v_readfirstlane_b32 s{sWAVE}, v3
    v_and_b32 v0, 63, v0
    """)
    if cfg.arr == 0:
        e(f"""
        s_lshr_b32 s{sRT}, s{sT+1}, 3
        s_lshl_b32 s{sT}, s{sT}, 2
        s_add_u32 s{sRT}, s{sRT}, s{sT}
        s_and_b32 s{sG}, s{sT+1}, 7
        s_xor_b32 s{sG}, s{sG}, {cfg.gxor}
        """)
    else:
        e(f"""
        s_lshr_b32 s{sRT}, s{sT+1}, 2
        s_lshr_b32 s{sT+2}, s{sT}, 1
        s_lshl_b32 s{sT+2}, s{sT+2}, 3
        s_add_u32 s{sRT}, s{sRT}, s{sT+2}
        s_and_b32 s{sG}, s{sT+1}, 3
        s_and_b32 s{sT+2}, s{sT}, 1
        s_lshl_b32 s{sT+2}, s{sT+2}, 2
        s_add_u32 s{sG}, s{sG}, s{sT+2}
        """)
    e(f"""
    s_lshr_b32 s{sBR}, s{sRT}, 4
    s_bfe_u32 s{sPAR}, s{sRT}, 0x10003
    s_and_b32 s{sSEG}, s{sRT}, 7
    s_cmp_ge_u32 s{sWAVE}, 4
    s_cbranch_scc0 L_compute
    """)
    sLW, sXB, sWB, sKO, sWOFF, sHOFF = sT, sT+1, sT+2, sT+3, sT+4, sT+5
    vX, vW, vH = 8, 12, 14
    sCLS, sA, sB, sXR = 54, 44, 45, 46
    sMX, sMW, sHM = 4, 22, 2
    sMX = 36; sMW = 34
    sMW = 46; sXR = 63; sHM = 100
    if cfg.alt in (1, 3):
        e(f"""
        s_add_u32 s{sCLS}, s{sRT}, s{sG}
        s_and_b32 s{sCLS}, s{sCLS}, 1
        s_lshr_b32 s{sA}, s{sG}, 1
        s_bfe_u32 s{sB}, s{sRT}, 0x10001
        """)
    else:
        e(f"""
        s_mov_b32 s{sCLS}, 0
        s_and_b32 s{sA}, s{sG}, 3
        s_and_b32 s{sB}, s{sRT}, 1
        """)
    if cfg.alt == 3:
        e(f"s_cmp_eq_u32 s{sCLS}, 0\ns_mov_b32 s{sCLS}, {cfg.tabA}\ns_cselect_b32 s{sCLS}, s{sCLS}, {cfg.tabB}")
    if not cfg.share:
        e(f"s_mov_b32 s{sA}, 0\ns_mov_b32 s{sB}, 0")
    e(f"s_and_b32 s{sXR}, s2, {3 if cfg.xrot else 0}")
    e(f"""
    s_sub_u32 s{sLW}, s{sWAVE}, 4
    v_lshrrev_b32 v3, 3, v0
    v_and_b32 v4, 7, v0
    v_lshrrev_b32 v5, 4, v0
    v_xor_b32 v6, v4, v5
    v_lshlrev_b32 v6, 4, v6
    v_lshl_add_u32 v6, v3, 11, v6
    s_lshl_b32 s{sT+6}, s{sSEG}, 18
    s_lshl_b32 s{sT+7}, s{sPAR}, 10
    s_add_u32 s{sT+6}, s{sT+6}, s{sT+7}
    s_sub_u32 s{sHOFF}, s{sT+6}, 16384
    s_cmp_eq_u32 s{sSEG}, 0
    s_cselect_b32 s{sHOFF}, 0x40000000, s{sHOFF}
    s_lshl_b32 s{sT+7}, s{sLW}, 16
    s_add_u32 s{sT+6}, s{sT+6}, s{sT+7}
    s_lshl_b32 s{sXB}, s{sLW}, 12
    """)
    for j in range(4):
        e(f"""
        s_add_u32 s{sKO}, s{sA}, {j}
        s_and_b32 s{sKO}, s{sKO}, 3
        s_lshl_b32 s{sMX+j}, s{sKO}, 10
        s_add_u32 s{sMX+j}, s{sMX+j}, s{sXB}
        s_and_b32 s{sT+7}, s{sKO}, 1
        s_lshl_b32 s{sT+7}, s{sT+7}, 6
        s_lshl_b32 s{sKO}, s{sKO}, 14
        s_add_u32 s{sKO}, s{sKO}, s{sT+6}
        v_xor_b32 v{vX+j}, s{sT+7}, v6
        v_add_u32 v{vX+j}, s{sKO}, v{vX+j}
        """)
    e(f"""
    v_lshlrev_b32 v7, 1, v5
    v_xor_b32 v6, v4, v7
    v_lshlrev_b32 v6, 4, v6
    v_lshl_add_u32 v6, v3, 11, v6
    v_add_u32 v{vH}, s{sHOFF}, v6
    v_and_b32 v7, 2, v7
    v_xor_b32 v7, v7, v4
    v_lshlrev_b32 v7, 4, v7
    v_mul_u32_u24 v6, 3072, v3
    v_add_u32 v7, v7, v6
    s_mul_i32 s{sT+6}, s{sLW}, 49152
    s_lshl_b32 s{sT+7}, s{sG}, 7
    s_add_u32 s{sT+6}, s{sT+6}, s{sT+7}
    s_mul_i32 s{sWB}, s{sLW}, 6144
    """)
    for m in range(2):
        e(f"""
        s_xor_b32 s{sKO}, s{sB}, {m}
        s_mul_i32 s{sMW+m}, s{sKO}, 3072
        s_add_u32 s{sMW+m}, s{sMW+m}, s{sWB}
        s_lshl_b32 s{sT+7}, s{sKO}, 6
        s_mul_i32 s{sKO}, s{sKO}, 24576
        s_add_u32 s{sKO}, s{sKO}, s{sT+6}
        v_xor_b32 v{vW+m}, s{sT+7}, v7
        v_add_u32 v{vW+m}, s{sKO}, v{vW+m}
        """)
    e(f"""
    s_lshl_b32 s{sT+6}, s{sLW}, 4
    s_lshl_b64 s[{sHM}:{sHM+1}], 0xffff, s{sT+6}
    s_waitcnt lgkmcnt(0)
    """)
    stamp()
    e(f"""
    s_cmp_eq_u32 s{sBR}, 0
    s_cselect_b32 s{sX}, s4, s10
    s_cselect_b32 s{sX+1}, s5, s11
    s_mov_b32 s{sX+2}, 0x200000
    s_mov_b32 s{sX+3}, 0x20000
    s_cselect_b32 s{sW}, s6, s12
    s_cselect_b32 s{sW+1}, s7, s13
    s_mov_b32 s{sW+2}, 0x180000
    s_mov_b32 s{sW+3}, 0x20000
    s_cselect_b32 s{sWO}, s8, s14
    s_cselect_b32 s{sWO+1}, s9, s15
    s_mov_b32 s{sWO+2}, 0x80000
    """)
    def issue(c, part=-1):
        slot = SLOT0 + (c % 3) * SLOTSZ
        if cfg.nodma and c >= 3: return
        if part == 1:
            pass
        elif cfg.alt == 3:
            e(f"s_bfe_u32 s{sT+6}, s{sCLS}, {0x30000 + 4*c}")
        elif cfg.alt == 1:
            e(f"""
            s_add_u32 s{sT+6}, s{sXR}, {c >> 1}
            s_and_b32 s{sT+6}, s{sT+6}, 3
            s_xor_b32 s{sT+7}, s{sCLS}, {c & 1}
            s_lshl_b32 s{sT+7}, s{sT+7}, 2
            s_add_u32 s{sT+6}, s{sT+6}, s{sT+7}
            """)
        else:
            e(f"""
            s_lshl_b32 s{sT+6}, s{sXR}, 1
            s_add_u32 s{sT+6}, s{sT+6}, {c}
            s_and_b32 s{sT+6}, s{sT+6}, 7
            """)
        if part != 1: e(f"""
        s_add_u32 m0, s{sMW}, {slot + 16384}
        s_mul_i32 s{sWOFF}, s{sT+6}, 196608
        s_lshl_b32 s{sKO}, s{sT+6}, 7
        """)
        def wl(m):
            for p in range(3):
                e(f"buffer_load_dwordx4 v{vW+m}, {srd(sW)}, s{sWOFF} offen offset:{1024*p} {cfg.dma_w} lds")
        def xl(j):
            e(f"s_add_u32 m0, s{sMX+j}, {slot}")
            e(f"buffer_load_dwordx4 v{vX+j}, {srd(sX)}, s{sKO} offen {cfg.dma_x} lds")
        if part != 1:
            wl(0); xl(0)
            e(f"s_mov_b32 m0, {HALO + c*1024}\ns_mov_b64 exec, s[{sHM}:{sHM+1}]")
            e(f"buffer_load_dwordx4 v{vH}, {srd(sX)}, s{sKO} offen {cfg.dma_x} lds")
            e(f"s_add_u32 m0, s{sMW+1}, {slot + 16384}\ns_mov_b64 exec, -1")
        if part != 0:
            wl(1); xl(1); xl(2); xl(3)
    issue(0)
    e(f"""
    s_mov_b32 s{sWO+3}, 0x20000
    s_mov_b32 s{sWS}, s20
    s_mov_b32 s{sWS+1}, s21
    s_mov_b32 s{sWS+2}, 0x10000000
    s_mov_b32 s{sWS+3}, 0x20000
    """)
    if cfg.early == 0:
        issue(1); issue(2)
        e("s_waitcnt vmcnt(22)\ns_barrier"); stamp()
        e("s_waitcnt vmcnt(11)\ns_barrier"); stamp()
    if cfg.early == 2:
        issue(1); issue(2, 0)
        e("s_waitcnt vmcnt(16)\ns_barrier"); stamp()
        issue(2, 1)
        e("s_waitcnt vmcnt(11)\ns_barrier"); stamp()
    for c in range(0 if cfg.early == 1 else 2, 8):
        if c + 1 <= 7:
            issue(c + 1)
            e("s_waitcnt vmcnt(11)\ns_barrier")
        else:
            e("s_waitcnt vmcnt(0)\ns_barrier")
        stamp()
    e(f"""
    v_lshrrev_b32 v3, 3, v0
    v_and_b32 v4, 7, v0
    v_lshrrev_b32 v5, 2, v0
    v_and_b32 v5, 4, v5
    v_xor_b32 v4, v4, v5
    v_lshlrev_b32 v4, 4, v4
    v_lshl_add_u32 v4, v3, 10, v4
    s_lshl_b32 s{sT+6}, s{sLW}, 17
    s_lshl_b32 s{sT+7}, s{sG}, 7
    s_add_u32 s{sT+6}, s{sT+6}, s{sT+7}
    v_add_u32 v{vX}, s{sT+6}, v4
    v_add_u32 v{vX+1}, 7168, v{vX}
    v_add_u32 v{vX+2}, 14336, v{vX}
    v_add_u32 v{vX+3}, 21504, v{vX}
    s_lshl_b32 s{sXB}, s{sLW}, 14
    """)
    for gq in range(4):
        e(f"s_add_u32 m0, s{sXB}, {WO_L + 4096*gq}\ns_mov_b32 s{sKO}, {32768*gq}")
        for j in range(4):
            e(f"buffer_load_dwordx4 v{vX+j}, {srd(sWO)}, s{sKO} offen offset:{1024*j} lds")
    e("s_waitcnt vmcnt(0)\ns_barrier")
    stamp()
    dump_stamps(nst[0])
    e("s_endpgm")
    nst[0] = 1
    e("L_compute:")
    AQ = 0; AK = 32; AV = 68
    BUF = [104, 152]
    vXA = 200
    vWA = 206; vHA = 209
    vB = 212; vB0 = 216; vONE = 220
    vL = 224
    vT = 225
    def accQ(t): return AQ + 4*t
    def accK(t): return AK + 4*(t+1)
    def accV(t): return AV + 4*(t+1)
    sC = sT
    sSC = 56
    e(f"""
    v_mov_b32 v{vL}, v0
    v_and_b32 v1, 15, v0
    v_lshrrev_b32 v2, 4, v0
    v_bfe_u32 v3, v0, 1, 3
    v_xor_b32 v3, v3, v2
    v_lshlrev_b32 v3, 4, v3
    v_lshl_add_u32 v3, v1, 7, v3
    v_add_u32 v{vXA}, {SLOT0}, v3
    v_xor_b32 v{vXA+1}, 64, v{vXA}
    v_add_u32 v{vXA+2}, {SLOTSZ}, v{vXA}
    v_add_u32 v{vXA+3}, {SLOTSZ}, v{vXA+1}
    v_add_u32 v{vXA+4}, {2*SLOTSZ}, v{vXA}
    v_add_u32 v{vXA+5}, {2*SLOTSZ}, v{vXA+1}
    v_and_b32 v3, 6, v0
    v_xor_b32 v3, v3, v2
    v_lshlrev_b32 v3, 4, v3
    v_and_b32 v4, 7, v0
    v_lshl_add_u32 v{vHA}, v4, 7, v3
    {"v_and_b32 v4, 8, v0" if cfg.hzero else ""}
    {"v_xor_b32 v4, 8, v4" if cfg.hzero else ""}
    {f"v_lshl_add_u32 v{vHA}, v4, 15, v{vHA}" if cfg.hzero else ""}
    v_xor_b32 v{vHA+1}, 64, v{vHA}
    v_bfe_u32 v3, v0, 3, 2
    v_xor_b32 v3, s{sWAVE}, v3
    v_lshlrev_b32 v3, 5, v3
    v_and_b32 v4, 3, v0
    v_lshl_add_u32 v3, v4, 3, v3
    v_bfe_u32 v4, v0, 2, 2
    v_lshl_add_u32 v3, v4, 7, v3
    v_mul_u32_u24 v4, 3072, v2
    v_add_u32 v3, v3, v4
    v_add_u32 v{vWA}, {SLOT0+16384}, v3
    v_add_u32 v{vWA+1}, {SLOT0+16384+SLOTSZ}, v3
    v_add_u32 v{vWA+2}, {SLOT0+16384+2*SLOTSZ}, v3
    v_lshlrev_b32 v3, 2, v2
    v_sub_u32 v3, v1, v3
    v_mov_b32 v5, 0xff800000
    s_cmp_eq_u32 s{sSEG}, 0
    s_cselect_b32 s{sT+4}, {f2u(-4e9)}, 0
    v_mov_b32 v6, s{sT+4}
    """)
    for r in range(4):
        e(f"""
        v_subrev_u32 v4, {r}, v3
        v_cmp_gt_i32 s[{sT+5}:{sT+6}], 0, v4
        v_and_b32 v4, 8, v4
        v_cmp_eq_u32 vcc, 0, v4
        v_cndmask_b32 v{vB0+r}, 0, v6, s[{sT+5}:{sT+6}]
        v_cndmask_b32 v{vB+r}, v5, 0, vcc
        v_cndmask_b32 v{vB0+r}, v5, v{vB0+r}, vcc
        v_mov_b32 v{vONE+r}, 0x3f803f80
        """)
    e(f"""
    s_mov_b32 s{sSC}, {f2u(0.25*1.4426950408889634)}
    s_mov_b32 s{sSC+1}, s{sSC}
    s_waitcnt lgkmcnt(0)
    s_mov_b32 s{sWS}, s20
    s_mov_b32 s{sWS+1}, s21
    s_mov_b32 s{sWS+2}, 0x10000000
    s_mov_b32 s{sWS+3}, 0x20000
    s_mov_b32 s{sOUT}, s16
    s_mov_b32 s{sOUT+1}, s17
    s_mov_b32 s{sOUT+2}, 0x400000
    s_mov_b32 s{sOUT+3}, 0x20000
    s_lshl_b32 s{sT+5}, s{sRT}, 11
    s_add_u32 s{sT+5}, s{sT+5}, {WS_FLAG + 1024}
    s_load_dword s{sEP}, s[20:21], s{sT+5}
    s_waitcnt lgkmcnt(0)
    s_add_u32 s{sEP}, s{sEP}, 0x9e3779b9
    """)
    def reads(step):
        c, s = step >> 1, step & 1
        B = BUF[step & 1]; sl = c % 3
        R = []
        for p in (1, 2, 0):
            for j in range(2):
                R.append(f"ds_read_b64_tr_b16 v[{B+36+4*p+2*j}:{B+37+4*p+2*j}], v{vWA+sl} offset:{s*12288 + p*1024 + j*512}")
        R.append(f"ds_read_b128 v[{B}:{B+3}], v{vHA+s} offset:{c*1024}")
        for t in range(8):
            R.append(f"ds_read_b128 v[{B+4+4*t}:{B+7+4*t}], v{vXA+2*sl+s} offset:{t*2048}")
        return R
    def mfmas(step):
        B = BUF[step & 1]
        Wq, Wk, Wv = vr(B+36, 4), vr(B+40, 4), vr(B+44, 4)
        M = []
        for t in range(-1, 8):
            x = vr(B + 4*(t+1), 4)
            def c(a): return "0" if step == 0 else vr(a, 4)
            M.append(f"v_mfma_f32_16x16x32_bf16 {vr(accK(t),4)}, {Wk}, {x}, {c(accK(t))}")
            M.append(f"v_mfma_f32_16x16x32_bf16 {vr(accV(t),4)}, {x}, {Wv}, {c(accV(t))}")
            if t >= 0:
                M.append(f"v_mfma_f32_16x16x32_bf16 {vr(accQ(t),4)}, {Wq}, {x}, {c(accQ(t))}")
        if cfg.order == 1:
            Ks = [m for m in M if Wk in m]; Vs = [m for m in M if Wv in m]; Qs = [m for m in M if Wq in m]
            M = Ks + Qs + Vs
        elif cfg.order == 2:
            M2 = M[:2]
            for i in range(2, 26, 3): M2 += [M[i], M[i+2], M[i+1]]
            M = M2
        elif cfg.order == 3:
            Ks = [m for m in M if Wk in m]; Vs = [m for m in M if Wv in m]; Qs = [m for m in M if Wq in m]
            M2 = [Ks[0]]
            for t in range(8):
                M2 += [Ks[t+1], Qs[t]] if t % 2 == 0 else [Qs[t], Ks[t+1]]
            M = M2 + Vs
        if cfg.order >= 4:
            T = []
            for t in range(-1, 8):
                x = vr(B + 4*(t+1), 4)
                for (a, w, j) in ((accK(t), Wk, 0), (accV(t), Wv, 1), (accQ(t), Wq, 2)):
                    if t < 0 and j == 2: continue
                    c = "0" if step == 0 else vr(a, 4)
                    ops = f"{w}, {x}" if cfg.order in (4, 5, 8) else f"{x}, {w}"
                    jj = j if (cfg.order < 8 or t % 2 == 0) else 2 - j
                    T.append(((t, jj) if cfg.order in (4, 6, 8, 9) else (j, t), f"v_mfma_f32_16x16x32_bf16 {vr(a,4)}, {ops}, {c}"))
            M = [m for _, m in sorted(T)]
        return M
    stamp()
    e("s_barrier")
    stamp()
    for r in reads(0): e(r)
    QP = BUF[0]
    PP = [BUF[0] + 32 + 4*t if t < 4 else 232 + 4*(t-4) for t in range(8)]
    KP = BUF[1]
    VP = BUF[1] + 34
    for step in range(16):
        e("s_waitcnt lgkmcnt(0)")
        if step & 1 and step < 15:
            e("s_barrier")
            if step in (1, 7, 13): stamp()
        M = mfmas(step)
        if step < 15:
            F = reads(step + 1)
            if cfg.nolds == 1 and step >= 1: F = []
            if cfg.nolds == 2 and step >= 1: F = F[:6]
            if cfg.nolds == 3 and step >= 1: F = F[6:]
            if cfg.nomfma and step >= 1: M = [m if i % 2 == 0 else "s_nop 3" for i, m in enumerate(M)]
        else:
            F = [f"v_mov_b64 v[{a}:{a+1}], 0" for a in list(range(QP, QP+48, 2)) + list(range(232, 248, 2))]
        n = 0
        for i, m in enumerate(M):
            e(m)
            k = 1 if step < 15 else 2
            for _ in range(k):
                if n < len(F): e(F[n]); n += 1
        assert n == len(F)
    stamp()
    VP = 200
    VP = BUF[1] + 34
    def Vp(t): return VP + 2*(7 - t)
    def Kp(t): return KP + 4*t if t >= 0 else KP + 32
    cvt = lambda d, a: e(f"v_cvt_pk_bf16_f32 v{d}, v{a}, v{a+1}\nv_cvt_pk_bf16_f32 v{d+1}, v{a+2}, v{a+3}")
    sMH = 58
    e(f"s_mov_b32 s{sMH}, 0xff00ff00\ns_mov_b32 s{sMH+1}, 0xff00ff00")
    for t in range(-1, 8): cvt(Kp(t), accK(t))
    e(f"s_mov_b64 exec, s[{sMH}:{sMH+1}]")
    for t in range(8): cvt(QP + 4*t, accQ(t))
    e(f"s_not_b64 exec, exec")
    for t in range(8): cvt(QP + 4*t + 2, accQ(t))
    e(f"s_mov_b64 exec, -1")
    for t in range(8):
        for r in range(2):
            e(f"v_cndmask_b32 v{Kp(t)+2+r}, v{Kp(t)+r}, v{Kp(t-1)+r}, s[{sMH}:{sMH+1}]")
    for t in range(8):
        e(f"v_mfma_f32_16x16x32_bf16 {vr(accQ(t),4)}, {vr(Kp(t),4)}, {vr(QP+4*t,4)}, {vr(vB0 if t == 0 else vB,4)}")
        cvt(Vp(t), accV(t))
    cvt(Vp(-1), accV(-1))
    MX = [accK(t) for t in range(8)]
    for t in range(8):
        S = accQ(t)
        e(f"v_max3_f32 v{MX[t]}, v{S}, v{S+1}, v{S+2}")
    for t in range(8):
        S = accQ(t)
        e(f"v_max_f32 v{MX[t]}, v{MX[t]}, v{S+3}")
    for h in range(2):
        m = MX[4*h:4*h+4]
        e(f"v_permlane32_swap_b32 v{m[0]}, v{m[1]}\nv_permlane32_swap_b32 v{m[2]}, v{m[3]}")
    for h in range(2):
        m = MX[4*h:4*h+4]
        e(f"v_max_f32 v{m[0]}, v{m[0]}, v{m[1]}\nv_max_f32 v{m[2]}, v{m[2]}, v{m[3]}")
    for h in range(2):
        m = MX[4*h:4*h+4]
        e(f"v_permlane16_swap_b32 v{m[0]}, v{m[2]}")
    for h in range(2):
        m = MX[4*h:4*h+4]
        e(f"v_max_f32 v{m[0]}, v{m[0]}, v{m[2]}")
    for h in range(2):
        m = MX[4*h:4*h+4]
        e(f"v_mul_f32 v{m[2]}, s{sSC}, -v{m[0]}\nv_mul_f32 v{m[0]}, s{sSC}, -v{m[0]}")
    for h in range(2):
        m = MX[4*h:4*h+4]
        e(f"v_permlane16_swap_b32 v{m[0]}, v{m[2]}")
    for h in range(2):
        m = MX[4*h:4*h+4]
        e(f"v_mov_b32 v{m[1]}, v{m[0]}\nv_mov_b32 v{m[3]}, v{m[2]}")
    for h in range(2):
        m = MX[4*h:4*h+4]
        e(f"v_permlane32_swap_b32 v{m[0]}, v{m[1]}\nv_permlane32_swap_b32 v{m[2]}, v{m[3]}")
    for t in range(8):
        S = accQ(t)
        for r in (0, 2):
            e(f"v_pk_fma_f32 v[{S+r}:{S+r+1}], v[{S+r}:{S+r+1}], s[{sSC}:{sSC+1}], v[{MX[t]}:{MX[t]+1}] op_sel_hi:[1,1,0]")
    for t in range(8):
        S = accQ(t)
        for r in range(4):
            e(f"v_exp_f32 v{S+r}, v{S+r}")
    e(f"s_mov_b32 exec_lo, 0\ns_mov_b32 exec_hi, 0x00ff00ff")
    for t in range(8): cvt(PP[t] + 2, accQ(t))
    e(f"s_not_b64 exec, exec")
    for t in range(8): cvt(PP[t], accQ(t))
    e(f"s_mov_b64 exec, -1")
    for t in range(8):
        e(f"v_mfma_f32_16x16x32_bf16 {vr(accV(t),4)}, {vr(vONE,4)}, {vr(PP[t],4)}, 0")
        e(f"v_mfma_f32_16x16x32_bf16 {vr(accK(t),4)}, {vr(Vp(t),4)}, {vr(PP[t],4)}, 0")
    sOB = sT + 5
    e(f"""
    s_lshl_b32 s{sOB}, s{sRT}, 7
    s_lshl_b32 s{sT}, s{sG}, 2
    s_add_u32 s{sOB}, s{sOB}, s{sT}
    s_add_u32 s{sOB}, s{sOB}, s{sWAVE}
    s_lshl_b32 s{sOB}, s{sOB}, 10
    v_lshlrev_b32 v{vT}, 4, v{vL}
    """)
    for t in range(8): e(f"v_rcp_f32 v{accV(t)}, v{accV(t)}")
    OP = QP
    for q in range(4):
        for t in (2*q, 2*q+1):
            O = accK(t)
            for r in (0, 2):
                e(f"v_pk_mul_f32 v[{O+r}:{O+r+1}], v[{O+r}:{O+r+1}], v[{accV(t)}:{accV(t)+1}] op_sel_hi:[1,0]")
        for t in (2*q, 2*q+1):
            cvt(OP + 2*t, accK(t))
        if q > 0: e(f"s_add_u32 s{sOB}, s{sOB}, 32768")
        e(f"v_permlane16_swap_b32 v{OP+4*q}, v{OP+4*q+2}\nv_permlane16_swap_b32 v{OP+4*q+1}, v{OP+4*q+3}")
        e(f"buffer_store_dwordx4 {vr(OP+4*q,4)}, v{vT}, {srd(sWS)}, s{sOB} offen {cfg.st_flags}")
    stamp()
    vA0, vA1, vSW, vOA = vT+1, vT+2, vT+3, vT+7
    e(f"""
    v_and_b32 v1, 1, v{vL}
    v_bfe_u32 v2, v{vL}, 1, 1
    v_lshl_add_u32 v1, v1, 1, v2
    v_bfe_u32 v2, v{vL}, 4, 1
    v_lshl_add_u32 v1, v2, 2, v1
    v_lshlrev_b32 v1, 3, v1
    v_bfe_u32 v2, v{vL}, 3, 1
    v_lshl_add_u32 v1, v2, 6, v1
    v_bfe_u32 v2, v{vL}, 2, 2
    v_lshl_add_u32 v1, v2, 7, v1
    v_lshrrev_b32 v2, 5, v{vL}
    v_lshl_add_u32 v1, v2, 10, v1
    v_add_u32 v{vA0}, {WO_L}, v1
    v_xor_b32 v{vA1}, 64, v{vA0}
    v_and_b32 v1, 7, v{vL}
    v_xor_b32 v1, v1, v2
    v_lshlrev_b32 v1, 4, v1
    v_and_b32 v2, 31, v{vL}
    v_lshl_add_u32 v1, v2, 7, v1
    s_lshl_b32 s{sT}, s{sWAVE}, 12
    s_add_u32 s{sT}, s{sT}, {STAGE}
    v_add_u32 v{vSW}, s{sT}, v1
    v_xor_b32 v{vSW+1}, 32, v{vSW}
    v_xor_b32 v{vSW+2}, 64, v{vSW}
    v_xor_b32 v{vSW+3}, 96, v{vSW}
    v_add_u32 v{vOA+1}, s{sT}, v{vT}
    v_lshrrev_b32 v2, 3, v{vL}
    v_and_b32 v1, 7, v{vL}
    v_xor_b32 v1, v1, v2
    v_lshlrev_b32 v1, 4, v1
    v_lshl_add_u32 v{vOA}, v2, 12, v1
    s_lshl_b32 s{sT+6}, s{sSEG}, 19
    s_lshl_b32 s{sT}, s{sWAVE}, 17
    s_add_u32 s{sT+6}, s{sT+6}, s{sT}
    s_lshl_b32 s{sT}, s{sPAR}, 11
    s_add_u32 s{sT+6}, s{sT+6}, s{sT}
    s_lshl_b32 s{sT}, s{sBR}, 10
    s_add_u32 s{sT+6}, s{sT+6}, s{sT}
    s_lshl_b32 s{sT}, s{sG}, 7
    s_add_u32 s{sT+6}, s{sT+6}, s{sT}
    s_lshl_b32 s{sOB}, s{sRT}, 2
    s_add_u32 s{sOB}, s{sOB}, s{sWAVE}
    s_lshl_b32 s{sOB}, s{sOB}, 15
    s_lshl_b32 s45, s{sRT}, 11
    s_add_u32 s45, s45, {WS_FLAG}
    s_lshl_b32 s46, s{sG}, 7
    s_lshl_b32 s47, s{sWAVE}, 2
    s_add_u32 s46, s46, s47
    s_add_u32 s46, s46, s45
    v_mov_b32 v3, s{sEP}
    v_lshrrev_b32 v4, 2, v{vL}
    v_and_b32 v5, 3, v{vL}
    v_lshlrev_b32 v5, 2, v5
    v_lshl_add_u32 v4, v4, 7, v5
    s_mov_b64 exec, 1
    s_waitcnt vmcnt(0)
    buffer_store_dword v3, off, {srd(sWS)}, s46 {cfg.fl_flags}
    s_mov_b64 exec, -1
    """)
    stamp()
    e("s_barrier")
    OF = 0
    ACC = 128
    WF = 160
    def wreads(hh):
        R = []
        for m in range(2):
            for j in range(2):
                d = WF + 8*(hh % 4) + 4*m + 2*j
                R.append(f"ds_read_b64_tr_b16 v[{d}:{d+1}], v{vA0+m} offset:{hh*2048 + j*512}")
        return R
    for hh in range(3):
        for r in wreads(hh): e(r)
    e(f"""
    s_mov_b32 exec_hi, 0
    s_mov_b32 s47, 0x400000
L_poll:
    buffer_load_dword v5, v4, {srd(sWS)}, s45 offen sc1
    s_sub_u32 s47, s47, 1
    s_cmp_eq_u32 s47, 0
    s_cbranch_scc1 L_pollx
    s_waitcnt vmcnt(0)
    v_cmp_ne_u32 vcc, v3, v5
    s_cbranch_vccnz L_poll
L_pollx:
    s_or_b32 s47, s{sG}, s{sWAVE}
    s_cbranch_scc1 L_noep
    s_mov_b64 exec, 1
    buffer_store_dword v3, off, {srd(sWS)}, s45 offset:1024
L_noep:
    s_mov_b64 exec, -1
    """)
    stamp()
    def oload(hh):
        if hh % 4 == 0 and hh > 0: e(f"s_add_u32 s{sOB}, s{sOB}, 4096")
        e(f"buffer_load_dwordx4 {vr(OF+4*hh,4)}, v{vT}, {srd(sWS)}, s{sOB} offen offset:{(hh%4)*1024} {cfg.ld_flags}")
    PRE = 12
    for hh in range(PRE): oload(hh)
    for hh in range(32):
        issued = min(32, hh + PRE)
        nl = 4 * min(2, 31 - hh)
        e(f"s_waitcnt vmcnt({issued-hh-1}) lgkmcnt({nl})")
        if hh == 0: stamp(); e(f"s_waitcnt lgkmcnt(0)") if cfg.stamps else None
        for m in range(2):
            cc = "0" if hh == 0 else vr(ACC+16*m, 16)
            e(f"v_mfma_f32_32x32x16_bf16 {vr(ACC+16*m,16)}, {vr(WF+8*(hh%4)+4*m,4)}, {vr(OF+4*hh,4)}, {cc}")
            if hh + 3 < 32:
                for r in wreads(hh + 3)[2*m:2*m+2]: e(r)
        if hh + PRE < 32: oload(hh + PRE)
    stamp()
    for m in range(2):
        for qq in range(2):
            a = ACC + 16*m + 8*qq; d = 8*m + 4*qq
            cvt(d, a); cvt(d + 2, a + 4)
            e(f"ds_write_b128 v{vSW + 2*m + qq}, {vr(d,4)}")
    e("s_waitcnt lgkmcnt(0)")
    for it in range(4):
        e(f"ds_read_b128 {vr(16+4*it,4)}, v{vOA+1} offset:{1024*it}")
    for it in range(4):
        e(f"s_waitcnt lgkmcnt({3-it})")
        if it > 0: e(f"s_add_u32 s{sT+6}, s{sT+6}, 32768")
        e(f"buffer_store_dwordx4 {vr(16+4*it,4)}, v{vOA}, {srd(sOUT)}, s{sT+6} offen {cfg.out_flags}")
    if cfg.stamps:
        stamp(); e("s_waitcnt vmcnt(0)"); stamp()
    dump_stamps(nst[0])
    if cfg.diag == 1:
        e('''s_waitcnt vmcnt(0)
L_spin:
        s_memrealtime s[96:97]
        s_waitcnt lgkmcnt(0)
        s_sub_u32 s96, s96, s98
        s_cmp_lt_u32 s96, 4000
        s_cbranch_scc1 L_spin''')
    if cfg.diag == 2:
        e('''s_waitcnt vmcnt(0)
L_spin:
        s_memtime s[96:97]
        s_waitcnt lgkmcnt(0)
        s_sub_u32 s96, s96, s94
        s_cmp_lt_u32 s96, 96000
        s_cbranch_scc1 L_spin''')
    if cfg.diag == 3:
        e('''s_waitcnt vmcnt(0)
        s_memrealtime s[92:93]
        s_waitcnt lgkmcnt(0)
        s_sub_u32 s92, s92, s98
        s_lshl_b32 s92, s92, 2
L_spin:
        s_memrealtime s[96:97]
        s_waitcnt lgkmcnt(0)
        s_sub_u32 s96, s96, s98
        s_cmp_lt_u32 s96, s92
        s_cbranch_scc1 L_spin''')
    e("L_end:\ns_endpgm")
    body, added = hz.fix("\n".join(L))
    hdr = open("cdna_kernels/" + NAME + ".s.ref").read().split("; Override")[0] if False else ""
    s = HDR.format(launch="; @launch grid=(256,1,1) block=(512,1,1) lds=163840") + kernel_head(K) + body + "\n"
    s += ".fill 64, 4, 0xbf800000\n"
    s += kernel_desc(K, 256, 256, 102)
    return s, added

if __name__ == "__main__":
    kw = {}
    for a in sys.argv[2:]:
        k, v = a.split("=")
        kw[k] = v if k.endswith("flags") or k.startswith("dma_") else int(v, 0)
    s, added = gen(Cfg(**kw))
    open(sys.argv[1], "w").write(s)
    print("nops added", added)
```

```python
import sys, struct
from asmlib import *
import hz
from sched import Item, schedule

def f2u(f): return struct.unpack("<I", struct.pack("<f", f))[0]

class Cfg:
    stamps = 0
    fast_flags = "nt"
    ffl_flags = ""
    ld_flags = "sc1"
    pt_flags = "sc1"
    out_flags = "nt"
    dma_x = ""
    dma_w = ""
    order = 3
    hzero = 1
    tabA = 0x67452310
    tabB = 0x75634021
    R0 = 13
    VS = 13
    warm = 1
    LF = 600
    prio = 3
    lprio = 0
    nofast = 0
    kp = 0
    xwA = 8
    xwB = 8
    xoA = 8
    xoB = 8
    nw = 0
    ac = 5
    b8 = -1
    wsh = 0
    diag = 0
    di = -1
    dc = -1
    dm = 4
    ht = 0
    pf0 = 2
    pf_flags = 'nt'
    pfi = -1
    hbad = 0
    nw1 = 0
    b9 = -1
    g3 = 1
    ap = 8
    lk = 10
    g2 = 1
    lp2 = 0
    nw0 = 0
    xa = -1
    xas = 0
    xap = 1
    xa_flags = ''
    sm = 0
    su = -1
    late = 1
    mf = 1
    dslat = 128
    verbose = 0
    om = 0
    dp = 4
    ddf_flags = ''
    scm = 0
    ds = 0
    ds_flags = 'sc1'
    wb = 0
    wbw = 1
    def __init__(self, **kw):
        for k, v in kw.items():
            assert hasattr(self, k), k
            setattr(self, k, v)

HALO = 0; SLOT0 = 8192; SLOTSZ = 40960; WO_L = 98304; STAGE = 8192
WS_FLAG = 8 << 20; WS_E = WS_FLAG + 65536; WS_A = WS_FLAG + 131072; WS_STAMP = 16 << 20; WS_D = WS_FLAG + 196608
K1 = 0x9e3779b9; K2 = 0x51ed270b
sX, sW, sWO, sOUT, sWS = 24, 28, 32, 36, 40
sEP = 44
sWAVE, sRT, sG, sBR, sPAR, sSEG, sCLS = 48, 49, 50, 51, 52, 53, 54
sT = 55
sST = 64
NST = 12
def srd(r): return f"s[{r}:{r+3}]"
def vr(a, n): return f"v[{a}:{a+n-1}]" if n > 1 else f"v{a}"

def gen(cfg):
    K = NAME + "_kernel"
    L = []
    def e(s):
        for ln in s.strip("\n").split("\n"):
            if ln.strip(): L.append(ln.strip() if ln.strip().endswith(":") else "    " + ln.strip())
    nst = [0]
    def stamp_text():
        i = nst[0]; nst[0] += 1
        assert i < NST
        return f"{'s_memrealtime' if cfg.stamps == 2 else 's_memtime'} s[{sST+2*i}:{sST+2*i+1}]"
    def stamp():
        if cfg.stamps: e(stamp_text())
    dcount = [0]
    def dump_stamps(n, ld=False):
        if not cfg.stamps: return
        if cfg.di >= 0 or cfg.dc >= 0:
            i = cfg.di if ld else cfg.dc
            if i < 0: return
            dcount[0] += 1
            e(f"""
            s_waitcnt vmcnt(0) lgkmcnt(0)
            s_sub_u32 s92, s{sST+2*i}, s{sST}
            s_mul_i32 s92, s92, {cfg.dm}
            s_min_u32 s92, s92, 40000
            s_add_u32 s92, s92, 4000
L_dd{dcount[0]}:
            s_memrealtime s[96:97]
            s_waitcnt lgkmcnt(0)
            s_sub_u32 s96, s96, s{sST}
            s_cmp_lt_u32 s96, s92
            s_cbranch_scc1 L_dd{dcount[0]}
            """)
            return
        e("s_memrealtime s[96:97]\ns_waitcnt lgkmcnt(0)")
        e("v_mov_b32 v16, s98\nv_mov_b32 v17, s96")
        e(f"s_getreg_b32 s{sT}, hwreg(HW_REG_XCC_ID, 0, 4)\nv_mov_b32 v18, s{sT}")
        for i in range(1, 14):
            if i < n:
                e(f"s_sub_u32 s{sT}, s{sST+2*i}, s{sST}\nv_mov_b32 v{18+i}, s{sT}")
            elif i == 13 and ld:
                e(f"s_sub_u32 s{sT}, 0x10000000, s47\nv_mov_b32 v{18+i}, s{sT}")
            else:
                e(f"v_mov_b32 v{18+i}, 0")
        e(f"""s_lshl_b32 s{sT}, s2, 3
        s_add_u32 s{sT}, s{sT}, s{sWAVE}
        s_lshl_b32 s{sT}, s{sT}, 6
        s_add_u32 s{sT}, s{sT}, {WS_STAMP}
        s_mov_b64 exec, 1
        v_mov_b32 v1, 0""")
        for i in range(4):
            e(f"buffer_store_dwordx4 v[{16+4*i}:{19+4*i}], v1, {srd(sWS)}, s{sT} offen offset:{16*i}")
        e("s_waitcnt vmcnt(0)")

    stamp()
    if cfg.stamps: e("s_memrealtime s[98:99]")
    e(f"""
    s_cmp_ge_u32 s2, 256
    s_cbranch_scc1 L_end
    s_load_dwordx16 s[4:19], s[0:1], 0
    s_load_dwordx2 s[20:21], s[0:1], 64
    s_getpc_b64 s[22:23]
L_pc:
    s_bfe_u32 s{sT+2}, s2, 0x20003
    s_mul_i32 s{sT+2}, s{sT+2}, L_w1-L_w0
    v_lshlrev_b32 v1, 6, v0
    v_min_u32 v1, L_w1-L_pc, v1
    v_mov_b32 v2, s{sT+2}
    v_cmp_lt_u32 vcc, L_w0-L_pc, v1
    v_lshrrev_b32 v3, 6, v0
    s_and_b32 s{sT}, s2, 7
    v_cndmask_b32 v2, 0, v2, vcc
    v_add_u32 v1, v1, v2
    global_load_dword v255, v1, s[22:23]
    s_lshr_b32 s{sT+1}, s2, 3
    v_readfirstlane_b32 s{sWAVE}, v3
    v_and_b32 v0, 63, v0
    s_lshr_b32 s{sRT}, s{sT+1}, 3
    s_lshl_b32 s{sT}, s{sT}, 2
    s_add_u32 s{sRT}, s{sRT}, s{sT}
    s_and_b32 s{sG}, s{sT+1}, 7
    s_lshr_b32 s{sBR}, s{sRT}, 4
    s_bfe_u32 s{sPAR}, s{sRT}, 0x10003
    s_and_b32 s{sSEG}, s{sRT}, 7
    s_cmp_ge_u32 s{sWAVE}, 4
    s_cbranch_scc0 L_compute
    """)
    sLW, sXB, sWB, sKO, sWOFF, sHOFF = sT, sT+1, sT+2, sT+3, sT+4, sT+5
    vX, vW, vH = 8, 12, 14
    sMX, sMW, sA, sB, sHM = 88, 92, 94, 95, 100
    if cfg.lprio: e(f"s_setprio {cfg.lprio}")
    e(f"""
    s_add_u32 s{sCLS}, s{sRT}, s{sG}
    s_and_b32 s{sCLS}, s{sCLS}, 1
    s_lshr_b32 s{sA}, s{sG}, 1
    s_bfe_u32 s{sB}, s{sRT}, 0x10001
    s_cmp_eq_u32 s{sCLS}, 0
    s_mov_b32 s{sCLS}, {cfg.tabA}
    s_cselect_b32 s{sCLS}, s{sCLS}, {cfg.tabB}
    s_sub_u32 s{sLW}, s{sWAVE}, 4
    v_lshrrev_b32 v3, 3, v0
    v_and_b32 v4, 7, v0
    v_lshrrev_b32 v5, 4, v0
    v_xor_b32 v6, v4, v5
    v_lshlrev_b32 v6, 4, v6
    v_lshl_add_u32 v6, v3, 11, v6
    s_lshl_b32 s{sT+6}, s{sSEG}, 18
    s_lshl_b32 s{sT+7}, s{sPAR}, 10
    s_add_u32 s{sT+6}, s{sT+6}, s{sT+7}
    s_sub_u32 s{sHOFF}, s{sT+6}, 16384
    s_cmp_eq_u32 s{sSEG}, 0
    s_cselect_b32 s{sHOFF}, 0x40000000, s{sHOFF}
    s_lshl_b32 s{sT+7}, s{sLW}, 16
    s_add_u32 s{sT+6}, s{sT+6}, s{sT+7}
    s_lshl_b32 s{sXB}, s{sLW}, 12
    """)
    for j in range(4):
        e(f"""
        s_add_u32 s{sKO}, s{sA}, {j}
        s_and_b32 s{sKO}, s{sKO}, 3
        s_lshl_b32 s{sMX+j}, s{sKO}, 10
        s_add_u32 s{sMX+j}, s{sMX+j}, s{sXB}
        s_and_b32 s{sT+7}, s{sKO}, 1
        s_lshl_b32 s{sT+7}, s{sT+7}, 6
        s_lshl_b32 s{sKO}, s{sKO}, 14
        s_add_u32 s{sKO}, s{sKO}, s{sT+6}
        v_xor_b32 v{vX+j}, s{sT+7}, v6
        v_add_u32 v{vX+j}, s{sKO}, v{vX+j}
        """)
    e(f"""
    v_lshlrev_b32 v7, 1, v5
    v_xor_b32 v6, v4, v7
    v_lshlrev_b32 v6, 4, v6
    v_lshl_add_u32 v6, v3, 11, v6
    v_add_u32 v{vH}, s{sHOFF}, v6
    v_and_b32 v7, 2, v7
    v_xor_b32 v7, v7, v4
    v_lshlrev_b32 v7, 4, v7
    v_mul_u32_u24 v6, 3072, v3
    v_add_u32 v7, v7, v6
    s_mul_i32 s{sT+6}, s{sLW}, 49152
    s_lshl_b32 s{sT+7}, s{sG}, 7
    s_add_u32 s{sT+6}, s{sT+6}, s{sT+7}
    s_mul_i32 s{sWB}, s{sLW}, 6144
    """)
    for m in range(2):
        e(f"""
        s_xor_b32 s{sKO}, s{sB}, {m}
        s_mul_i32 s{sMW+m}, s{sKO}, 3072
        s_add_u32 s{sMW+m}, s{sMW+m}, s{sWB}
        s_lshl_b32 s{sT+7}, s{sKO}, 6
        s_mul_i32 s{sKO}, s{sKO}, 24576
        s_add_u32 s{sKO}, s{sKO}, s{sT+6}
        v_xor_b32 v{vW+m}, s{sT+7}, v7
        v_add_u32 v{vW+m}, s{sKO}, v{vW+m}
        """)
    e(f"""
    s_lshl_b32 s{sT+6}, s{sLW}, 4
    s_lshl_b64 s[{sHM}:{sHM+1}], 0xffff, s{sT+6}
    s_waitcnt lgkmcnt(0)
    """)
    stamp()
    e(f"""
    s_cmp_eq_u32 s{sBR}, 0
    s_cselect_b32 s{sX}, s4, s10
    s_cselect_b32 s{sX+1}, s5, s11
    s_mov_b32 s{sX+2}, 0x200000
    s_mov_b32 s{sX+3}, 0x20000
    s_cselect_b32 s{sW}, s6, s12
    s_cselect_b32 s{sW+1}, s7, s13
    s_mov_b32 s{sW+2}, 0x180000
    s_mov_b32 s{sW+3}, 0x20000
    s_cselect_b32 s{sWO}, s8, s14
    s_cselect_b32 s{sWO+1}, s9, s15
    s_mov_b32 s{sWO+2}, 0x80000
    """)
    def issue(c):
        slot = SLOT0 + (c % 3) * SLOTSZ
        e(f"""
        s_bfe_u32 s{sT+6}, s{sCLS}, {0x30000 + 4*c}
        s_add_u32 m0, s{sMW}, {slot + 16384}
        s_mul_i32 s{sWOFF}, s{sT+6}, 196608
        s_lshl_b32 s{sKO}, s{sT+6}, 7
        """)
        def wl(m):
            for p in range(3):
                e(f"buffer_load_dwordx4 v{vW+m}, {srd(sW)}, s{sWOFF} offen offset:{1024*p} {cfg.dma_w} lds")
        def xl(j):
            e(f"s_add_u32 m0, s{sMX+j}, {slot}")
            e(f"buffer_load_dwordx4 v{vX+j}, {srd(sX)}, s{sKO} offen {cfg.dma_x} lds")
        wl(0); xl(0)
        e(f"s_mov_b32 m0, {HALO + c*1024}\ns_mov_b64 exec, s[{sHM}:{sHM+1}]")
        e(f"buffer_load_dwordx4 v{vH}, {srd(sX)}, s{sKO} offen {cfg.dma_x} lds")
        e(f"s_add_u32 m0, s{sMW+1}, {slot + 16384}\ns_mov_b64 exec, -1")
        wl(1); xl(1); xl(2); xl(3)
    OF = 0; ACC = 128; WF = 160
    vA = 224
    vO0, vO1, vPO, vP = 232, 233, 234, 235
    vSW, vSR, vOA = 236, 240, 241
    vD = 242
    vWO = 246
    sSO = 12
    sFL, sOO, sSP = 45, 46, 47
    sAV = 18
    issue(0)
    e(f"""
    s_mov_b32 s{sWO+3}, 0x20000
    s_mov_b32 s{sWS}, s20
    s_mov_b32 s{sWS+1}, s21
    s_mov_b32 s{sWS+2}, 0x10000000
    s_mov_b32 s{sWS+3}, 0x20000
    s_mov_b32 s{sOUT}, s16
    s_mov_b32 s{sOUT+1}, s17
    s_mov_b32 s{sOUT+2}, 0x400000
    s_mov_b32 s{sOUT+3}, 0x20000
    """)
    vXw, vXo = 250, 252
    sXw, sXo = 16, 17
    e(f"""
    v_lshlrev_b32 v{vXw}, 6, v0
    v_and_b32 v1, 15, v0
    v_lshlrev_b32 v1, 6, v1
    v_lshrrev_b32 v2, 4, v0
    v_lshl_add_u32 v{vXo}, v2, 15, v1
    s_cmp_eq_u32 s{sCLS}, {cfg.tabA}
    s_cselect_b32 s{sT+6}, 0, 0x40000000
    s_cselect_b32 s{sT+7}, 0x40000000, 0
    v_add_u32 v{vXw+1}, s{sT+7}, v{vXw}
    v_add_u32 v{vXo+1}, s{sT+7}, v{vXo}
    v_add_u32 v{vXw}, s{sT+6}, v{vXw}
    v_add_u32 v{vXo}, s{sT+6}, v{vXo}
    s_and_b32 s{sXw}, s{sRT}, 3
    s_lshl_b32 s{sXw}, s{sXw}, 3
    s_add_u32 s{sXw}, s{sXw}, s{sG}
    s_lshl_b32 s{sXw}, s{sXw}, 2
    s_add_u32 s{sXw}, s{sXw}, s{sLW}
    s_lshl_b32 s{sXw}, s{sXw}, 12
    s_lshl_b32 s{sXo}, s{sRT}, 5
    s_add_u32 s{sXo}, s{sXo}, s{sG}
    s_lshl_b32 s{sXo}, s{sXo}, 2
    s_add_u32 s{sXo}, s{sXo}, s{sLW}
    s_lshl_b32 s{sXo}, s{sXo}, 10
    """)
    if cfg.xwA == cfg.xwB: e(f"v_min_u32 v{vXw}, v{vXw}, v{vXw+1}")
    if cfg.xoA == cfg.xoB: e(f"v_min_u32 v{vXo}, v{vXo}, v{vXo+1}")
    vOi = [232, 243, 244, 245, 233, 254, 251, 253]; vDV = 255; vXq = 253; sXq = 96; sDF = 97; sDS = 3
    if cfg.om:
        assert cfg.xwA == cfg.xwB and cfg.xoA == cfg.xoB and cfg.xoA != 9 and cfg.g3 and not cfg.ht and not cfg.diag
        e(f"""
        s_and_b32 s{sT+6}, s{sG}, 3
        v_add_u32 v3, s{sT+6}, v2
        v_and_b32 v3, 3, v3
        v_lshl_add_u32 v{vXo}, v3, 15, v1
        v_lshl_add_u32 v3, v3, 17, v1
        v_lshl_add_u32 v{vXq}, v2, 15, v3
        v_cmp_gt_u32 vcc, {cfg.om}, v2
        v_bfrev_b32 v3, 2
        v_cndmask_b32 v{vXo}, v{vXo}, v3, vcc
        v_cndmask_b32 v{vXq}, v3, v{vXq}, vcc
        s_lshl_b32 s{sXq}, s{sSEG}, 7
        s_and_b32 s{sT+6}, s{sG}, 4
        s_add_u32 s{sXq}, s{sXq}, s{sT+6}
        s_add_u32 s{sXq}, s{sXq}, s{sLW}
        s_lshl_b32 s{sXq}, s{sXq}, 1
        s_add_u32 s{sXq}, s{sXq}, s{sPAR}
        s_lshl_b32 s{sXq}, s{sXq}, 1
        s_add_u32 s{sXq}, s{sXq}, s{sBR}
        s_lshl_b32 s{sXq}, s{sXq}, 10
        """)
    def acheck():
        if cfg.diag:
            e(f"""
            s_mov_b32 s3, 0
            s_mov_b32 s{sSP}, 100000
            s_getreg_b32 s{sWOFF}, hwreg(HW_REG_XCC_ID, 0, 4)
            s_sub_u32 s{sWOFF}, s{sAV}, s{sWOFF}
L_dg:
            s_waitcnt lgkmcnt(0)
            s_mov_b32 s{sKO}, 0
            """)
            for i in range(8):
                e(f"s_sub_u32 s{sT+7}, s{4+i}, s{sWOFF}\ns_or_b32 s{sKO}, s{sKO}, s{sT+7}")
            e(f"""
            s_cmp_lt_u32 s{sKO}, 16
            s_cbranch_scc1 L_dgx
            s_mov_b32 s3, 800
            s_sub_u32 s{sSP}, s{sSP}, 1
            s_cbranch_scc1 L_dgx
            s_add_u32 s{sT+6}, s19, {WS_A}
            s_load_dwordx8 s[4:11], s[20:21], s{sT+6} glc
            s_branch L_dg
L_dgx:
            """)
        e(f"""
        s_mov_b32 s19, s{sAV}
        s_waitcnt lgkmcnt(0)
        s_xor_b64 s[4:5], s[4:5], s[18:19]
        s_xor_b64 s[6:7], s[6:7], s[18:19]
        s_xor_b64 s[8:9], s[8:9], s[18:19]
        s_xor_b64 s[10:11], s[10:11], s[18:19]
        s_or_b64 s[4:5], s[4:5], s[6:7]
        s_or_b64 s[8:9], s[8:9], s[10:11]
        s_or_b64 s[4:5], s[4:5], s[8:9]
        s_cselect_b32 s4, 0, {0 if cfg.nofast else 1}
        {"s_cselect_b32 s5, 1600, 0" if cfg.diag else ""}
        {"s_add_u32 s3, s3, s5" if cfg.diag else ""}
        v_mov_b32 v1, 0
        v_mov_b32 v2, s4
        ds_write_b32 v1, v2
        """)
        if cfg.b8 < 0:
            e(f"s_lshl_b32 s5, s{sLW}, 2\nv_mov_b32 v3, s5\nds_write_b32 v3, v1 offset:16")
    def xat(pos):
        n = 0
        for (pa, pb, v, sr, so, fl) in ((cfg.xwA, cfg.xwB, vXw, sWO, sXw, ""), (cfg.xoA, cfg.xoB, vXo, sWS, sXo, cfg.pt_flags)):
            if pa == pos and v == vXo and cfg.om:
                e(f"buffer_load_dword v{vOA+1}, v{vXq}, {srd(sOUT)}, s{sXq} offen {fl}"); n += 1
                if cfg.om < 4: e(f"buffer_load_dword v{v}, v{v}, {srd(sr)}, s{so} offen {fl}"); n += 1
            elif pa == pos:
                e(f"buffer_load_dword v{v}, v{v}, {srd(sr)}, s{so} offen {fl}"); n += 1
            elif pb == pos:
                e(f"buffer_load_dword v{v+1}, v{v+1}, {srd(sr)}, s{so} offen {fl}"); n += 1
        return n
    for c in range(8):
        nX = 0
        if c + 1 <= 7 and not (c == 0 and cfg.su < 0):
            nX = xat(c + 1); issue(c + 1)
            if c == 6: nX7 = xat(10); nX += nX7
        if c == 0:
            e(f"""
            s_lshl_b32 s19, s{sRT}, 7
            s_add_u32 s{sT+6}, s19, {WS_E}
            s_load_dword s{sEP}, s[20:21], s{sT+6}
            """)
        if c == max(cfg.su, 0):
            e(f"""
            v_and_b32 v1, 1, v0
            v_bfe_u32 v2, v0, 1, 1
            v_lshl_add_u32 v1, v1, 1, v2
            v_bfe_u32 v2, v0, 4, 1
            v_lshl_add_u32 v1, v2, 2, v1
            v_lshlrev_b32 v1, 3, v1
            v_bfe_u32 v2, v0, 3, 1
            v_lshl_add_u32 v1, v2, 6, v1
            v_bfe_u32 v2, v0, 2, 2
            v_lshl_add_u32 v1, v2, 7, v1
            v_lshrrev_b32 v2, 5, v0
            v_lshl_add_u32 v1, v2, 10, v1
            s_lshl_b32 s{sOO}, s{sRT}, 2
            s_add_u32 s{sOO}, s{sOO}, s{sLW}
            s_lshl_b32 s{sFL}, s{sOO}, 7
            s_add_u32 s{sFL}, s{sFL}, {WS_FLAG}
            s_lshl_b32 s{sOO}, s{sOO}, 15
            """)
            for r in range(4):
                e(f"""
                s_sub_u32 s{sT+6}, s{sLW}, {r}
                s_and_b32 s{sT+6}, s{sT+6}, 3
                s_lshl_b32 s{sT+7}, s{sT+6}, 12
                s_add_u32 s{sSO+r}, s{sT+7}, s{sOO}
                s_lshl_b32 s{sT+6}, s{sT+6}, 13
                s_add_u32 s{sT+6}, s{sT+6}, {WO_L}
                v_add_u32 v{vA+2*r}, s{sT+6}, v1
                v_xor_b32 v{vA+2*r+1}, 64, v{vA+2*r}
                """)
        if c == max(cfg.su, 0) * 2:
            e(f"""
            v_lshlrev_b32 v{vO0}, 4, v0
            v_add_u32 v{vO1}, 16384, v{vO0}
            v_and_b32 v1, 7, v0
            v_lshlrev_b32 v{vPO}, 2, v1
            v_lshrrev_b32 v2, 5, v0
            v_xor_b32 v1, v1, v2
            v_lshlrev_b32 v1, 4, v1
            v_and_b32 v2, 31, v0
            v_lshl_add_u32 v1, v2, 7, v1
            s_lshl_b32 s{sT+6}, s{sLW}, 12
            s_add_u32 s{sT+6}, s{sT+6}, {STAGE}
            v_add_u32 v{vSW}, s{sT+6}, v1
            v_xor_b32 v{vSW+1}, 32, v{vSW}
            v_xor_b32 v{vSW+2}, 64, v{vSW}
            v_xor_b32 v{vSW+3}, 96, v{vSW}
            v_add_u32 v{vSR}, s{sT+6}, v{vO0}
            v_lshrrev_b32 v2, 3, v0
            v_and_b32 v1, 7, v0
            v_xor_b32 v1, v1, v2
            v_lshlrev_b32 v1, 4, v1
            v_lshl_add_u32 v{vOA}, v2, 12, v1
            s_lshl_b32 s{sOO}, s{sSEG}, 19
            s_lshl_b32 s{sT+6}, s{sLW}, 17
            s_add_u32 s{sOO}, s{sOO}, s{sT+6}
            s_lshl_b32 s{sT+6}, s{sPAR}, 11
            s_add_u32 s{sOO}, s{sOO}, s{sT+6}
            s_lshl_b32 s{sT+6}, s{sBR}, 10
            s_add_u32 s{sOO}, s{sOO}, s{sT+6}
            """)
            for r in range(cfg.om): e(f"s_add_u32 s{sSO+r}, s{sOO}, {32768*r}")
            if cfg.om:
                for i in (1, 2, 3, 5, 6): e(f"v_add_u32 v{vOi[i]}, {4096*i}, v{vO0}")
                e(f"""
                s_add_u32 s{sDF}, s{sFL}, {WS_D - WS_FLAG}
                s_lshl_b32 s{sDS}, s{sG}, 2
                s_add_u32 s{sDS}, s{sDS}, s{sDF}
                """)
            e(f"""
            s_lshl_b32 s{sT+6}, s{sG}, 7
            s_add_u32 s{sOO}, s{sOO}, s{sT+6}
            """)
        if c == max(cfg.su, 0) * 3:
            e(f"""
            v_lshrrev_b32 v3, 3, v0
            v_and_b32 v4, 7, v0
            v_lshrrev_b32 v5, 2, v0
            v_and_b32 v5, 4, v5
            v_xor_b32 v4, v4, v5
            v_lshlrev_b32 v4, 4, v4
            v_lshl_add_u32 v4, v3, 10, v4
            s_lshl_b32 s{sT+6}, s{sLW}, 17
            s_lshl_b32 s{sT+7}, s{sG}, 7
            s_add_u32 s{sT+6}, s{sT+6}, s{sT+7}
            v_add_u32 v{vWO}, s{sT+6}, v4
            v_add_u32 v{vWO+1}, 7168, v{vWO}
            v_add_u32 v{vWO+2}, 14336, v{vWO}
            v_add_u32 v{vWO+3}, 21504, v{vWO}
            """)
        if c == 0 and cfg.su < 0: issue(1)
        if c == 3:
            e(f"""
            s_getreg_b32 s{sAV}, hwreg(HW_REG_XCC_ID, 0, 4)
            s_waitcnt lgkmcnt(0)
            s_add_u32 s{sAV}, s{sAV}, s{sEP}
            s_add_u32 s{sAV}, s{sAV}, {K2}
            s_add_u32 s{sEP}, s{sEP}, {K1}
            """)
            if cfg.om: e(f"v_mov_b32 v{vDV}, s{sEP}")
        if c == cfg.ac:
            e(f"""
            s_add_u32 s{sT+6}, s19, {WS_A}
            s_load_dwordx8 s[4:11], s[20:21], s{sT+6} glc
            """)
        if c == 6:
            if not cfg.late: acheck()
            e(f"""
            s_lshl_b32 s{sXB}, s{sLW}, 14
            s_waitcnt vmcnt({11 + nX}) {'' if cfg.late else 'lgkmcnt(0)'}
            """)
            nX7 += xat(11)
            e("s_barrier")
            stamp()
        elif c == 7:
            nX = xat(8) + nX7
            def wo(i):
                gq, j = i >> 2, i & 3
                if j == 0 and not cfg.wsh: e(f"s_add_u32 m0, s{sXB}, {WO_L + 4096*gq}\ns_mov_b32 s{sKO}, {32768*gq}")
                if j == 0 and cfg.wsh:
                    e(f"""
                    s_add_u32 s{sKO}, s{sRT}, {gq}
                    s_and_b32 s{sKO}, s{sKO}, 3
                    s_lshl_b32 s{sWOFF}, s{sKO}, 12
                    s_add_u32 s{sWOFF}, s{sWOFF}, s{sXB}
                    s_add_u32 m0, s{sWOFF}, {WO_L}
                    s_lshl_b32 s{sKO}, s{sKO}, 15
                    """)
                e(f"buffer_load_dwordx4 v{vWO+j}, {srd(sWO)}, s{sKO} offen offset:{1024*j} lds")
            for i in range(cfg.nw0): wo(i)
            e(f"s_waitcnt vmcnt({nX + cfg.nw0})")
            if cfg.sm == 1: stamp()
            for i in range(cfg.nw0, cfg.nw): wo(i)
            if cfg.late:
                acheck(); e("s_waitcnt lgkmcnt(0)")
            if cfg.sm == 1: stamp()
            e("s_barrier")
            stamp()
            for i in range(cfg.nw, cfg.nw1): wo(i)
            if cfg.b9 >= 0: e("s_barrier")
            for i in range(max(cfg.nw, cfg.nw1), 16): wo(i)
            nX = xat(9)
            e(f"buffer_load_dword v{vP}, v{vPO}, {srd(sWS)}, s{sFL} offen sc1")
            e(f"s_mov_b32 s{sSP}, {0x10000000 if cfg.stamps else 0x200000}\ns_waitcnt vmcnt({nX+1})")
        else:
            e(f"s_waitcnt vmcnt({11+nX})\ns_barrier")
            if c == 0: stamp()
    stamp()
    if cfg.lp2: e(f"s_setprio {cfg.lp2}")
    if cfg.b8 < 0: e("v_mov_b32 v2, 1\nds_write_b32 v3, v2 offset:16")
    def lsync():
        if cfg.b8 >= 0: e("s_barrier"); return
        e(f"""
L_ls:
        ds_read_b128 v[{WF}:{WF+3}], v{vD} offset:16
        s_sub_u32 s{sSP}, s{sSP}, 1
        s_cmp_lt_i32 s{sSP}, 0
        s_cbranch_scc1 L_lsx
        s_waitcnt lgkmcnt(0)
        v_and_b32 v{WF}, v{WF}, v{WF+1}
        v_and_b32 v{WF+2}, v{WF+2}, v{WF+3}
        v_and_b32 v{WF}, v{WF}, v{WF+2}
        v_cmp_eq_u32 vcc, 0, v{WF}
        s_cbranch_vccnz L_ls
L_lsx:
        """)
    e(f"v_mov_b32 v{vD}, 0")
    if cfg.om: e(f"v_add_u32 v{vOi[7]}, {4096*7}, v{vO0}")
    def wrd(H):
        r, i = H >> 3, H & 7
        R = []
        for m in range(2):
            for j in range(2):
                d = WF + 8*i + 4*m + 2*j
                R.append(f"ds_read_b64_tr_b16 v[{d}:{d+1}], v{vA+2*r+m} offset:{(i>>2)*32768 + (i&3)*2048 + j*512}")
        return R
    def oload(H):
        r, i = H >> 3, H & 7
        if r < cfg.om: return f"buffer_load_dwordx4 {vr(OF+4*H,4)}, v{vOi[i]}, {srd(sOUT)}, s{sSO+r} offen {cfg.ld_flags}"
        return f"buffer_load_dwordx4 {vr(OF+4*H,4)}, v{vO0 + (i>>2)}, {srd(sWS)}, s{sSO+r} offen offset:{(i&3)*1024} {cfg.ld_flags}"
    def poll(r): return f"buffer_load_dword v{vP}, v{vPO}, {srd(sWS)}, s{sFL} offen offset:{32*r} sc1"
    vq = []
    dq = []
    def ivm(tag, text): e(text); vq.append(tag)
    def ids(tag, text):
        if len(dq) >= 14:
            e(f"s_waitcnt lgkmcnt({cfg.lk})"); del dq[:len(dq) - cfg.lk]
        e(text); dq.append(tag)
    def wait(vt=None, dt=None):
        parts = []
        if vt is not None and vt in vq:
            k = len(vq) - 1 - max(i for i, t in enumerate(vq) if t == vt)
            parts.append(f"vmcnt({k})"); del vq[:len(vq) - k]
        if dt is not None and dt in dq:
            k = len(dq) - 1 - max(i for i, t in enumerate(dq) if t == dt)
            k2 = min(k, 15)
            parts.append(f"lgkmcnt({k2})"); del dq[:len(dq) - k2]
        if parts: e("s_waitcnt " + " ".join(parts))
    def check(r):
        wait(vt=("P", r))
        e(f"""
L_chk{r}:
        v_cmp_ne_u32 vcc, s{sEP}, v{vP}
        s_cbranch_vccnz L_spin{r}
L_ok{r}:
        """)
    def stage_loads(r):
        T = [(("L", 8*r + i), oload(8*r + i)) for i in range(8)]
        if r < 3: T.insert(cfg.kp, (("P", r + 1), poll(r + 1)))
        return T
    if cfg.g2 == 0:
        lsync()
        ivm(("P", 0), poll(0))
        for H in range(7):
            for x in wrd(H): ids(H, x)
        check(0)
        stamp()
        for t, x in stage_loads(0): ivm(t, x)
    else:
        vq.append(("P", 0))
        e("L_again:")
        check(0)
        stamp()
        for t, x in stage_loads(0): ivm(t, x)
        lsync()
        for H in range(7):
            for x in wrd(H): ids(H, x)
    alts = []; dstub = []
    dpoll = f"buffer_load_dword v{vP}, v{vPO}, {srd(sWS)}, s{sDF} offen sc1"
    def dsig():
        k = len(dstub); st = f"buffer_store_dword v{vDV}, off, {srd(sWS)}, s{sDS}"
        ivm(("D",), f"s_cmp_eq_u32 s4, 0\ns_mov_b64 exec, 1\ns_cbranch_scc1 L_dst{k}\n{st} {cfg.ddf_flags}\nL_dsb{k}:\ns_mov_b64 exec, -1")
        dstub.append(f"L_dst{k}:\n{st} sc1\ns_branch L_dsb{k}")
    def heads(r, pending, per, alt=False):
        for i in range(8):
            H = 8*r + i
            wait(vt=("L", H), dt=H)
            for m in range(2):
                cc = "0" if H == 0 else vr(ACC+16*m, 16)
                e(f"v_mfma_f32_32x32x16_bf16 {vr(ACC+16*m,16)}, {vr(WF+8*i+4*m,4)}, {vr(OF+4*H,4)}, {cc}")
                if cfg.om and m == 0 and H == 8*cfg.om - 1 and not alt: dsig()
                if cfg.om and m == 1 and H == 24 + cfg.dp: ivm(("DP",), dpoll)
                if cfg.ht and m == 0 and i & 1:
                    c3 = "0" if H == 1 else f"v{vD+1}"
                    e(f"v_max3_u32 v{vD+1}, v{OF+4*H-4}, v{OF+4*H}, {c3}")
                if cfg.ht and m == 1 and H == 31:
                    e(f"v_cmp_eq_u32 vcc, -1, v{vD+1}\ns_cbranch_vccnz L_redo\nL_redox:")
                for _ in range(per[2*i + m]):
                    if pending:
                        t, x = pending.pop(0); ivm(t, x)
                if H + 7 < 32:
                    for x in wrd(H + 7)[2*m:2*m+2]: ids(H + 7, x)
        assert not pending
    if cfg.g3:
        assert cfg.kp == 0
        for r in range(4):
            if r < 3:
                wait(vt=("P", r + 1))
                e(f"v_cmp_ne_u32 vcc, s{sEP}, v{vP}\ns_cbranch_vccnz L_alt{r}")
                v0, d0 = list(vq), list(dq)
                pend = stage_loads(r + 1)
                t, x = pend.pop(0); ivm(t, x)
                heads(r, pend, [[1, 0]*8, [1, 1, 1, 0]*4, [1]*16][cfg.g3 - 1])
                e(f"L_join{r}:")
                if cfg.sm == 0 or r == 2: stamp()
                v1, d1 = list(vq), list(dq)
                mark = len(L)
                vq[:] = v0; dq[:] = d0
                e(f"L_alt{r}:")
                if cfg.stamps: e(f"s_sub_u32 s{sSP}, s{sSP}, {0x100 << (4*r)}")
                heads(r, [(("P", r + 1), poll(r + 1))], [0]*cfg.ap + [1]*16, True)
                check(r + 1)
                for t, x in stage_loads(r + 1): ivm(t, x)
                if r + 1 == cfg.om: dsig()
                e(f"s_branch L_join{r}")
                assert dq == d1 and vq[-len(v1):] == v1, (vq, v1)
                alts.append(L[mark:]); del L[mark:]
                vq[:] = v1
            else:
                heads(r, [], [0]*16)
    else:
        pending = []
        for H in range(32):
            r, i = H >> 3, H & 7
            if i == cfg.kp and r < 3:
                check(r + 1)
                if cfg.sm == 0 or r == 2: stamp()
                pending = stage_loads(r + 1)
                for _ in range(3):
                    t, x = pending.pop(0); ivm(t, x)
            wait(vt=("L", H), dt=H)
            for m in range(2):
                cc = "0" if H == 0 else vr(ACC+16*m, 16)
                e(f"v_mfma_f32_32x32x16_bf16 {vr(ACC+16*m,16)}, {vr(WF+8*i+4*m,4)}, {vr(OF+4*H,4)}, {cc}")
                if H + 7 < 32:
                    for x in wrd(H + 7)[2*m:2*m+2]: ids(H + 7, x)
                for _ in range(2):
                    if pending:
                        t, x = pending.pop(0); ivm(t, x)
    stamp()
    cvt = lambda d, a: e(f"v_cvt_pk_bf16_f32 v{d}, v{a}, v{a+1}\nv_cvt_pk_bf16_f32 v{d+1}, v{a+2}, v{a+3}")
    for m in range(2):
        for qq in range(2):
            a = ACC + 16*m + 8*qq; d = 8*m + 4*qq
            cvt(d, a); cvt(d + 2, a + 4)
            e(f"ds_write_b128 v{vSW + 2*m + qq}, {vr(d,4)}")
        if cfg.om and cfg.dp == 8 + m: ivm(("DP",), dpoll)
    e("s_waitcnt lgkmcnt(0)")
    for it in range(4):
        e(f"ds_read_b128 {vr(16+4*it,4)}, v{vSR} offset:{1024*it}")
    if cfg.om:
        if cfg.dp == 10: ivm(("DP",), dpoll)
        e(f"""
        s_waitcnt vmcnt(0)
L_dchk:
        v_cmp_ne_u32 vcc, s{sEP}, v{vP}
        s_cbranch_vccnz L_dspin
L_dok:
        """)
    for it in range(4):
        e(f"s_waitcnt lgkmcnt({3-it})")
        if it > 0: e(f"s_add_u32 s{sOO}, s{sOO}, 32768")
        e(f"buffer_store_dwordx4 {vr(16+4*it,4)}, v{vOA}, {srd(sOUT)}, s{sOO} offen {cfg.out_flags}")
    e(f"""
    s_or_b32 s{sT+6}, s{sG}, s{sLW}
    s_cbranch_scc0 L_epoch
L_epochx:
    """)
    if cfg.diag:
        e("""
        s_memrealtime s[92:93]
L_dsp:
        s_memrealtime s[96:97]
        s_waitcnt lgkmcnt(0)
        s_sub_u32 s96, s96, s92
        s_cmp_lt_u32 s96, s3
        s_cbranch_scc1 L_dsp
        """)
    if cfg.stamps:
        e("s_waitcnt vmcnt(0)"); stamp()
    dump_stamps(nst[0], True)
    e("L_end:\ns_endpgm")
    for r in range(4):
        e(f"""
L_spin{r}:
        s_sub_u32 s{sSP}, s{sSP}, 1
        s_cmp_lt_i32 s{sSP}, 0
        s_cbranch_scc1 L_ok{r}
        {poll(r)}
        s_waitcnt vmcnt(0)
        s_branch L_chk{r}
        """)
    for al in alts: L.extend(al)
    for x in dstub: e(x)
    if cfg.om:
        e(f"""
L_dspin:
        s_sub_u32 s{sSP}, s{sSP}, {0x80000 if cfg.stamps else 1}
        s_cmp_lt_i32 s{sSP}, 0
        s_cbranch_scc1 L_dok
        {dpoll}
        s_waitcnt vmcnt(0)
        s_branch L_dchk
        """)
    if cfg.ht:
        e(f"""
L_redo:
        s_sub_u32 s{sSP}, s{sSP}, {0x80000 if cfg.stamps else 64}
        s_cmp_lt_i32 s{sSP}, 0
        s_cbranch_scc1 L_redox
        {poll(0)}
        s_branch L_again
        """)
    e(f"""
L_epoch:
    s_lshl_b32 s{sT+6}, s{sRT}, 7
    s_add_u32 s{sT+6}, s{sT+6}, {WS_E}
    v_mov_b32 v{vD}, s{sEP}
    s_mov_b64 exec, 1
    buffer_store_dword v{vD}, off, {srd(sWS)}, s{sT+6}
    s_mov_b64 exec, -1
    s_branch L_epochx
    """)
    nst[0] = 1
    e("L_compute:")
    AQ = 0; AK = 32; AV = 68
    BUF = [104, 152]
    W15 = 200
    vB = 212; vB0 = 216; vONE = 220
    vXA = 224; vWA = 230; vHA = 233
    vSO, vFO, vFV = 235, 236, 237
    VP = 238
    def accQ(t): return AQ + 4*t
    def accK(t): return AK + 4*(t+1)
    def accV(t): return AV + 4*(t+1)
    sSC = 56; sMH = 58; sPM = 60; sDO = 12; sFO = 45; sS = 46
    e(f"""
    v_and_b32 v1, 15, v0
    v_lshrrev_b32 v2, 4, v0
    v_bfe_u32 v3, v0, 1, 3
    v_xor_b32 v3, v3, v2
    v_lshlrev_b32 v3, 4, v3
    v_lshl_add_u32 v3, v1, 7, v3
    v_add_u32 v{vXA}, {SLOT0}, v3
    v_xor_b32 v{vXA+1}, 64, v{vXA}
    v_add_u32 v{vXA+2}, {SLOTSZ}, v{vXA}
    v_add_u32 v{vXA+3}, {SLOTSZ}, v{vXA+1}
    v_add_u32 v{vXA+4}, {2*SLOTSZ}, v{vXA}
    v_add_u32 v{vXA+5}, {2*SLOTSZ}, v{vXA+1}
    v_and_b32 v3, 6, v0
    v_xor_b32 v3, v3, v2
    v_lshlrev_b32 v3, 4, v3
    v_and_b32 v4, 7, v0
    v_lshl_add_u32 v{vHA}, v4, 7, v3
    {"v_and_b32 v4, 8, v0" if cfg.hzero else ""}
    {"v_xor_b32 v4, 8, v4" if cfg.hzero else ""}
    {f"v_lshl_add_u32 v{vHA}, v4, 15, v{vHA}" if cfg.hzero else ""}
    v_xor_b32 v{vHA+1}, 64, v{vHA}
    v_bfe_u32 v3, v0, 3, 2
    v_xor_b32 v3, s{sWAVE}, v3
    v_lshlrev_b32 v3, 5, v3
    v_and_b32 v4, 3, v0
    v_lshl_add_u32 v3, v4, 3, v3
    v_bfe_u32 v4, v0, 2, 2
    v_lshl_add_u32 v3, v4, 7, v3
    v_mul_u32_u24 v4, 3072, v2
    v_add_u32 v3, v3, v4
    v_add_u32 v{vWA}, {SLOT0+16384}, v3
    v_add_u32 v{vWA+1}, {SLOT0+16384+SLOTSZ}, v3
    v_add_u32 v{vWA+2}, {SLOT0+16384+2*SLOTSZ}, v3
    v_lshlrev_b32 v3, 2, v2
    v_sub_u32 v3, v1, v3
    v_mov_b32 v5, 0xff800000
    s_cmp_eq_u32 s{sSEG}, 0
    s_cselect_b32 s{sT}, {f2u(-4e9)}, 0
    v_mov_b32 v6, s{sT}
    """)
    for r in range(4):
        e(f"""
        v_subrev_u32 v4, {r}, v3
        v_cmp_gt_i32 s[62:63], 0, v4
        v_and_b32 v4, 8, v4
        v_cmp_eq_u32 vcc, 0, v4
        v_cndmask_b32 v{vB0+r}, 0, v6, s[62:63]
        v_cndmask_b32 v{vB+r}, v5, 0, vcc
        v_cndmask_b32 v{vB0+r}, v5, v{vB0+r}, vcc
        v_mov_b32 v{vONE+r}, 0x3f803f80
        """)
    e(f"""
    v_lshlrev_b32 v{vSO}, 4, v0
    v_mov_b32 v{VP+2}, 0
    v_mov_b32 v{VP+4}, -1
    v_mov_b32 v{VP+5}, -1
    v_mov_b32 v{VP+6}, -1
    v_mov_b32 v{VP+7}, -1
    v_lshlrev_b32 v1, 6, v1
    v_lshl_add_u32 v{VP+3}, v2, 15, v1
    v_min_u32 v{vFO}, 1, v0
    v_lshlrev_b32 v{vFO}, 30, v{vFO}
    s_mov_b32 s{sSC}, {f2u(0.25*1.4426950408889634)}
    s_mov_b32 s{sMH}, 0xff00ff00
    s_mov_b32 s{sMH+1}, 0xff00ff00
    s_mov_b32 s{sPM}, 0
    s_mov_b32 s{sPM+1}, 0x00ff00ff
    s_and_b32 s{sS}, s{sG}, 3
    s_lshl_b32 s{sT}, s{sRT}, 7
    s_add_u32 s47, s{sT}, {WS_E}
    s_waitcnt lgkmcnt(0)
    s_load_dword s{sEP}, s[20:21], s47
    s_mov_b32 s{sWS}, s20
    s_mov_b32 s{sWS+1}, s21
    s_mov_b32 s{sWS+2}, 0x10000000
    s_mov_b32 s{sWS+3}, 0x20000
    s_lshl_b32 s47, s{sG}, 2
    s_add_u32 s62, s47, s{sT}
    s_add_u32 s62, s62, {WS_A}
    s_add_u32 s47, s47, s{sWAVE}
    s_add_u32 s47, s47, s{sT}
    s_lshl_b32 s{sDO}, s47, 10
    s_add_u32 s{sDO+1}, s{sDO}, 32768
    s_add_u32 s{sDO+2}, s{sDO}, 65536
    s_add_u32 s{sDO+3}, s{sDO}, 98304
    """)
    if cfg.om:
        e(f"""
        s_mov_b32 s{sOUT}, s16
        s_mov_b32 s{sOUT+1}, s17
        s_mov_b32 s{sOUT+2}, 0x400000
        s_mov_b32 s{sOUT+3}, 0x20000
        s_mov_b32 s16, s{sDO}
        s_lshl_b32 s17, s{sSEG}, 7
        s_and_b32 s47, s{sG}, 4
        s_add_u32 s17, s17, s47
        s_add_u32 s17, s17, s{sWAVE}
        s_lshl_b32 s17, s17, 1
        s_add_u32 s17, s17, s{sPAR}
        s_lshl_b32 s17, s17, 1
        s_add_u32 s17, s17, s{sBR}
        s_lshl_b32 s17, s17, 10
        """)
        for r in range(4):
            e(f"s_add_u32 s47, s{sS}, {r}\ns_and_b32 s47, s47, 3")
            if r < cfg.om: e(f"s_lshl_b32 s47, s47, 17\ns_add_u32 s47, s47, {32768*r}\ns_add_u32 s{sDO+r}, s47, s17")
            else: e(f"s_lshl_b32 s47, s47, 15\ns_add_u32 s{sDO+r}, s47, s16")
    e(f"""
    s_lshl_b32 s{sFO}, s{sRT}, 7
    s_and_b32 s47, s{sG}, 4
    s_add_u32 s{sFO}, s{sFO}, s47
    s_add_u32 s{sFO}, s{sFO}, s{sWAVE}
    s_lshl_b32 s{sFO}, s{sFO}, 2
    s_add_u32 s{sFO}, s{sFO}, {WS_FLAG}
    s_getreg_b32 s63, hwreg(HW_REG_XCC_ID, 0, 4)
    """)
    if cfg.ht and cfg.pf0 == -10:
        for q in range(4): e(f"buffer_store_dwordx4 {vr(VP+4,4)}, v{vSO}, {srd(sWS)}, s{sDO + q} offen {cfg.pf_flags}")
    if cfg.xap > 1:
        sh = {2: 5, 4: 4}[cfg.xap]
        e(f"v_lshrrev_b32 v1, {sh}, v0\nv_mov_b32 v2, v{VP+3}\nv_bfrev_b32 v3, 2")
        for k in range(cfg.xap):
            e(f"v_cmp_eq_u32 vcc, {k}, v1\nv_cndmask_b32 v{VP+3+k}, v3, v2, vcc")
    def tree(lab):
        e(f"""
        s_cmp_eq_u32 s{sS}, 1
        s_cbranch_scc1 {lab}1
        s_cmp_eq_u32 s{sS}, 2
        s_cbranch_scc1 {lab}2
        s_cmp_eq_u32 s{sS}, 3
        s_cbranch_scc1 {lab}3
        s_branch {lab}0
        """)
    e(f"""
    s_waitcnt vmcnt({4 if cfg.ht and cfg.pf0 == -10 else 0}) lgkmcnt(0)
    s_add_u32 s63, s63, s{sEP}
    s_add_u32 s63, s63, {K2}
    s_add_u32 s{sEP}, s{sEP}, {K1}
    v_mov_b32 v1, s63
    v_mov_b32 v{vFV}, s{sEP}
    s_cmp_eq_u32 s{sWAVE}, 0
    s_cbranch_scc0 L_noann
    buffer_store_dword v1, v{vFO}, {srd(sWS)}, s62 offen sc1
L_noann:
    """)
    if cfg.ht and cfg.pf0 == -11:
        for q in range(4): e(f"buffer_store_dwordx4 {vr(VP+4,4)}, v{vSO}, {srd(sWS)}, s{sDO + q} offen {cfg.pf_flags}")
    if cfg.warm and cfg.VS > 0:
        tree("L_w")
        e("L_wback:")
    def xreg(step, t): return BUF[step & 1] + 4*(t + 1)
    def wbase(step): return W15 if (step == cfg.R0 + 2) else BUF[step & 1] + 36
    def wreads(step):
        c, s = step >> 1, step & 1
        R = []
        for p in (1, 2, 0):
            for j in range(2):
                d = wbase(step) + 4*p + 2*j
                R.append(f"ds_read_b64_tr_b16 v[{d}:{d+1}], v{vWA + c % 3} offset:{s*12288 + p*1024 + j*512}")
        return R
    def xread(step, t):
        c, s = step >> 1, step & 1
        d = xreg(step, t)
        if t < 0: return f"ds_read_b128 v[{d}:{d+3}], v{vHA+s} offset:{c*1024}"
        return f"ds_read_b128 v[{d}:{d+3}], v{vXA+2*(c % 3)+s} offset:{t*2048}"
    def reads(step): return wreads(step) + [xread(step, t) for t in range(-1, 8)]
    def mf(step, t, j):
        a = (accQ, accK, accV)[j](t); w = vr(wbase(step) + 4*j, 4); x = vr(xreg(step, t), 4)
        c = "0" if step == 0 else vr(a, 4)
        ops = f"{x}, {w}" if j == 2 else f"{w}, {x}"
        return f"v_mfma_f32_16x16x32_bf16 {vr(a,4)}, {ops}, {c}"
    def mfmas(step):
        if cfg.order == 3:
            M = [mf(step, -1, 1)]
            for t in range(8):
                M += [mf(step, t, 1), mf(step, t, 0)] if t % 2 == 0 else [mf(step, t, 0), mf(step, t, 1)]
            M += [mf(step, t, 2) for t in range(-1, 8)]
        else:
            M = []
            for t in range(-1, 8):
                M += [mf(step, t, 1), mf(step, t, 2)] + ([mf(step, t, 0)] if t >= 0 else [])
        return M
    def kstep(step):
        e("s_waitcnt lgkmcnt(0)")
        if step & 1 and step < 15:
            e("s_barrier")
            if step in (7,): stamp()
        if step == 12 and not cfg.late:
            e(f"v_cmp_ne_u32 vcc, 0, v{VP}")
        M = mfmas(step); F = reads(step + 1)
        if step == 11 and not cfg.late:
            F = F + [f"v_mov_b32 v{VP+1}, 0", f"ds_read_b32 v{VP}, v{VP+1}"]
        if cfg.ht and cfg.pfi >= 0 and step == cfg.pf0:
            F = F + [""] * (cfg.pfi - len(F))
            for q in range(4):
                F = F + [f"buffer_store_dwordx4 {vr(VP+4,4)}, v{vSO}, {srd(sWS)}, s{sDO + q} offen {cfg.pf_flags}", ""]
            assert len(F) <= 27
        if cfg.ht and cfg.pfi < 0 and cfg.pf0 <= step < cfg.pf0 + 4:
            F = F + [f"buffer_store_dwordx4 {vr(VP+4,4)}, v{vSO}, {srd(sWS)}, s{sDO + step - cfg.pf0} offen {cfg.pf_flags}"]
        if cfg.xa >= 0:
            at = lambda k: f"buffer_atomic_or v{VP+2}, v{VP+3+k}, {srd(sWS)}, s{sDO} offen {cfg.xa_flags}"
            if cfg.xap > 1:
                for k in range(cfg.xap):
                    if step == cfg.xa + k * cfg.xas: F = F + [at(k)]
            elif cfg.xas == 0:
                if step == cfg.xa: F = F + [at(0)]
            else:
                for w in range(4):
                    if step == cfg.xa + w * cfg.xas:
                        F = F + [f"s_cmp_eq_u32 s{sWAVE}, {w}", f"s_cbranch_scc0 L_xa{w}\n{at(0)}\nL_xa{w}:"]
        for i, m in enumerate(M):
            e(m)
            if i < len(F): e(F[i])
    def Vp(t): return VP + 2*(7 - t)
    def region(s):
        dstores = []
        stubs = []
        R0 = cfg.R0
        units = []
        first = 2*s - 1
        units.append((0, first, (1, 2)))
        for r in range(4):
            q = (r + s) & 3
            if q == 0 and s != 0: units.append((r, -1, (1, 2)))
            a, b = 2*q, 2*q + 1
            units.append((r, a, (1, 0, 2)))
            units.append((r, b, (0,) if b == first else (1, 0, 2)))
        I = []
        seen = set()
        for step in range(R0, 16):
            if step > R0:
                for k, x in enumerate(wreads(step)): I.append(Item(x, (-2, step, k)))
                tl = []
                for u, (r, t, js) in enumerate(units):
                    if t not in tl:
                        tl.append(t); I.append(Item(xread(step, t), (-1, u, step)))
            for u, (r, t, js) in enumerate(units):
                for k, j in enumerate(js):
                    rr = 0 if (js == (0,) and step + 2 <= 15) else r
                    I.append(Item(mf(step, t, j), (rr, 0, 0 if rr != r else u, step, k), tag=(f"g{r}" if step == 15 and u == len(units) - 1 and j == js[-1] else None)))
        if cfg.late:
            I.append(Item(f"v_mov_b32 v{vXA}, 0", (-3, 0)))
            I.append(Item(f"ds_read_b32 v{vXA+1}, v{vXA}", (-1, 99)))
            I.append(Item(f"v_cmp_ne_u32 vcc, 0, v{vXA+1}", (0, 0)))
        cv = lambda d, a, n: f"v_cvt_pk_bf16_f32 v{d}, v{a+2*n}, v{a+2*n+1}"
        kdone = set()
        prev_store = None; prev_flag = None
        for r in range(4):
            q = (r + s) & 3
            a, b = 2*q, 2*q + 1
            n = [0]
            def add(text, **kw):
                n[0] += 1
                it = Item(text, (r, 1, n[0]), **kw); I.append(it); return it
            for t in (a - 1, a, b):
                if t not in kdone:
                    kdone.add(t)
                    add(cv(accK(t), accK(t), 0)); add(cv(accK(t) + 1, accK(t), 1))
                    add(cv(Vp(t), accV(t), 0)); add(cv(Vp(t) + 1, accV(t), 1))
            XE = lambda t: BUF[0] + 4*(t + 1)
            XO = lambda t: BUF[1] + 4*(t + 1)
            for t in (a, b):
                Q = accQ(t)
                for k in range(2): add(f"v_cndmask_b32 v{accK(t)+2+k}, v{accK(t)+k}, v{accK(t-1)+k}, s[{sMH}:{sMH+1}]")
                add(cv(Q, Q, 0)); add(cv(Q + 1, Q, 1))
                for k in range(2): add(f"v_cndmask_b32 v{Q+2+k}, v{Q+k}, 0, s[{sMH}:{sMH+1}]")
                for k in range(2): add(f"v_cndmask_b32 v{Q+k}, 0, v{Q+k}, s[{sMH}:{sMH+1}]")
                add(f"v_mfma_f32_16x16x32_bf16 {vr(XE(t),4)}, {vr(accK(t),4)}, {vr(Q,4)}, {vr(vB0 if t == 0 else vB,4)}")
            for t in (a, b):
                S = XE(t)
                add(f"v_max3_f32 v{XO(t)}, v{S}, v{S+1}, v{S+2}")
                add(f"v_max_f32 v{XO(t)}, v{XO(t)}, v{S+3}")
            ma, mb = XO(a), XO(b)
            add(f"v_permlane32_swap_b32 v{ma}, v{mb}")
            add(f"v_max_f32 v{ma+1}, v{ma}, v{mb}")
            add(f"v_max_f32 v{ma}, v{ma}, v{mb}")
            add(f"v_permlane16_swap_b32 v{ma}, v{ma+1}")
            add(f"v_max_f32 v{ma}, v{ma}, v{ma+1}")
            add(f"v_mul_f32 v{mb}, s{sSC}, -v{ma}")
            add(f"v_mul_f32 v{ma}, s{sSC}, -v{ma}")
            add(f"v_permlane32_swap_b32 v{ma}, v{mb}")
            for t in (a, b):
                S = XE(t); P = accQ(t)
                for k in range(4): add(f"v_fma_f32 v{S+k}, v{S+k}, s{sSC}, v{XO(t)}")
                for k in range(4): add(f"v_exp_f32 v{S+k}, v{S+k}")
                add(cv(P, S, 0)); add(cv(P + 1, S, 1))
                for k in range(2): add(f"v_cndmask_b32 v{P+2+k}, 0, v{P+k}, s[{sPM}:{sPM+1}]")
                for k in range(2): add(f"v_cndmask_b32 v{P+k}, v{P+k}, 0, s[{sPM}:{sPM+1}]")
                add(f"v_mfma_f32_16x16x32_bf16 {vr(XO(t),4)}, {vr(vONE,4)}, {vr(P,4)}, 0")
                add(f"v_mfma_f32_16x16x32_bf16 {vr(accV(t),4)}, {vr(Vp(t),4)}, {vr(P,4)}, 0")
            OP = XE(a)
            for t in (a, b):
                O = accV(t)
                add(f"v_rcp_f32 v{XO(t)}, v{XO(t)}")
                for k in range(4): add(f"v_mul_f32 v{O+k}, v{O+k}, v{XO(t)}")
                add(cv(OP + 2*(t - a), O, 0)); add(cv(OP + 2*(t - a) + 1, O, 1))
            add(f"v_permlane16_swap_b32 v{OP}, v{OP+2}")
            add(f"v_permlane16_swap_b32 v{OP+1}, v{OP+3}")
            st = f"buffer_store_dwordx4 {vr(OP,4)}, v{vSO}, {srd(sWS)}, s{sDO+q} offen"
            if cfg.om: st = f"buffer_store_dwordx4 {vr(OP,4)}, v{vSO}, {srd(sOUT if r < cfg.om else sWS)}, s{sDO+r} offen"
            fl = f"buffer_store_dword v{vFV}, v{vFO}, {srd(sWS)}, s{sFO} offen offset:{q*128 + r*32}"
            sx = ("\n" + stamp_text()) if cfg.stamps else ""
            if cfg.ht:
                add(f"v_min_u32 v{OP}, -2, v{OP}")
                t1, t2 = (f"{st} {cfg.fast_flags}", f"{fl} {cfg.ffl_flags}")
                if cfg.hbad: t1, t2 = t2 + "\n" + "s_nop 15\n" * cfg.hbad, t1
                w0 = "s_waitcnt vmcnt(0)\n" if r == 0 else ""
                store = add(f"{w0}s_cbranch_vccz L_ss{s}{r}\n{t1}\n{t2}\nL_sb{s}{r}:{sx}", tag=f"st{r}", urgent=True,
                            after=[(prev_store, 0)] if prev_store else None)
                stubs.append(f"L_ss{s}{r}:\n{st} sc1\ns_waitcnt vmcnt(0)\n{fl} sc1\ns_branch L_sb{s}{r}")
                if r == cfg.b8 or r == cfg.b9: add("s_barrier", after=[(store, 0)], urgent=True)
                prev_store = store
                continue
            dstores.append(st)
            store = add(f"s_cbranch_vccz L_ss{s}{r}\n{st} {'sc1' if cfg.scm >> r & 1 else cfg.fast_flags}\nL_sb{s}{r}:{sx}", tag=f"st{r}", urgent=True,
                        after=[(prev_store, 0)] if prev_store else None)
            stubs.append(f"L_ss{s}{r}:\n{st} sc1\ns_branch L_sb{s}{r}")
            if r == cfg.b8 or r == cfg.b9: add("s_barrier", after=[(store, 0)], urgent=True)
            flag = add(f"s_cbranch_vccz L_fs{s}{r}\n{fl} {cfg.ffl_flags}\nL_fb{s}{r}:", tag=f"fl{r}", urgent=True, waitvm=store,
                       after=[(store, cfg.LF)] + ([(prev_flag, 0)] if prev_flag else []))
            stubs.append(f"L_fs{s}{r}:\n{fl} sc1\ns_branch L_fb{s}{r}")
            prev_store = store; prev_flag = flag
        e("s_waitcnt lgkmcnt(0)")
        if R0 & 1 and R0 < 15: e("s_barrier")
        stamp()
        if cfg.prio: e(f"s_setprio {cfg.prio}")
        out, t = schedule(I, mfma_first=bool(cfg.mf), ds_lat=cfg.dslat, verbose=cfg.verbose)
        for x in out: e(x)
        if cfg.ds:
            if cfg.wbw: e("s_waitcnt vmcnt(0)")
            for r, x in enumerate(dstores):
                if cfg.ds >> r & 1: e(f"{x} {cfg.ds_flags}")
        if cfg.wb:
            if cfg.wb == 1: e(f"s_cmp_lg_u32 s{sWAVE}, 0")
            if cfg.wb == 2: e(f"s_or_b32 s{sT+6}, s{sWAVE}, s{sG}")
            if cfg.wb == 4: e(f"s_and_b32 s{sT+6}, s{sRT}, 3\ns_or_b32 s{sT+6}, s{sT+6}, s{sWAVE}\ns_or_b32 s{sT+6}, s{sT+6}, s{sG}")
            if cfg.wb != 3: e(f"s_cbranch_scc1 L_wb{s}")
            if cfg.wbw: e("s_waitcnt vmcnt(0)")
            e(f"buffer_wbl2 sc1\nL_wb{s}:")
        return stubs
    stamp()
    if cfg.VS > 0:
        e("s_barrier")
        stamp()
        for x in reads(0): e(x)
        for step in range(cfg.VS): kstep(step)
    tree("L_v")
    n0 = nst[0]
    for s in range(4):
        nst[0] = n0
        e(f".p2align 6\nL_w{s}:")
        e("s_branch L_wback\ns_nop 0" if cfg.warm and cfg.VS > 0 else "s_nop 0\ns_nop 0")
        e(f"L_v{s}:")
        if cfg.VS == 0:
            e("s_barrier")
            stamp()
            for x in reads(0): e(x)
        for step in range(cfg.VS, cfg.R0): kstep(step)
        stubs = region(s)
        stamp()
        dump_stamps(nst[0])
        e("s_endpgm")
        for x in stubs: e(x)
        e(f"L_ve{s}:")
    body, added = hz.fix("\n".join(L))
    return body, added

def finish(body, VSZ):
    K = NAME + "_kernel"
    for s in range(4):
        body = body.replace(f"L_ve{s}:", f"L_ve{s}:\n.fill ({VSZ}-(L_ve{s}-L_w{s}))/4, 4, 0xbf800000")
    s = HDR.format(launch="; @launch grid=(256,1,1) block=(512,1,1) lds=163840") + kernel_head(K) + body + "\n"
    s += ".fill 64, 4, 0xbf800000\n"
    s += kernel_desc(K, 256, 256, 102)
    return s

def build(cfg):
    import subprocess, re, os
    body, added = gen(cfg)
    tmp = f"g3_{os.getpid()}"
    open(tmp + ".s", "w").write(finish(body, 0).replace(".fill (0-", ".fill 0*(0-"))
    subprocess.run(["clang", "-x", "assembler", "-target", "amdgcn-amd-amdhsa", "-mcpu=gfx950", "-c", tmp + ".s", "-o", tmp + ".o"], check=True)
    sy = subprocess.run(["llvm-objdump", "-t", tmp + ".o"], capture_output=True, text=True).stdout
    A = {l.split()[-1]: int(l.split()[0], 16) for l in sy.strip().split("\n") if re.match(r"^[0-9a-f]{16} ", l)}
    sz = max(A[f"L_ve{s}"] - A[f"L_w{s}"] for s in range(4))
    sz = (sz + 63) // 64 * 64
    return finish(body, sz), added, (A["L_compute"], A["L_w0"], sz)

if __name__ == "__main__":
    kw = {}
    for a in sys.argv[2:]:
        k, v = a.split("=")
        kw[k] = v.replace("+", " ") if k.endswith("flags") or k.startswith("dma_") else int(v, 0)
    s, added, info = build(Cfg(**kw))
    open(sys.argv[1], "w").write(s)
    print("nops added", added, "sizes", info)
```

```python
import sys, struct
from asmlib import *
import hz
from sched import Item, schedule

def f2u(f): return struct.unpack("<I", struct.pack("<f", f))[0]

class Cfg:
    stamps = 0
    fast_flags = "nt"
    ffl_flags = ""
    ld_flags = "sc1"
    pt_flags = "sc1"
    out_flags = "nt"
    dma_x = ""
    dma_w = ""
    order = 3
    hzero = 1
    tabA = 0x67452310
    tabB = 0x75634021
    R0 = 13
    VS = 13
    warm = 1
    LF = 600
    prio = 3
    lprio = 0
    nofast = 0
    kp = 0
    xwA = 0
    xwB = 0
    xoA = 0
    xoB = 0
    nw = 8
    ac = 5
    b8 = -1
    wsh = 1
    diag = 0
    di = -1
    dc = -1
    dm = 4
    ht = 0
    pf0 = 2
    pf_flags = 'nt'
    pfi = -1
    hbad = 0
    nw1 = 0
    b9 = -1
    g3 = 2
    ap = 4
    lk = 10
    g2 = 2
    lp2 = 0
    nw0 = 8
    xa = -1
    xas = 0
    xap = 1
    xa_flags = ''
    sm = 0
    su = -1
    late = 1
    mf = 1
    dslat = 128
    verbose = 0
    rt = 0
    rtn = 16
    rtp = 0
    rt_flags = 'sc1'
    ptm = 15
    sw = 1
    tabC = -1
    tabD = -1
    e2 = 0
    om = 0
    dp = 4
    ddf_flags = ''
    scm = 15
    ds = 0
    ds_flags = 'sc1'
    wb = 0
    wbw = 1
    def __init__(self, **kw):
        for k, v in kw.items():
            assert hasattr(self, k), k
            setattr(self, k, v)

HALO = 0; SLOT0 = 8192; SLOTSZ = 40960; WO_L = 98304; STAGE = 8192
WS_FLAG = 8 << 20; WS_E = WS_FLAG + 65536; WS_A = WS_FLAG + 131072; WS_STAMP = 16 << 20; WS_D = WS_FLAG + 196608
K1 = 0x9e3779b9; K2 = 0x51ed270b
sX, sW, sWO, sOUT, sWS = 24, 28, 32, 36, 40
sEP = 44
sWAVE, sRT, sG, sBR, sPAR, sSEG, sCLS = 48, 49, 50, 51, 52, 53, 54
sT = 55
sST = 64
NST = 12
def srd(r): return f"s[{r}:{r+3}]"
def vr(a, n): return f"v[{a}:{a+n-1}]" if n > 1 else f"v{a}"

def gen(cfg):
    K = NAME + "_kernel"
    L = []
    def e(s):
        for ln in s.strip("\n").split("\n"):
            if ln.strip(): L.append(ln.strip() if ln.strip().endswith(":") else "    " + ln.strip())
    nst = [0]
    def stamp_text():
        i = nst[0]; nst[0] += 1
        assert i < NST
        return f"{'s_memrealtime' if cfg.stamps == 2 else 's_memtime'} s[{sST+2*i}:{sST+2*i+1}]"
    def stamp():
        if cfg.stamps: e(stamp_text())
    dcount = [0]
    def dump_stamps(n, ld=False):
        if not cfg.stamps: return
        if cfg.di >= 0 or cfg.dc >= 0:
            i = cfg.di if ld else cfg.dc
            if i < 0: return
            dcount[0] += 1
            e(f"""
            s_waitcnt vmcnt(0) lgkmcnt(0)
            s_sub_u32 s92, s{sST+2*i}, s{sST}
            s_mul_i32 s92, s92, {cfg.dm}
            s_min_u32 s92, s92, 40000
            s_add_u32 s92, s92, 4000
L_dd{dcount[0]}:
            s_memrealtime s[96:97]
            s_waitcnt lgkmcnt(0)
            s_sub_u32 s96, s96, s{sST}
            s_cmp_lt_u32 s96, s92
            s_cbranch_scc1 L_dd{dcount[0]}
            """)
            return
        e("s_memrealtime s[96:97]\ns_waitcnt lgkmcnt(0)")
        e("v_mov_b32 v16, s98\nv_mov_b32 v17, s96")
        e(f"s_getreg_b32 s{sT}, hwreg(HW_REG_XCC_ID, 0, 4)\nv_mov_b32 v18, s{sT}")
        for i in range(1, 14):
            if i < n:
                e(f"s_sub_u32 s{sT}, s{sST+2*i}, s{sST}\nv_mov_b32 v{18+i}, s{sT}")
            elif i == 13 and ld:
                e(f"s_sub_u32 s{sT}, 0x10000000, s47\nv_mov_b32 v{18+i}, s{sT}")
            else:
                e(f"v_mov_b32 v{18+i}, 0")
        e(f"""s_lshl_b32 s{sT}, s2, 3
        s_add_u32 s{sT}, s{sT}, s{sWAVE}
        s_lshl_b32 s{sT}, s{sT}, 6
        s_add_u32 s{sT}, s{sT}, {WS_STAMP}
        s_mov_b64 exec, 1
        v_mov_b32 v1, 0""")
        for i in range(4):
            e(f"buffer_store_dwordx4 v[{16+4*i}:{19+4*i}], v1, {srd(sWS)}, s{sT} offen offset:{16*i}")
        e("s_waitcnt vmcnt(0)")

    stamp()
    if cfg.stamps: e("s_memrealtime s[98:99]")
    e(f"""
    s_cmp_ge_u32 s2, 256
    s_cbranch_scc1 L_end
    s_load_dwordx16 s[4:19], s[0:1], 0
    s_load_dwordx2 s[20:21], s[0:1], 64
    s_getpc_b64 s[22:23]
L_pc:
    s_bfe_u32 s{sT+2}, s2, 0x20003
    s_mul_i32 s{sT+2}, s{sT+2}, L_w1-L_w0
    v_lshlrev_b32 v1, 6, v0
    v_min_u32 v1, L_w1-L_pc, v1
    v_mov_b32 v2, s{sT+2}
    v_cmp_lt_u32 vcc, L_w0-L_pc, v1
    v_lshrrev_b32 v3, 6, v0
    s_and_b32 s{sT}, s2, 7
    v_cndmask_b32 v2, 0, v2, vcc
    v_add_u32 v1, v1, v2
    global_load_dword v255, v1, s[22:23]
    s_lshr_b32 s{sT+1}, s2, 3
    v_readfirstlane_b32 s{sWAVE}, v3
    {f"s_nop 0" if 0 else ""}
    v_and_b32 v0, 63, v0
    s_lshr_b32 s{sRT}, s{sT+1}, 3
    s_lshl_b32 s{sT}, s{sT}, 2
    s_add_u32 s{sRT}, s{sRT}, s{sT}
    s_and_b32 s{sG}, s{sT+1}, 7
    s_lshr_b32 s{sBR}, s{sRT}, 4
    s_bfe_u32 s{sPAR}, s{sRT}, 0x10003
    s_and_b32 s{sSEG}, s{sRT}, 7
    {f"s_xor_b32 s{sWAVE}, s{sWAVE}, 4" if cfg.sw else ""}
    s_cmp_ge_u32 s{sWAVE}, 4
    s_cbranch_scc0 L_compute
    """)
    sLW, sXB, sWB, sKO, sWOFF, sHOFF = sT, sT+1, sT+2, sT+3, sT+4, sT+5
    vX, vW, vH = 8, 12, 14
    sMX, sMW, sA, sB, sHM = 88, 92, 94, 95, 100
    if cfg.lprio: e(f"s_setprio {cfg.lprio}")
    if cfg.tabC >= 0:
        e(f"""
        s_add_u32 s{sA}, s{sRT}, s{sG}
        s_bitcmp0_b32 s{sA}, 0
        s_mov_b32 s{sCLS}, {cfg.tabA}
        s_cselect_b32 s{sCLS}, s{sCLS}, {cfg.tabB}
        s_mov_b32 s{sB}, {cfg.tabC}
        s_cselect_b32 s{sB}, s{sB}, {cfg.tabD}
        s_bitcmp0_b32 s{sA}, 1
        s_cselect_b32 s{sCLS}, s{sCLS}, s{sB}
        """)
    else:
        e(f"""
        s_add_u32 s{sCLS}, s{sRT}, s{sG}
        s_and_b32 s{sCLS}, s{sCLS}, 1
        s_cmp_eq_u32 s{sCLS}, 0
        s_mov_b32 s{sCLS}, {cfg.tabA}
        s_cselect_b32 s{sCLS}, s{sCLS}, {cfg.tabB}
        """)
    e(f"""
    s_lshr_b32 s{sA}, s{sG}, 1
    s_bfe_u32 s{sB}, s{sRT}, 0x10001
    s_sub_u32 s{sLW}, s{sWAVE}, 4
    v_lshrrev_b32 v3, 3, v0
    v_and_b32 v4, 7, v0
    v_lshrrev_b32 v5, 4, v0
    v_xor_b32 v6, v4, v5
    v_lshlrev_b32 v6, 4, v6
    v_lshl_add_u32 v6, v3, 11, v6
    s_lshl_b32 s{sT+6}, s{sSEG}, 18
    s_lshl_b32 s{sT+7}, s{sPAR}, 10
    s_add_u32 s{sT+6}, s{sT+6}, s{sT+7}
    s_sub_u32 s{sHOFF}, s{sT+6}, 16384
    s_cmp_eq_u32 s{sSEG}, 0
    s_cselect_b32 s{sHOFF}, 0x40000000, s{sHOFF}
    s_lshl_b32 s{sT+7}, s{sLW}, 16
    s_add_u32 s{sT+6}, s{sT+6}, s{sT+7}
    s_lshl_b32 s{sXB}, s{sLW}, 12
    """)
    for j in range(4):
        e(f"""
        s_add_u32 s{sKO}, s{sA}, {j}
        s_and_b32 s{sKO}, s{sKO}, 3
        s_lshl_b32 s{sMX+j}, s{sKO}, 10
        s_add_u32 s{sMX+j}, s{sMX+j}, s{sXB}
        s_and_b32 s{sT+7}, s{sKO}, 1
        s_lshl_b32 s{sT+7}, s{sT+7}, 6
        s_lshl_b32 s{sKO}, s{sKO}, 14
        s_add_u32 s{sKO}, s{sKO}, s{sT+6}
        v_xor_b32 v{vX+j}, s{sT+7}, v6
        v_add_u32 v{vX+j}, s{sKO}, v{vX+j}
        """)
    e(f"""
    v_lshlrev_b32 v7, 1, v5
    v_xor_b32 v6, v4, v7
    v_lshlrev_b32 v6, 4, v6
    v_lshl_add_u32 v6, v3, 11, v6
    v_add_u32 v{vH}, s{sHOFF}, v6
    v_and_b32 v7, 2, v7
    v_xor_b32 v7, v7, v4
    v_lshlrev_b32 v7, 4, v7
    v_mul_u32_u24 v6, 3072, v3
    v_add_u32 v7, v7, v6
    s_mul_i32 s{sT+6}, s{sLW}, 49152
    s_lshl_b32 s{sT+7}, s{sG}, 7
    s_add_u32 s{sT+6}, s{sT+6}, s{sT+7}
    s_mul_i32 s{sWB}, s{sLW}, 6144
    """)
    for m in range(2):
        e(f"""
        s_xor_b32 s{sKO}, s{sB}, {m}
        s_mul_i32 s{sMW+m}, s{sKO}, 3072
        s_add_u32 s{sMW+m}, s{sMW+m}, s{sWB}
        s_lshl_b32 s{sT+7}, s{sKO}, 6
        s_mul_i32 s{sKO}, s{sKO}, 24576
        s_add_u32 s{sKO}, s{sKO}, s{sT+6}
        v_xor_b32 v{vW+m}, s{sT+7}, v7
        v_add_u32 v{vW+m}, s{sKO}, v{vW+m}
        """)
    e(f"""
    s_lshl_b32 s{sT+6}, s{sLW}, 4
    s_lshl_b64 s[{sHM}:{sHM+1}], 0xffff, s{sT+6}
    s_waitcnt lgkmcnt(0)
    """)
    stamp()
    e(f"""
    s_cmp_eq_u32 s{sBR}, 0
    s_cselect_b32 s{sX}, s4, s10
    s_cselect_b32 s{sX+1}, s5, s11
    s_mov_b32 s{sX+2}, 0x200000
    s_mov_b32 s{sX+3}, 0x20000
    s_cselect_b32 s{sW}, s6, s12
    s_cselect_b32 s{sW+1}, s7, s13
    s_mov_b32 s{sW+2}, 0x180000
    s_mov_b32 s{sW+3}, 0x20000
    s_cselect_b32 s{sWO}, s8, s14
    s_cselect_b32 s{sWO+1}, s9, s15
    s_mov_b32 s{sWO+2}, 0x80000
    """)
    def issue(c):
        slot = SLOT0 + (c % 3) * SLOTSZ
        e(f"""
        s_bfe_u32 s{sT+6}, s{sCLS}, {0x30000 + 4*c}
        s_add_u32 m0, s{sMW}, {slot + 16384}
        s_mul_i32 s{sWOFF}, s{sT+6}, 196608
        s_lshl_b32 s{sKO}, s{sT+6}, 7
        """)
        def wl(m):
            for p in range(3):
                e(f"buffer_load_dwordx4 v{vW+m}, {srd(sW)}, s{sWOFF} offen offset:{1024*p} {cfg.dma_w} lds")
        def xl(j):
            e(f"s_add_u32 m0, s{sMX+j}, {slot}")
            e(f"buffer_load_dwordx4 v{vX+j}, {srd(sX)}, s{sKO} offen {cfg.dma_x} lds")
        wl(0); xl(0)
        e(f"s_mov_b32 m0, {HALO + c*1024}\ns_mov_b64 exec, s[{sHM}:{sHM+1}]")
        e(f"buffer_load_dwordx4 v{vH}, {srd(sX)}, s{sKO} offen {cfg.dma_x} lds")
        e(f"s_add_u32 m0, s{sMW+1}, {slot + 16384}\ns_mov_b64 exec, -1")
        wl(1); xl(1); xl(2); xl(3)
    OF = 0; ACC = 128; WF = 160
    vA = 224
    vO0, vO1, vPO, vP = 232, 233, 234, 235
    vSW, vSR, vOA = 236, 240, 241
    vD = 242
    vWO = 246
    sSO = 12
    sFL, sOO, sSP = 45, 46, 47
    sAV = 18
    issue(0)
    e(f"""
    s_mov_b32 s{sWO+3}, 0x20000
    s_mov_b32 s{sWS}, s20
    s_mov_b32 s{sWS+1}, s21
    s_mov_b32 s{sWS+2}, 0x10000000
    s_mov_b32 s{sWS+3}, 0x20000
    s_mov_b32 s{sOUT}, s16
    s_mov_b32 s{sOUT+1}, s17
    s_mov_b32 s{sOUT+2}, 0x400000
    s_mov_b32 s{sOUT+3}, 0x20000
    """)
    vXw, vXo = 250, 252
    sXw, sXo = 16, 17
    e(f"""
    v_lshlrev_b32 v{vXw}, 6, v0
    v_and_b32 v1, 15, v0
    v_lshlrev_b32 v1, 6, v1
    v_lshrrev_b32 v2, 4, v0
    v_lshl_add_u32 v{vXo}, v2, 15, v1
    s_cmp_eq_u32 s{sCLS}, {cfg.tabA}
    s_cselect_b32 s22, 0, 0x40000000
    s_cselect_b32 s23, 0x40000000, 0
    s_and_b32 s{sXw}, s{sRT}, 3
    s_lshl_b32 s{sXw}, s{sXw}, 3
    s_add_u32 s{sXw}, s{sXw}, s{sG}
    s_lshl_b32 s{sXw}, s{sXw}, 2
    s_add_u32 s{sXw}, s{sXw}, s{sLW}
    s_lshl_b32 s{sXw}, s{sXw}, 12
    s_lshl_b32 s{sXo}, s{sRT}, 5
    s_add_u32 s{sXo}, s{sXo}, s{sG}
    s_lshl_b32 s{sXo}, s{sXo}, 2
    s_add_u32 s{sXo}, s{sXo}, s{sLW}
    s_lshl_b32 s{sXo}, s{sXo}, 10
    """)
    vOi = [232, 243, 244, 245, 233, 254, 251, 253]; vDV = 255; vXq = 253; sXq = 96; sDF = 97; sDS = 3
    if cfg.ptm != 15 and not cfg.om:
        e(f"""
        s_and_b32 s{sT+6}, s{sG}, 3
        v_add_u32 v3, s{sT+6}, v2
        v_and_b32 v3, 3, v3
        v_lshl_add_u32 v{vXo}, v3, 15, v1
        v_lshrrev_b32 v3, v2, {cfg.ptm}
        v_and_b32 v3, 1, v3
        v_cmp_eq_u32 vcc, 0, v3
        v_bfrev_b32 v3, 2
        v_cndmask_b32 v{vXo}, v{vXo}, v3, vcc
        """)
    if cfg.om:
        assert cfg.xoA != 9 and cfg.xoB != 9 and cfg.g3 and not cfg.ht and not cfg.diag
        e(f"""
        s_and_b32 s{sT+6}, s{sG}, 3
        v_add_u32 v3, s{sT+6}, v2
        v_and_b32 v3, 3, v3
        v_lshl_add_u32 v{vXo}, v3, 15, v1
        v_lshl_add_u32 v3, v3, 17, v1
        v_lshl_add_u32 v{vXq}, v2, 15, v3
        v_cmp_gt_u32 vcc, {cfg.om}, v2
        v_bfrev_b32 v3, 2
        v_cndmask_b32 v{vXo}, v{vXo}, v3, vcc
        v_cndmask_b32 v{vXq}, v3, v{vXq}, vcc
        s_lshl_b32 s{sXq}, s{sSEG}, 7
        s_and_b32 s{sT+6}, s{sG}, 4
        s_add_u32 s{sXq}, s{sXq}, s{sT+6}
        s_add_u32 s{sXq}, s{sXq}, s{sLW}
        s_lshl_b32 s{sXq}, s{sXq}, 1
        s_add_u32 s{sXq}, s{sXq}, s{sPAR}
        s_lshl_b32 s{sXq}, s{sXq}, 1
        s_add_u32 s{sXq}, s{sXq}, s{sBR}
        s_lshl_b32 s{sXq}, s{sXq}, 10
        """)
    def acheck():
        if cfg.diag:
            e(f"""
            s_mov_b32 s3, 0
            s_mov_b32 s{sSP}, 100000
            s_getreg_b32 s{sWOFF}, hwreg(HW_REG_XCC_ID, 0, 4)
            s_sub_u32 s{sWOFF}, s{sAV}, s{sWOFF}
L_dg:
            s_waitcnt lgkmcnt(0)
            s_mov_b32 s{sKO}, 0
            """)
            for i in range(8):
                e(f"s_sub_u32 s{sT+7}, s{4+i}, s{sWOFF}\ns_or_b32 s{sKO}, s{sKO}, s{sT+7}")
            e(f"""
            s_cmp_lt_u32 s{sKO}, 16
            s_cbranch_scc1 L_dgx
            s_mov_b32 s3, 800
            s_sub_u32 s{sSP}, s{sSP}, 1
            s_cbranch_scc1 L_dgx
            s_add_u32 s{sT+6}, s19, {WS_A}
            s_load_dwordx8 s[4:11], s[20:21], s{sT+6} glc
            s_branch L_dg
L_dgx:
            """)
        e(f"""
        s_mov_b32 s19, s{sAV}
        s_waitcnt lgkmcnt(0)
        s_xor_b64 s[4:5], s[4:5], s[18:19]
        s_xor_b64 s[6:7], s[6:7], s[18:19]
        s_xor_b64 s[8:9], s[8:9], s[18:19]
        s_xor_b64 s[10:11], s[10:11], s[18:19]
        s_or_b64 s[4:5], s[4:5], s[6:7]
        s_or_b64 s[8:9], s[8:9], s[10:11]
        s_or_b64 s[4:5], s[4:5], s[8:9]
        s_cselect_b32 s4, 0, {0 if cfg.nofast else 1}
        {"s_cselect_b32 s5, 1600, 0" if cfg.diag else ""}
        {"s_add_u32 s3, s3, s5" if cfg.diag else ""}
        v_mov_b32 v1, 0
        v_mov_b32 v2, s4
        ds_write_b32 v1, v2
        """)
        if cfg.b8 < 0:
            e(f"s_lshl_b32 s5, s{sLW}, 2\nv_mov_b32 v3, s5\nds_write_b32 v3, v1 offset:16")
    def xat(pos):
        n = 0
        T = [(cfg.xwA, cfg.xwB, vXw, sWO, sXw, "", 4)]
        if cfg.om: T.append((cfg.xoA, cfg.xoB, vXq, sOUT, sXq, cfg.pt_flags, 5))
        if cfg.om < 4: T.append((cfg.xoA, cfg.xoB, vXo, sWS, sXo, cfg.pt_flags, 6))
        for (pa, pb, v, sr, so, fl, d) in T:
            if pa == pos and pb == pos:
                e(f"buffer_load_dword v{d}, v{v}, {srd(sr)}, s{so} offen {fl}"); n += 1
            elif pos in (pa, pb):
                d += 12 if pa == pos else 16
                e(f"v_add_u32 v{d}, s{22 if pa == pos else 23}, v{v}\nbuffer_load_dword v{d}, v{d}, {srd(sr)}, s{so} offen {fl}"); n += 1
        return n
    for c in range(8):
        nX = 0
        if c == 1 and cfg.e2: pass
        elif c + 1 <= 7 and not (c == 0 and cfg.su < 0):
            nX = xat(c + 1); issue(c + 1)
            if c == 6: nX7 = xat(10); nX += nX7
        if c == 0:
            e(f"""
            s_lshl_b32 s19, s{sRT}, 7
            s_add_u32 s{sT+6}, s19, {WS_E}
            s_load_dword s{sEP}, s[20:21], s{sT+6}
            """)
        if c == max(cfg.su, 0):
            e(f"""
            v_and_b32 v1, 1, v0
            v_bfe_u32 v2, v0, 1, 1
            v_lshl_add_u32 v1, v1, 1, v2
            v_bfe_u32 v2, v0, 4, 1
            v_lshl_add_u32 v1, v2, 2, v1
            v_lshlrev_b32 v1, 3, v1
            v_bfe_u32 v2, v0, 3, 1
            v_lshl_add_u32 v1, v2, 6, v1
            v_bfe_u32 v2, v0, 2, 2
            v_lshl_add_u32 v1, v2, 7, v1
            v_lshrrev_b32 v2, 5, v0
            v_lshl_add_u32 v1, v2, 10, v1
            s_lshl_b32 s{sOO}, s{sRT}, 2
            s_add_u32 s{sOO}, s{sOO}, s{sLW}
            s_lshl_b32 s{sFL}, s{sOO}, 7
            s_add_u32 s{sFL}, s{sFL}, {WS_FLAG}
            s_lshl_b32 s{sOO}, s{sOO}, 15
            """)
            for r in range(4):
                e(f"""
                s_sub_u32 s{sT+6}, s{sLW}, {r}
                s_and_b32 s{sT+6}, s{sT+6}, 3
                s_lshl_b32 s{sT+7}, s{sT+6}, 12
                s_add_u32 s{sSO+r}, s{sT+7}, s{sOO}
                s_lshl_b32 s{sT+6}, s{sT+6}, 13
                s_add_u32 s{sT+6}, s{sT+6}, {WO_L}
                v_add_u32 v{vA+2*r}, s{sT+6}, v1
                v_xor_b32 v{vA+2*r+1}, 64, v{vA+2*r}
                """)
        if c == max(cfg.su, 0) * 2:
            e(f"""
            v_lshlrev_b32 v{vO0}, 4, v0
            v_add_u32 v{vO1}, 16384, v{vO0}
            v_and_b32 v1, 7, v0
            v_lshlrev_b32 v{vPO}, 2, v1
            v_lshrrev_b32 v2, 5, v0
            v_xor_b32 v1, v1, v2
            v_lshlrev_b32 v1, 4, v1
            v_and_b32 v2, 31, v0
            v_lshl_add_u32 v1, v2, 7, v1
            s_lshl_b32 s{sT+6}, s{sLW}, 12
            s_add_u32 s{sT+6}, s{sT+6}, {STAGE}
            v_add_u32 v{vSW}, s{sT+6}, v1
            v_xor_b32 v{vSW+1}, 32, v{vSW}
            v_xor_b32 v{vSW+2}, 64, v{vSW}
            v_xor_b32 v{vSW+3}, 96, v{vSW}
            v_add_u32 v{vSR}, s{sT+6}, v{vO0}
            v_lshrrev_b32 v2, 3, v0
            v_and_b32 v1, 7, v0
            v_xor_b32 v1, v1, v2
            v_lshlrev_b32 v1, 4, v1
            v_lshl_add_u32 v{vOA}, v2, 12, v1
            s_lshl_b32 s{sOO}, s{sSEG}, 19
            s_lshl_b32 s{sT+6}, s{sLW}, 17
            s_add_u32 s{sOO}, s{sOO}, s{sT+6}
            s_lshl_b32 s{sT+6}, s{sPAR}, 11
            s_add_u32 s{sOO}, s{sOO}, s{sT+6}
            s_lshl_b32 s{sT+6}, s{sBR}, 10
            s_add_u32 s{sOO}, s{sOO}, s{sT+6}
            """)
            for r in range(cfg.om): e(f"s_add_u32 s{sSO+r}, s{sOO}, {32768*r}")
            if cfg.om:
                for i in (1, 2, 3, 5, 6): e(f"v_add_u32 v{vOi[i]}, {4096*i}, v{vO0}")
                e(f"""
                s_add_u32 s{sDF}, s{sFL}, {WS_D - WS_FLAG}
                s_lshl_b32 s{sDS}, s{sG}, 2
                s_add_u32 s{sDS}, s{sDS}, s{sDF}
                """)
            e(f"""
            s_lshl_b32 s{sT+6}, s{sG}, 7
            s_add_u32 s{sOO}, s{sOO}, s{sT+6}
            """)
        if c == max(cfg.su, 0) * 3:
            e(f"""
            v_lshrrev_b32 v3, 3, v0
            v_and_b32 v4, 7, v0
            v_lshrrev_b32 v5, 2, v0
            v_and_b32 v5, 4, v5
            v_xor_b32 v4, v4, v5
            v_lshlrev_b32 v4, 4, v4
            v_lshl_add_u32 v4, v3, 10, v4
            s_lshl_b32 s{sT+6}, s{sLW}, 17
            s_lshl_b32 s{sT+7}, s{sG}, 7
            s_add_u32 s{sT+6}, s{sT+6}, s{sT+7}
            v_add_u32 v{vWO}, s{sT+6}, v4
            v_add_u32 v{vWO+1}, 7168, v{vWO}
            v_add_u32 v{vWO+2}, 14336, v{vWO}
            v_add_u32 v{vWO+3}, 21504, v{vWO}
            """)
        if c == 0 and cfg.su < 0: issue(1)
        if c == 0: n12 = xat(12); nX += n12
        if c == 1: nX += n12
        if c == 0 and cfg.e2: issue(2); nX = 11
        if c == 3:
            e(f"""
            s_getreg_b32 s{sAV}, hwreg(HW_REG_XCC_ID, 0, 4)
            s_waitcnt lgkmcnt(0)
            s_add_u32 s{sAV}, s{sAV}, s{sEP}
            s_add_u32 s{sAV}, s{sAV}, {K2}
            s_add_u32 s{sEP}, s{sEP}, {K1}
            """)
            if cfg.om: e(f"v_mov_b32 v{vDV}, s{sEP}")
        if c == cfg.ac:
            e(f"""
            s_add_u32 s{sT+6}, s19, {WS_A}
            s_load_dwordx8 s[4:11], s[20:21], s{sT+6} glc
            """)
        if c == 6:
            if not cfg.late: acheck()
            e(f"""
            s_lshl_b32 s{sXB}, s{sLW}, 14
            s_waitcnt vmcnt({11 + nX}) {'' if cfg.late else 'lgkmcnt(0)'}
            """)
            nX7 += xat(11)
            e("s_barrier")
            stamp()
        elif c == 7:
            nX = xat(8) + nX7
            def wo(i):
                gq, j = i >> 2, i & 3
                if j == 0 and not cfg.wsh: e(f"s_add_u32 m0, s{sXB}, {WO_L + 4096*gq}\ns_mov_b32 s{sKO}, {32768*gq}")
                if j == 0 and cfg.wsh:
                    e(f"""
                    s_add_u32 s{sKO}, s{sRT}, {gq}
                    s_and_b32 s{sKO}, s{sKO}, 3
                    s_lshl_b32 s{sWOFF}, s{sKO}, 12
                    s_add_u32 s{sWOFF}, s{sWOFF}, s{sXB}
                    s_add_u32 m0, s{sWOFF}, {WO_L}
                    s_lshl_b32 s{sKO}, s{sKO}, 15
                    """)
                e(f"buffer_load_dwordx4 v{vWO+j}, {srd(sWO)}, s{sKO} offen offset:{1024*j} lds")
            for i in range(cfg.nw0): wo(i)
            e(f"s_waitcnt vmcnt({nX + cfg.nw0})")
            if cfg.sm == 1: stamp()
            for i in range(cfg.nw0, cfg.nw): wo(i)
            if cfg.late:
                acheck(); e("s_waitcnt lgkmcnt(0)")
            if cfg.sm == 1: stamp()
            e("s_barrier")
            stamp()
            for i in range(cfg.nw, cfg.nw1): wo(i)
            if cfg.b9 >= 0: e("s_barrier")
            for i in range(max(cfg.nw, cfg.nw1), 16): wo(i)
            nX = xat(9)
            e(f"buffer_load_dword v{vP}, v{vPO}, {srd(sWS)}, s{sFL} offen sc1")
            e(f"s_mov_b32 s{sSP}, {0x10000000 if cfg.stamps else 0x200000}\ns_waitcnt vmcnt({nX+1})")
        else:
            e(f"s_waitcnt vmcnt({11+nX})\ns_barrier")
            if c == 0 or cfg.sm == 2: stamp()
    if cfg.sm != 2: stamp()
    if cfg.lp2: e(f"s_setprio {cfg.lp2}")
    if cfg.b8 < 0: e("v_mov_b32 v2, 1\nds_write_b32 v3, v2 offset:16")
    def lsync(sx=""):
        if cfg.b8 >= 0: e("s_barrier"); return
        e(f"""
L_ls{sx}:
        ds_read_b128 v[{WF}:{WF+3}], v{vD} offset:16
        s_sub_u32 s{sSP}, s{sSP}, 1
        s_cmp_lt_i32 s{sSP}, 0
        s_cbranch_scc1 L_lsx{sx}
        s_waitcnt lgkmcnt(0)
        v_and_b32 v{WF}, v{WF}, v{WF+1}
        v_and_b32 v{WF+2}, v{WF+2}, v{WF+3}
        v_and_b32 v{WF}, v{WF}, v{WF+2}
        v_cmp_eq_u32 vcc, 0, v{WF}
        s_cbranch_vccnz L_ls{sx}
L_lsx{sx}:
        """)
    e(f"v_mov_b32 v{vD}, 0")
    if cfg.om: e(f"v_add_u32 v{vOi[7]}, {4096*7}, v{vO0}")
    def wrd(H):
        r, i = H >> 3, H & 7
        R = []
        for m in range(2):
            for j in range(2):
                d = WF + 8*i + 4*m + 2*j
                R.append(f"ds_read_b64_tr_b16 v[{d}:{d+1}], v{vA+2*r+m} offset:{(i>>2)*32768 + (i&3)*2048 + j*512}")
        return R
    def oload(H):
        r, i = H >> 3, H & 7
        if r < cfg.om: return f"buffer_load_dwordx4 {vr(OF+4*H,4)}, v{vOi[i]}, {srd(sOUT)}, s{sSO+r} offen {cfg.ld_flags}"
        return f"buffer_load_dwordx4 {vr(OF+4*H,4)}, v{vO0 + (i>>2)}, {srd(sWS)}, s{sSO+r} offen offset:{(i&3)*1024} {cfg.ld_flags}"
    def poll(r): return f"buffer_load_dword v{vP}, v{vPO}, {srd(sWS)}, s{sFL} offen offset:{32*r} sc1"
    vq = []
    dq = []
    def ivm(tag, text): e(text); vq.append(tag)
    def ids(tag, text):
        if len(dq) >= 14:
            e(f"s_waitcnt lgkmcnt({cfg.lk})"); del dq[:len(dq) - cfg.lk]
        e(text); dq.append(tag)
    def wait(vt=None, dt=None):
        parts = []
        if vt is not None and vt in vq:
            k = len(vq) - 1 - max(i for i, t in enumerate(vq) if t == vt)
            parts.append(f"vmcnt({k})"); del vq[:len(vq) - k]
        if dt is not None and dt in dq:
            k = len(dq) - 1 - max(i for i, t in enumerate(dq) if t == dt)
            k2 = min(k, 15)
            parts.append(f"lgkmcnt({k2})"); del dq[:len(dq) - k2]
        if parts: e("s_waitcnt " + " ".join(parts))
    def check(r):
        wait(vt=("P", r))
        e(f"""
L_chk{r}:
        v_cmp_ne_u32 vcc, s{sEP}, v{vP}
        s_cbranch_vccnz L_spin{r}
L_ok{r}:
        """)
    def stage_loads(r):
        T = [(("L", 8*r + i), oload(8*r + i)) for i in range(8)]
        if r < 3: T.insert(cfg.kp, (("P", r + 1), poll(r + 1)))
        return T
    if cfg.g2 == 0:
        lsync()
        ivm(("P", 0), poll(0))
        for H in range(7):
            for x in wrd(H): ids(H, x)
        check(0)
        stamp()
        for t, x in stage_loads(0): ivm(t, x)
    elif cfg.g2 == 2:
        vq.append(("P", 0))
        wait(vt=("P", 0))
        e(f"v_cmp_ne_u32 vcc, s{sEP}, v{vP}\ns_cbranch_vccnz L_pre")
        for t, x in stage_loads(0): ivm(t, x)
        lsync()
        for H in range(7):
            for x in wrd(H): ids(H, x)
        e("L_prej:")
        if cfg.sm != 2: stamp()
        v1, d1 = list(vq), list(dq)
        mark = len(L); vq[:] = []; dq[:] = []
        e("L_pre:")
        ivm(("P", 0), poll(0))
        lsync("b")
        for H in range(7):
            for x in wrd(H): ids(H, x)
        check(0)
        for t, x in stage_loads(0): ivm(t, x)
        e("s_branch L_prej")
        assert vq == v1 and dq == d1
        pre_alt = L[mark:]; del L[mark:]
    else:
        vq.append(("P", 0))
        e("L_again:")
        check(0)
        if cfg.sm != 2: stamp()
        for t, x in stage_loads(0): ivm(t, x)
        lsync()
        for H in range(7):
            for x in wrd(H): ids(H, x)
    alts = []; dstub = []
    dpoll = f"buffer_load_dword v{vP}, v{vPO}, {srd(sWS)}, s{sDF} offen sc1"
    def dsig():
        k = len(dstub); st = f"buffer_store_dword v{vDV}, off, {srd(sWS)}, s{sDS}"
        ivm(("D",), f"s_cmp_eq_u32 s4, 0\ns_mov_b64 exec, 1\ns_cbranch_scc1 L_dst{k}\n{st} {cfg.ddf_flags}\nL_dsb{k}:\ns_mov_b64 exec, -1")
        dstub.append(f"L_dst{k}:\n{st} sc1\ns_branch L_dsb{k}")
    def heads(r, pending, per, alt=False):
        for i in range(8):
            H = 8*r + i
            wait(vt=("L", H), dt=H)
            for m in range(2):
                cc = "0" if H == 0 else vr(ACC+16*m, 16)
                e(f"v_mfma_f32_32x32x16_bf16 {vr(ACC+16*m,16)}, {vr(WF+8*i+4*m,4)}, {vr(OF+4*H,4)}, {cc}")
                if cfg.om and m == 0 and H == 8*cfg.om - 1 and not alt: dsig()
                if cfg.om and m == 1 and H == 24 + cfg.dp: ivm(("DP",), dpoll)
                if cfg.ht and m == 0 and i & 1:
                    c3 = "0" if H == 1 else f"v{vD+1}"
                    e(f"v_max3_u32 v{vD+1}, v{OF+4*H-4}, v{OF+4*H}, {c3}")
                if cfg.ht and m == 1 and H == 31:
                    e(f"v_cmp_eq_u32 vcc, -1, v{vD+1}\ns_cbranch_vccnz L_redo\nL_redox:")
                for _ in range(per[2*i + m]):
                    if pending:
                        t, x = pending.pop(0); ivm(t, x)
                if H + 7 < 32:
                    for x in wrd(H + 7)[2*m:2*m+2]: ids(H + 7, x)
        assert not pending
    if cfg.g3:
        assert cfg.kp == 0
        for r in range(4):
            if r < 3:
                wait(vt=("P", r + 1))
                e(f"v_cmp_ne_u32 vcc, s{sEP}, v{vP}\ns_cbranch_vccnz L_alt{r}")
                v0, d0 = list(vq), list(dq)
                pend = stage_loads(r + 1)
                t, x = pend.pop(0); ivm(t, x)
                heads(r, pend, [[1, 0]*8, [1, 1, 1, 0]*4, [1]*16][cfg.g3 - 1])
                e(f"L_join{r}:")
                if cfg.sm == 0 or (r == 2 and cfg.sm == 1): stamp()
                v1, d1 = list(vq), list(dq)
                mark = len(L)
                vq[:] = v0; dq[:] = d0
                e(f"L_alt{r}:")
                if cfg.stamps: e(f"s_sub_u32 s{sSP}, s{sSP}, {0x100 << (4*r)}")
                heads(r, [(("P", r + 1), poll(r + 1))], [0]*cfg.ap + [1]*16, True)
                check(r + 1)
                for t, x in stage_loads(r + 1): ivm(t, x)
                if r + 1 == cfg.om: dsig()
                e(f"s_branch L_join{r}")
                assert dq == d1 and vq[-len(v1):] == v1, (vq, v1)
                alts.append(L[mark:]); del L[mark:]
                vq[:] = v1
            else:
                heads(r, [], [0]*16)
    else:
        pending = []
        for H in range(32):
            r, i = H >> 3, H & 7
            if i == cfg.kp and r < 3:
                check(r + 1)
                if cfg.sm == 0 or r == 2: stamp()
                pending = stage_loads(r + 1)
                for _ in range(3):
                    t, x = pending.pop(0); ivm(t, x)
            wait(vt=("L", H), dt=H)
            for m in range(2):
                cc = "0" if H == 0 else vr(ACC+16*m, 16)
                e(f"v_mfma_f32_32x32x16_bf16 {vr(ACC+16*m,16)}, {vr(WF+8*i+4*m,4)}, {vr(OF+4*H,4)}, {cc}")
                if H + 7 < 32:
                    for x in wrd(H + 7)[2*m:2*m+2]: ids(H + 7, x)
                for _ in range(2):
                    if pending:
                        t, x = pending.pop(0); ivm(t, x)
    stamp()
    cvt = lambda d, a: e(f"v_cvt_pk_bf16_f32 v{d}, v{a}, v{a+1}\nv_cvt_pk_bf16_f32 v{d+1}, v{a+2}, v{a+3}")
    for m in range(2):
        for qq in range(2):
            a = ACC + 16*m + 8*qq; d = 8*m + 4*qq
            cvt(d, a); cvt(d + 2, a + 4)
            e(f"ds_write_b128 v{vSW + 2*m + qq}, {vr(d,4)}")
        if cfg.om and cfg.dp == 8 + m: ivm(("DP",), dpoll)
    e("s_waitcnt lgkmcnt(0)")
    for it in range(4):
        e(f"ds_read_b128 {vr(16+4*it,4)}, v{vSR} offset:{1024*it}")
    if cfg.om:
        if cfg.dp == 10: ivm(("DP",), dpoll)
        e(f"""
        s_waitcnt vmcnt(0)
L_dchk:
        v_cmp_ne_u32 vcc, s{sEP}, v{vP}
        s_cbranch_vccnz L_dspin
L_dok:
        """)
    for it in range(4):
        e(f"s_waitcnt lgkmcnt({3-it})")
        if it > 0: e(f"s_add_u32 s{sOO}, s{sOO}, 32768")
        e(f"buffer_store_dwordx4 {vr(16+4*it,4)}, v{vOA}, {srd(sOUT)}, s{sOO} offen {cfg.out_flags}")
    e(f"""
    s_or_b32 s{sT+6}, s{sG}, s{sLW}
    s_cbranch_scc0 L_epoch
L_epochx:
    """)
    if cfg.diag:
        e("""
        s_memrealtime s[92:93]
L_dsp:
        s_memrealtime s[96:97]
        s_waitcnt lgkmcnt(0)
        s_sub_u32 s96, s96, s92
        s_cmp_lt_u32 s96, s3
        s_cbranch_scc1 L_dsp
        """)
    if cfg.stamps:
        e("s_waitcnt vmcnt(0)"); stamp()
    dump_stamps(nst[0], True)
    e("L_end:\ns_endpgm")
    for r in range(4):
        e(f"""
L_spin{r}:
        s_sub_u32 s{sSP}, s{sSP}, 1
        s_cmp_lt_i32 s{sSP}, 0
        s_cbranch_scc1 L_ok{r}
        {poll(r)}
        s_waitcnt vmcnt(0)
        s_branch L_chk{r}
        """)
    for al in alts: L.extend(al)
    if cfg.g2 == 2: L.extend(pre_alt)
    for x in dstub: e(x)
    if cfg.om:
        e(f"""
L_dspin:
        s_sub_u32 s{sSP}, s{sSP}, {0x80000 if cfg.stamps else 1}
        s_cmp_lt_i32 s{sSP}, 0
        s_cbranch_scc1 L_dok
        {dpoll}
        s_waitcnt vmcnt(0)
        s_branch L_dchk
        """)
    if cfg.ht:
        e(f"""
L_redo:
        s_sub_u32 s{sSP}, s{sSP}, {0x80000 if cfg.stamps else 64}
        s_cmp_lt_i32 s{sSP}, 0
        s_cbranch_scc1 L_redox
        {poll(0)}
        s_branch L_again
        """)
    e(f"""
L_epoch:
    s_lshl_b32 s{sT+6}, s{sRT}, 7
    s_add_u32 s{sT+6}, s{sT+6}, {WS_E}
    v_mov_b32 v{vD}, s{sEP}
    s_mov_b64 exec, 1
    buffer_store_dword v{vD}, off, {srd(sWS)}, s{sT+6}
    s_mov_b64 exec, -1
    s_branch L_epochx
    """)
    nst[0] = 1
    e("L_compute:")
    AQ = 0; AK = 32; AV = 68
    BUF = [104, 152]
    W15 = 200
    vB = 212; vB0 = 216; vONE = 220
    vXA = 224; vWA = 230; vHA = 233
    vSO, vFO, vFV = 235, 236, 237
    VP = 238
    def accQ(t): return AQ + 4*t
    def accK(t): return AK + 4*(t+1)
    def accV(t): return AV + 4*(t+1)
    sSC = 56; sMH = 58; sPM = 60; sDO = 12; sFO = 45; sS = 46
    e(f"""
    v_and_b32 v1, 15, v0
    v_lshrrev_b32 v2, 4, v0
    v_bfe_u32 v3, v0, 1, 3
    v_xor_b32 v3, v3, v2
    v_lshlrev_b32 v3, 4, v3
    v_lshl_add_u32 v3, v1, 7, v3
    v_add_u32 v{vXA}, {SLOT0}, v3
    v_xor_b32 v{vXA+1}, 64, v{vXA}
    v_add_u32 v{vXA+2}, {SLOTSZ}, v{vXA}
    v_add_u32 v{vXA+3}, {SLOTSZ}, v{vXA+1}
    v_add_u32 v{vXA+4}, {2*SLOTSZ}, v{vXA}
    v_add_u32 v{vXA+5}, {2*SLOTSZ}, v{vXA+1}
    v_and_b32 v3, 6, v0
    v_xor_b32 v3, v3, v2
    v_lshlrev_b32 v3, 4, v3
    v_and_b32 v4, 7, v0
    v_lshl_add_u32 v{vHA}, v4, 7, v3
    {"v_and_b32 v4, 8, v0" if cfg.hzero else ""}
    {"v_xor_b32 v4, 8, v4" if cfg.hzero else ""}
    {f"v_lshl_add_u32 v{vHA}, v4, 15, v{vHA}" if cfg.hzero else ""}
    v_xor_b32 v{vHA+1}, 64, v{vHA}
    v_bfe_u32 v3, v0, 3, 2
    v_xor_b32 v3, s{sWAVE}, v3
    v_lshlrev_b32 v3, 5, v3
    v_and_b32 v4, 3, v0
    v_lshl_add_u32 v3, v4, 3, v3
    v_bfe_u32 v4, v0, 2, 2
    v_lshl_add_u32 v3, v4, 7, v3
    v_mul_u32_u24 v4, 3072, v2
    v_add_u32 v3, v3, v4
    v_add_u32 v{vWA}, {SLOT0+16384}, v3
    v_add_u32 v{vWA+1}, {SLOT0+16384+SLOTSZ}, v3
    v_add_u32 v{vWA+2}, {SLOT0+16384+2*SLOTSZ}, v3
    v_lshlrev_b32 v3, 2, v2
    v_sub_u32 v3, v1, v3
    v_mov_b32 v5, 0xff800000
    s_cmp_eq_u32 s{sSEG}, 0
    s_cselect_b32 s{sT}, {f2u(-4e9)}, 0
    v_mov_b32 v6, s{sT}
    """)
    for r in range(4):
        e(f"""
        v_subrev_u32 v4, {r}, v3
        v_cmp_gt_i32 s[62:63], 0, v4
        v_and_b32 v4, 8, v4
        v_cmp_eq_u32 vcc, 0, v4
        v_cndmask_b32 v{vB0+r}, 0, v6, s[62:63]
        v_cndmask_b32 v{vB+r}, v5, 0, vcc
        v_cndmask_b32 v{vB0+r}, v5, v{vB0+r}, vcc
        v_mov_b32 v{vONE+r}, 0x3f803f80
        """)
    e(f"""
    v_lshlrev_b32 v{vSO}, 4, v0
    v_mov_b32 v{VP+2}, 0
    v_mov_b32 v{VP+4}, -1
    v_mov_b32 v{VP+5}, -1
    v_mov_b32 v{VP+6}, -1
    v_mov_b32 v{VP+7}, -1
    v_lshlrev_b32 v1, 6, v1
    v_lshl_add_u32 v{VP+3}, v2, 15, v1
    v_min_u32 v{vFO}, 1, v0
    v_lshlrev_b32 v{vFO}, 30, v{vFO}
    s_mov_b32 s{sSC}, {f2u(0.25*1.4426950408889634)}
    s_mov_b32 s{sMH}, 0xff00ff00
    s_mov_b32 s{sMH+1}, 0xff00ff00
    s_mov_b32 s{sPM}, 0
    s_mov_b32 s{sPM+1}, 0x00ff00ff
    s_and_b32 s{sS}, s{sG}, 3
    s_lshl_b32 s{sT}, s{sRT}, 7
    s_add_u32 s47, s{sT}, {WS_E}
    s_waitcnt lgkmcnt(0)
    s_load_dword s{sEP}, s[20:21], s47
    s_mov_b32 s{sWS}, s20
    s_mov_b32 s{sWS+1}, s21
    s_mov_b32 s{sWS+2}, 0x10000000
    s_mov_b32 s{sWS+3}, 0x20000
    s_lshl_b32 s47, s{sG}, 2
    s_add_u32 s62, s47, s{sT}
    s_add_u32 s62, s62, {WS_A}
    s_add_u32 s47, s47, s{sWAVE}
    s_add_u32 s47, s47, s{sT}
    s_lshl_b32 s{sDO}, s47, 10
    s_add_u32 s{sDO+1}, s{sDO}, 32768
    s_add_u32 s{sDO+2}, s{sDO}, 65536
    s_add_u32 s{sDO+3}, s{sDO}, 98304
    """)
    if cfg.om:
        e(f"""
        s_mov_b32 s{sOUT}, s16
        s_mov_b32 s{sOUT+1}, s17
        s_mov_b32 s{sOUT+2}, 0x400000
        s_mov_b32 s{sOUT+3}, 0x20000
        s_mov_b32 s16, s{sDO}
        s_lshl_b32 s17, s{sSEG}, 7
        s_and_b32 s47, s{sG}, 4
        s_add_u32 s17, s17, s47
        s_add_u32 s17, s17, s{sWAVE}
        s_lshl_b32 s17, s17, 1
        s_add_u32 s17, s17, s{sPAR}
        s_lshl_b32 s17, s17, 1
        s_add_u32 s17, s17, s{sBR}
        s_lshl_b32 s17, s17, 10
        """)
        for r in range(4):
            e(f"s_add_u32 s47, s{sS}, {r}\ns_and_b32 s47, s47, 3")
            if r < cfg.om: e(f"s_lshl_b32 s47, s47, 17\ns_add_u32 s47, s47, {32768*r}\ns_add_u32 s{sDO+r}, s47, s17")
            else: e(f"s_lshl_b32 s47, s47, 15\ns_add_u32 s{sDO+r}, s47, s16")
    e(f"""
    s_lshl_b32 s{sFO}, s{sRT}, 7
    s_and_b32 s47, s{sG}, 4
    s_add_u32 s{sFO}, s{sFO}, s47
    s_add_u32 s{sFO}, s{sFO}, s{sWAVE}
    s_lshl_b32 s{sFO}, s{sFO}, 2
    s_add_u32 s{sFO}, s{sFO}, {WS_FLAG}
    s_getreg_b32 s63, hwreg(HW_REG_XCC_ID, 0, 4)
    """)
    if cfg.rt:
        e(f"""
        v_lshlrev_b32 v1, {6 if cfg.rtn == 16 else 7}, v0
        v_bfrev_b32 v2, 2
        v_cmp_gt_u32 vcc, {cfg.rtn}, v0
        v_cndmask_b32 v234, v2, v1, vcc
        """)
    if cfg.ht and cfg.pf0 == -10:
        for q in range(4): e(f"buffer_store_dwordx4 {vr(VP+4,4)}, v{vSO}, {srd(sWS)}, s{sDO + q} offen {cfg.pf_flags}")
    if cfg.xap > 1:
        sh = {2: 5, 4: 4}[cfg.xap]
        e(f"v_lshrrev_b32 v1, {sh}, v0\nv_mov_b32 v2, v{VP+3}\nv_bfrev_b32 v3, 2")
        for k in range(cfg.xap):
            e(f"v_cmp_eq_u32 vcc, {k}, v1\nv_cndmask_b32 v{VP+3+k}, v3, v2, vcc")
    def tree(lab):
        e(f"""
        s_cmp_eq_u32 s{sS}, 1
        s_cbranch_scc1 {lab}1
        s_cmp_eq_u32 s{sS}, 2
        s_cbranch_scc1 {lab}2
        s_cmp_eq_u32 s{sS}, 3
        s_cbranch_scc1 {lab}3
        s_branch {lab}0
        """)
    e(f"""
    s_waitcnt vmcnt({4 if cfg.ht and cfg.pf0 == -10 else 0}) lgkmcnt(0)
    s_add_u32 s63, s63, s{sEP}
    s_add_u32 s63, s63, {K2}
    s_add_u32 s{sEP}, s{sEP}, {K1}
    v_mov_b32 v1, s63
    v_mov_b32 v{vFV}, s{sEP}
    s_cmp_eq_u32 s{sWAVE}, 0
    s_cbranch_scc0 L_noann
    buffer_store_dword v1, v{vFO}, {srd(sWS)}, s62 offen sc1
L_noann:
    """)
    if cfg.ht and cfg.pf0 == -11:
        for q in range(4): e(f"buffer_store_dwordx4 {vr(VP+4,4)}, v{vSO}, {srd(sWS)}, s{sDO + q} offen {cfg.pf_flags}")
    if cfg.warm and cfg.VS > 0:
        tree("L_w")
        e("L_wback:")
    def xreg(step, t): return BUF[step & 1] + 4*(t + 1)
    def wbase(step): return W15 if (step == cfg.R0 + 2) else BUF[step & 1] + 36
    def wreads(step):
        c, s = step >> 1, step & 1
        R = []
        for p in (1, 2, 0):
            for j in range(2):
                d = wbase(step) + 4*p + 2*j
                R.append(f"ds_read_b64_tr_b16 v[{d}:{d+1}], v{vWA + c % 3} offset:{s*12288 + p*1024 + j*512}")
        return R
    def xread(step, t):
        c, s = step >> 1, step & 1
        d = xreg(step, t)
        if t < 0: return f"ds_read_b128 v[{d}:{d+3}], v{vHA+s} offset:{c*1024}"
        return f"ds_read_b128 v[{d}:{d+3}], v{vXA+2*(c % 3)+s} offset:{t*2048}"
    def reads(step): return wreads(step) + [xread(step, t) for t in range(-1, 8)]
    def mf(step, t, j):
        a = (accQ, accK, accV)[j](t); w = vr(wbase(step) + 4*j, 4); x = vr(xreg(step, t), 4)
        c = "0" if step == 0 else vr(a, 4)
        ops = f"{x}, {w}" if j == 2 else f"{w}, {x}"
        return f"v_mfma_f32_16x16x32_bf16 {vr(a,4)}, {ops}, {c}"
    def mfmas(step):
        if cfg.order == 3:
            M = [mf(step, -1, 1)]
            for t in range(8):
                M += [mf(step, t, 1), mf(step, t, 0)] if t % 2 == 0 else [mf(step, t, 0), mf(step, t, 1)]
            M += [mf(step, t, 2) for t in range(-1, 8)]
        else:
            M = []
            for t in range(-1, 8):
                M += [mf(step, t, 1), mf(step, t, 2)] + ([mf(step, t, 0)] if t >= 0 else [])
        return M
    def kstep(step):
        e("s_waitcnt lgkmcnt(0)")
        if step & 1 and step < 15:
            e("s_barrier")
            if step in (7,): stamp()
        if step == 12 and not cfg.late:
            e(f"v_cmp_ne_u32 vcc, 0, v{VP}")
        M = mfmas(step); F = reads(step + 1)
        if step == 11 and not cfg.late:
            F = F + [f"v_mov_b32 v{VP+1}, 0", f"ds_read_b32 v{VP}, v{VP+1}"]
        if cfg.ht and cfg.pfi >= 0 and step == cfg.pf0:
            F = F + [""] * (cfg.pfi - len(F))
            for q in range(4):
                F = F + [f"buffer_store_dwordx4 {vr(VP+4,4)}, v{vSO}, {srd(sWS)}, s{sDO + q} offen {cfg.pf_flags}", ""]
            assert len(F) <= 27
        if cfg.ht and cfg.pfi < 0 and cfg.pf0 <= step < cfg.pf0 + 4:
            F = F + [f"buffer_store_dwordx4 {vr(VP+4,4)}, v{vSO}, {srd(sWS)}, s{sDO + step - cfg.pf0} offen {cfg.pf_flags}"]
        if cfg.xa >= 0:
            at = lambda k: f"buffer_atomic_or v{VP+2}, v{VP+3+k}, {srd(sWS)}, s{sDO} offen {cfg.xa_flags}"
            if cfg.xap > 1:
                for k in range(cfg.xap):
                    if step == cfg.xa + k * cfg.xas: F = F + [at(k)]
            elif cfg.xas == 0:
                if step == cfg.xa: F = F + [at(0)]
            else:
                for w in range(4):
                    if step == cfg.xa + w * cfg.xas:
                        F = F + [f"s_cmp_eq_u32 s{sWAVE}, {w}", f"s_cbranch_scc0 L_xa{w}\n{at(0)}\nL_xa{w}:"]
        for i, m in enumerate(M):
            e(m)
            if i < len(F): e(F[i])
    def Vp(t): return VP + 2*(7 - t)
    def region(s):
        dstores = []
        stubs = []
        R0 = cfg.R0
        units = []
        first = 2*s - 1
        units.append((0, first, (1, 2)))
        for r in range(4):
            q = (r + s) & 3
            if q == 0 and s != 0: units.append((r, -1, (1, 2)))
            a, b = 2*q, 2*q + 1
            units.append((r, a, (1, 0, 2)))
            units.append((r, b, (0,) if b == first else (1, 0, 2)))
        I = []
        seen = set()
        for step in range(R0, 16):
            if step > R0:
                for k, x in enumerate(wreads(step)): I.append(Item(x, (-2, step, k)))
                tl = []
                for u, (r, t, js) in enumerate(units):
                    if t not in tl:
                        tl.append(t); I.append(Item(xread(step, t), (-1, u, step)))
            for u, (r, t, js) in enumerate(units):
                for k, j in enumerate(js):
                    rr = 0 if (js == (0,) and step + 2 <= 15) else r
                    I.append(Item(mf(step, t, j), (rr, 0, 0 if rr != r else u, step, k), tag=(f"g{r}" if step == 15 and u == len(units) - 1 and j == js[-1] else None)))
        if cfg.late:
            I.append(Item(f"v_mov_b32 v{vXA}, 0", (-3, 0)))
            I.append(Item(f"ds_read_b32 v{vXA+1}, v{vXA}", (-1, 99)))
            I.append(Item(f"v_cmp_ne_u32 vcc, 0, v{vXA+1}", (0, 0)))
        cv = lambda d, a, n: f"v_cvt_pk_bf16_f32 v{d}, v{a+2*n}, v{a+2*n+1}"
        kdone = set()
        prev_store = None; prev_flag = None
        for r in range(4):
            q = (r + s) & 3
            a, b = 2*q, 2*q + 1
            n = [0]
            def add(text, **kw):
                n[0] += 1
                it = Item(text, (r, 1, n[0]), **kw); I.append(it); return it
            for t in (a - 1, a, b):
                if t not in kdone:
                    kdone.add(t)
                    add(cv(accK(t), accK(t), 0)); add(cv(accK(t) + 1, accK(t), 1))
                    add(cv(Vp(t), accV(t), 0)); add(cv(Vp(t) + 1, accV(t), 1))
            XE = lambda t: BUF[0] + 4*(t + 1)
            XO = lambda t: BUF[1] + 4*(t + 1)
            for t in (a, b):
                Q = accQ(t)
                for k in range(2): add(f"v_cndmask_b32 v{accK(t)+2+k}, v{accK(t)+k}, v{accK(t-1)+k}, s[{sMH}:{sMH+1}]")
                add(cv(Q, Q, 0)); add(cv(Q + 1, Q, 1))
                for k in range(2): add(f"v_cndmask_b32 v{Q+2+k}, v{Q+k}, 0, s[{sMH}:{sMH+1}]")
                for k in range(2): add(f"v_cndmask_b32 v{Q+k}, 0, v{Q+k}, s[{sMH}:{sMH+1}]")
                add(f"v_mfma_f32_16x16x32_bf16 {vr(XE(t),4)}, {vr(accK(t),4)}, {vr(Q,4)}, {vr(vB0 if t == 0 else vB,4)}")
            for t in (a, b):
                S = XE(t)
                add(f"v_max3_f32 v{XO(t)}, v{S}, v{S+1}, v{S+2}")
                add(f"v_max_f32 v{XO(t)}, v{XO(t)}, v{S+3}")
            ma, mb = XO(a), XO(b)
            add(f"v_permlane32_swap_b32 v{ma}, v{mb}")
            add(f"v_max_f32 v{ma+1}, v{ma}, v{mb}")
            add(f"v_max_f32 v{ma}, v{ma}, v{mb}")
            add(f"v_permlane16_swap_b32 v{ma}, v{ma+1}")
            add(f"v_max_f32 v{ma}, v{ma}, v{ma+1}")
            add(f"v_mul_f32 v{mb}, s{sSC}, -v{ma}")
            add(f"v_mul_f32 v{ma}, s{sSC}, -v{ma}")
            add(f"v_permlane32_swap_b32 v{ma}, v{mb}")
            for t in (a, b):
                S = XE(t); P = accQ(t)
                for k in range(4): add(f"v_fma_f32 v{S+k}, v{S+k}, s{sSC}, v{XO(t)}")
                for k in range(4): add(f"v_exp_f32 v{S+k}, v{S+k}")
                add(cv(P, S, 0)); add(cv(P + 1, S, 1))
                for k in range(2): add(f"v_cndmask_b32 v{P+2+k}, 0, v{P+k}, s[{sPM}:{sPM+1}]")
                for k in range(2): add(f"v_cndmask_b32 v{P+k}, v{P+k}, 0, s[{sPM}:{sPM+1}]")
                add(f"v_mfma_f32_16x16x32_bf16 {vr(XO(t),4)}, {vr(vONE,4)}, {vr(P,4)}, 0")
                add(f"v_mfma_f32_16x16x32_bf16 {vr(accV(t),4)}, {vr(Vp(t),4)}, {vr(P,4)}, 0")
            OP = XE(a)
            for t in (a, b):
                O = accV(t)
                add(f"v_rcp_f32 v{XO(t)}, v{XO(t)}")
                for k in range(4): add(f"v_mul_f32 v{O+k}, v{O+k}, v{XO(t)}")
                add(cv(OP + 2*(t - a), O, 0)); add(cv(OP + 2*(t - a) + 1, O, 1))
            add(f"v_permlane16_swap_b32 v{OP}, v{OP+2}")
            add(f"v_permlane16_swap_b32 v{OP+1}, v{OP+3}")
            st = f"buffer_store_dwordx4 {vr(OP,4)}, v{vSO}, {srd(sWS)}, s{sDO+q} offen"
            if cfg.om: st = f"buffer_store_dwordx4 {vr(OP,4)}, v{vSO}, {srd(sOUT if r < cfg.om else sWS)}, s{sDO+r} offen"
            fl = f"buffer_store_dword v{vFV}, v{vFO}, {srd(sWS)}, s{sFO} offen offset:{q*128 + r*32}"
            sx = ("\n" + stamp_text()) if cfg.stamps else ""
            if cfg.ht:
                add(f"v_min_u32 v{OP}, -2, v{OP}")
                t1, t2 = (f"{st} {cfg.fast_flags}", f"{fl} {cfg.ffl_flags}")
                if cfg.hbad: t1, t2 = t2 + "\n" + "s_nop 15\n" * cfg.hbad, t1
                w0 = "s_waitcnt vmcnt(0)\n" if r == 0 else ""
                store = add(f"{w0}s_cbranch_vccz L_ss{s}{r}\n{t1}\n{t2}\nL_sb{s}{r}:{sx}", tag=f"st{r}", urgent=True,
                            after=[(prev_store, 0)] if prev_store else None)
                stubs.append(f"L_ss{s}{r}:\n{st} sc1\ns_waitcnt vmcnt(0)\n{fl} sc1\ns_branch L_sb{s}{r}")
                if r == cfg.b8 or r == cfg.b9: add("s_barrier", after=[(store, 0)], urgent=True)
                prev_store = store
                continue
            dstores.append(st)
            if cfg.scm >> r & 1:
                store = add(f"{st} sc1{sx}", tag=f"st{r}", urgent=True, after=[(prev_store, 0)] if prev_store else None)
            else:
                store = add(f"s_cbranch_vccz L_ss{s}{r}\n{st} {cfg.fast_flags}\nL_sb{s}{r}:{sx}", tag=f"st{r}", urgent=True,
                            after=[(prev_store, 0)] if prev_store else None)
                stubs.append(f"L_ss{s}{r}:\n{st} sc1\ns_branch L_sb{s}{r}")
            if r == cfg.b8 or r == cfg.b9: add("s_barrier", after=[(store, 0)], urgent=True)
            tch = f"buffer_load_dword v{OP}, v234, {srd(sWS)}, s{sDO+q} offen {cfg.rt_flags}"
            if cfg.rt >> r & 1 and cfg.rtp == 0:
                prev_flag = add(tch, tag=f"tc{r}", urgent=True, waitvm=store, after=[(store, cfg.LF)] + ([(prev_flag, 0)] if prev_flag else []))
            flag = add(f"s_cbranch_vccz L_fs{s}{r}\n{fl} {cfg.ffl_flags}\nL_fb{s}{r}:", tag=f"fl{r}", urgent=True, waitvm=None if cfg.rt >> r & 1 and cfg.rtp == 0 else store,
                       after=[(store, cfg.LF)] + ([(prev_flag, 0)] if prev_flag else []))
            if cfg.rt >> r & 1 and cfg.rtp == 1:
                flag = add(tch, tag=f"tc{r}", urgent=True, after=[(flag, 0)])
            stubs.append(f"L_fs{s}{r}:\n{fl} sc1\ns_branch L_fb{s}{r}")
            prev_store = store; prev_flag = flag
        e("s_waitcnt lgkmcnt(0)")
        if R0 & 1 and R0 < 15: e("s_barrier")
        stamp()
        if cfg.prio: e(f"s_setprio {cfg.prio}")
        out, t = schedule(I, mfma_first=bool(cfg.mf), ds_lat=cfg.dslat, verbose=cfg.verbose)
        for x in out: e(x)
        if cfg.ds:
            if cfg.wbw: e("s_waitcnt vmcnt(0)")
            for r, x in enumerate(dstores):
                if cfg.ds >> r & 1: e(f"{x} {cfg.ds_flags}")
        if cfg.wb:
            if cfg.wb == 1: e(f"s_cmp_lg_u32 s{sWAVE}, 0")
            if cfg.wb == 2: e(f"s_or_b32 s{sT+6}, s{sWAVE}, s{sG}")
            if cfg.wb == 4: e(f"s_and_b32 s{sT+6}, s{sRT}, 3\ns_or_b32 s{sT+6}, s{sT+6}, s{sWAVE}\ns_or_b32 s{sT+6}, s{sT+6}, s{sG}")
            if cfg.wb != 3: e(f"s_cbranch_scc1 L_wb{s}")
            if cfg.wbw: e("s_waitcnt vmcnt(0)")
            e(f"buffer_wbl2 sc1\nL_wb{s}:")
        return stubs
    stamp()
    if cfg.VS > 0:
        e("s_barrier")
        stamp()
        for x in reads(0): e(x)
        for step in range(cfg.VS): kstep(step)
    tree("L_v")
    n0 = nst[0]
    for s in range(4):
        nst[0] = n0
        e(f".p2align 6\nL_w{s}:")
        e("s_branch L_wback\ns_nop 0" if cfg.warm and cfg.VS > 0 else "s_nop 0\ns_nop 0")
        e(f"L_v{s}:")
        if cfg.VS == 0:
            e("s_barrier")
            stamp()
            for x in reads(0): e(x)
        for step in range(cfg.VS, cfg.R0): kstep(step)
        stubs = region(s)
        stamp()
        dump_stamps(nst[0])
        e("s_endpgm")
        for x in stubs: e(x)
        e(f"L_ve{s}:")
    body, added = hz.fix("\n".join(L))
    return body, added

def finish(body, VSZ):
    K = NAME + "_kernel"
    for s in range(4):
        body = body.replace(f"L_ve{s}:", f"L_ve{s}:\n.fill ({VSZ}-(L_ve{s}-L_w{s}))/4, 4, 0xbf800000")
    s = HDR.format(launch="; @launch grid=(256,1,1) block=(512,1,1) lds=163840") + kernel_head(K) + body + "\n"
    s += ".fill 64, 4, 0xbf800000\n"
    s += kernel_desc(K, 256, 256, 102)
    return s

def build(cfg):
    import subprocess, re, os
    body, added = gen(cfg)
    tmp = f"g3_{os.getpid()}"
    open(tmp + ".s", "w").write(finish(body, 0).replace(".fill (0-", ".fill 0*(0-"))
    subprocess.run(["clang", "-x", "assembler", "-target", "amdgcn-amd-amdhsa", "-mcpu=gfx950", "-c", tmp + ".s", "-o", tmp + ".o"], check=True)
    sy = subprocess.run(["llvm-objdump", "-t", tmp + ".o"], capture_output=True, text=True).stdout
    A = {l.split()[-1]: int(l.split()[0], 16) for l in sy.strip().split("\n") if re.match(r"^[0-9a-f]{16} ", l)}
    sz = max(A[f"L_ve{s}"] - A[f"L_w{s}"] for s in range(4))
    sz = (sz + 63) // 64 * 64
    return finish(body, sz), added, (A["L_compute"], A["L_w0"], sz)

if __name__ == "__main__":
    kw = {}
    for a in sys.argv[2:]:
        k, v = a.split("=")
        if k == "tabs":
            for nm, t in zip(("tabA", "tabB", "tabC", "tabD"), v.split(",")):
                assert sorted(t) == list("01234567"); kw[nm] = int(t[::-1], 16)
            continue
        kw[k] = v.replace("+", " ") if k.endswith("flags") or k.startswith("dma_") else int(v, 0)
    s, added, info = build(Cfg(**kw))
    open(sys.argv[1], "w").write(s)
    print("nops added", added, "sizes", info)
```

```python
import sys, struct
from asmlib import *
import hz
from sched import Item, schedule

def f2u(f): return struct.unpack("<I", struct.pack("<f", f))[0]

class Cfg:
    stamps = 0
    fast_flags = "nt"
    ffl_flags = ""
    ld_flags = "sc1"
    pt_flags = "sc1"
    out_flags = "nt"
    dma_x = ""
    dma_w = ""
    order = 3
    hzero = 1
    tabA = 0x67452310
    tabB = 0x75634021
    R0 = 13
    VS = 13
    warm = 1
    LF = 600
    prio = 3
    lprio = 0
    nofast = 0
    kp = 0
    xwA = 0
    xwB = 0
    xoA = 0
    xoB = 0
    nw = 8
    ac = 5
    b8 = -1
    wsh = 1
    diag = 0
    di = -1
    dc = -1
    dm = 4
    ht = 0
    pf0 = 2
    pf_flags = 'nt'
    pfi = -1
    hbad = 0
    nw1 = 0
    b9 = -1
    g3 = 2
    ap = 4
    lk = 10
    g2 = 2
    lp2 = 0
    nw0 = 8
    xa = -1
    xas = 0
    xap = 1
    xa_flags = ''
    sm = 0
    su = -1
    late = 1
    mf = 1
    dslat = 128
    verbose = 0
    bp = 10
    rp = 2
    bpm = 0xffff
    tp = 0
    dup = 0
    sk3 = 0
    hp = 0
    hpp = 0
    hp0 = 0
    wx = 0
    nocp = 0
    noann = 0
    gx = 0
    xr = 0x4040
    rt = 0
    rtn = 16
    rtp = 0
    rt_flags = 'sc1'
    ptm = 15
    sw = 1
    tabC = -1
    tabD = -1
    e2 = 0
    om = 0
    dp = 4
    ddf_flags = ''
    scm = 15
    ds = 0
    ds_flags = 'sc1'
    wb = 0
    wbw = 1
    def __init__(self, **kw):
        for k, v in kw.items():
            assert hasattr(self, k), k
            setattr(self, k, v)

HALO = 0; SLOT0 = 8192; SLOTSZ = 40960; WO_L = 98304; STAGE = 8192
WS_FLAG = 8 << 20; WS_E = WS_FLAG + 65536; WS_A = WS_FLAG + 131072; WS_STAMP = 16 << 20; WS_D = WS_FLAG + 196608
K1 = 0x9e3779b9; K2 = 0x51ed270b
sX, sW, sWO, sOUT, sWS = 24, 28, 32, 36, 40
sEP = 44
sWAVE, sRT, sG, sBR, sPAR, sSEG, sCLS = 48, 49, 50, 51, 52, 53, 54
sT = 55
sST = 64
NST = 12
def srd(r): return f"s[{r}:{r+3}]"
def vr(a, n): return f"v[{a}:{a+n-1}]" if n > 1 else f"v{a}"

def gen(cfg):
    K = NAME + "_kernel"
    L = []
    def e(s):
        for ln in s.strip("\n").split("\n"):
            if ln.strip(): L.append(ln.strip() if ln.strip().endswith(":") else "    " + ln.strip())
    nst = [0]
    def stamp_text():
        i = nst[0]; nst[0] += 1
        assert i < NST
        return f"{'s_memrealtime' if cfg.stamps == 2 else 's_memtime'} s[{sST+2*i}:{sST+2*i+1}]"
    def stamp():
        if cfg.stamps: e(stamp_text())
    dcount = [0]
    def dump_stamps(n, ld=False):
        if not cfg.stamps: return
        if cfg.di >= 0 or cfg.dc >= 0:
            i = cfg.di if ld else cfg.dc
            if i < 0: return
            dcount[0] += 1
            e(f"""
            s_waitcnt vmcnt(0) lgkmcnt(0)
            s_sub_u32 s92, s{sST+2*i}, s{sST}
            s_mul_i32 s92, s92, {cfg.dm}
            s_min_u32 s92, s92, 40000
            s_add_u32 s92, s92, 4000
L_dd{dcount[0]}:
            s_memrealtime s[96:97]
            s_waitcnt lgkmcnt(0)
            s_sub_u32 s96, s96, s{sST}
            s_cmp_lt_u32 s96, s92
            s_cbranch_scc1 L_dd{dcount[0]}
            """)
            return
        e("s_memrealtime s[96:97]\ns_waitcnt lgkmcnt(0)")
        e("v_mov_b32 v16, s98\nv_mov_b32 v17, s96")
        e(f"s_getreg_b32 s{sT}, hwreg(HW_REG_XCC_ID, 0, 4)\nv_mov_b32 v18, s{sT}")
        for i in range(1, 14):
            if i < n:
                e(f"s_sub_u32 s{sT}, s{sST+2*i}, s{sST}\nv_mov_b32 v{18+i}, s{sT}")
            elif i == 13 and ld:
                e(f"s_sub_u32 s{sT}, 0x10000000, s47\nv_mov_b32 v{18+i}, s{sT}")
            else:
                e(f"v_mov_b32 v{18+i}, 0")
        e(f"""s_lshl_b32 s{sT}, s2, 3
        s_add_u32 s{sT}, s{sT}, s{sWAVE}
        s_lshl_b32 s{sT}, s{sT}, 6
        s_add_u32 s{sT}, s{sT}, {WS_STAMP}
        s_mov_b64 exec, 1
        v_mov_b32 v1, 0""")
        for i in range(4):
            e(f"buffer_store_dwordx4 v[{16+4*i}:{19+4*i}], v1, {srd(sWS)}, s{sT} offen offset:{16*i}")
        e("s_waitcnt vmcnt(0)")

    stamp()
    if cfg.stamps: e("s_memrealtime s[98:99]")
    e(f"""
    s_cmp_ge_u32 s2, 256
    s_cbranch_scc1 L_end
    s_load_dwordx16 s[4:19], s[0:1], 0
    s_load_dwordx2 s[20:21], s[0:1], 64
    s_getpc_b64 s[22:23]
L_pc:
    s_bfe_u32 s{sT+2}, s2, 0x20003
    {f's_xor_b32 s{sT+2}, s{sT+2}, {cfg.gx & 3}' if cfg.gx & 3 else ''}
    s_mul_i32 s{sT+2}, s{sT+2}, L_w1-L_w0
    v_lshlrev_b32 v1, 6, v0
    v_min_u32 v1, L_w1-L_pc, v1
    v_mov_b32 v2, s{sT+2}
    v_cmp_lt_u32 vcc, L_w0-L_pc, v1
    v_lshrrev_b32 v3, 6, v0
    s_and_b32 s{sT}, s2, 7
    v_cndmask_b32 v2, 0, v2, vcc
    v_add_u32 v1, v1, v2
    {'' if cfg.nocp else 'global_load_dword v255, v1, s[22:23]'}
    s_lshr_b32 s{sT+1}, s2, 3
    v_readfirstlane_b32 s{sWAVE}, v3
    {f"s_nop 0" if 0 else ""}
    v_and_b32 v0, 63, v0
    s_lshr_b32 s{sRT}, s{sT+1}, 3
    s_lshl_b32 s{sT}, s{sT}, 2
    s_add_u32 s{sRT}, s{sRT}, s{sT}
    s_and_b32 s{sG}, s{sT+1}, 7
    {f"s_xor_b32 s{sG}, s{sG}, {cfg.gx}" if cfg.gx else ""}
    s_lshr_b32 s{sBR}, s{sRT}, 4
    s_bfe_u32 s{sPAR}, s{sRT}, 0x10003
    s_and_b32 s{sSEG}, s{sRT}, 7
    {f"s_xor_b32 s{sWAVE}, s{sWAVE}, 4" if cfg.sw else ""}
    s_cmp_ge_u32 s{sWAVE}, 4
    s_cbranch_scc0 L_compute
    """)
    sLW, sXB, sWB, sKO, sWOFF, sHOFF = sT, sT+1, sT+2, sT+3, sT+4, sT+5
    vX, vW, vH = 8, 12, 14
    sMX, sMW, sA, sB, sHM = 88, 92, 94, 95, 100
    if cfg.lprio: e(f"s_setprio {cfg.lprio}")
    if cfg.tabC >= 0:
        e(f"""
        s_add_u32 s{sA}, s{sRT}, s{sG}
        s_bitcmp0_b32 s{sA}, 0
        s_mov_b32 s{sCLS}, {cfg.tabA}
        s_cselect_b32 s{sCLS}, s{sCLS}, {cfg.tabB}
        s_mov_b32 s{sB}, {cfg.tabC}
        s_cselect_b32 s{sB}, s{sB}, {cfg.tabD}
        s_bitcmp0_b32 s{sA}, 1
        s_cselect_b32 s{sCLS}, s{sCLS}, s{sB}
        """)
    else:
        e(f"""
        s_add_u32 s{sCLS}, s{sRT}, s{sG}
        s_and_b32 s{sCLS}, s{sCLS}, 1
        s_cmp_eq_u32 s{sCLS}, 0
        s_mov_b32 s{sCLS}, {cfg.tabA}
        s_cselect_b32 s{sCLS}, s{sCLS}, {cfg.tabB}
        """)
    if cfg.xr:
        e(f"""
        s_and_b32 s{sA}, s{sRT}, 12
        s_lshr_b32 s{sA}, {cfg.xr & 0xffff}, s{sA}
        s_and_b32 s{sA}, s{sA}, 7
        s_mul_i32 s{sA}, s{sA}, 0x11111111
        {"s_xor_b32" if cfg.xr < 0x10000 else "s_add_u32"} s{sCLS}, s{sCLS}, s{sA}
        """)
    e(f"""
    s_lshr_b32 s{sA}, s{sG}, 1
    s_bfe_u32 s{sB}, s{sRT}, 0x10001
    s_sub_u32 s{sLW}, s{sWAVE}, 4
    v_lshrrev_b32 v3, 3, v0
    v_and_b32 v4, 7, v0
    v_lshrrev_b32 v5, 4, v0
    v_xor_b32 v6, v4, v5
    v_lshlrev_b32 v6, 4, v6
    v_lshl_add_u32 v6, v3, 11, v6
    s_lshl_b32 s{sT+6}, s{sSEG}, 18
    s_lshl_b32 s{sT+7}, s{sPAR}, 10
    s_add_u32 s{sT+6}, s{sT+6}, s{sT+7}
    s_sub_u32 s{sHOFF}, s{sT+6}, 16384
    s_cmp_eq_u32 s{sSEG}, 0
    s_cselect_b32 s{sHOFF}, 0x40000000, s{sHOFF}
    s_lshl_b32 s{sT+7}, s{sLW}, 16
    s_add_u32 s{sT+6}, s{sT+6}, s{sT+7}
    s_lshl_b32 s{sXB}, s{sLW}, 12
    """)
    for j in range(4):
        e(f"""
        s_add_u32 s{sKO}, s{sA}, {j}
        s_and_b32 s{sKO}, s{sKO}, 3
        s_lshl_b32 s{sMX+j}, s{sKO}, 10
        s_add_u32 s{sMX+j}, s{sMX+j}, s{sXB}
        s_and_b32 s{sT+7}, s{sKO}, 1
        s_lshl_b32 s{sT+7}, s{sT+7}, 6
        s_lshl_b32 s{sKO}, s{sKO}, 14
        s_add_u32 s{sKO}, s{sKO}, s{sT+6}
        v_xor_b32 v{vX+j}, s{sT+7}, v6
        v_add_u32 v{vX+j}, s{sKO}, v{vX+j}
        """)
    e(f"""
    v_lshlrev_b32 v7, 1, v5
    v_xor_b32 v6, v4, v7
    v_lshlrev_b32 v6, 4, v6
    v_lshl_add_u32 v6, v3, 11, v6
    v_add_u32 v{vH}, s{sHOFF}, v6
    v_and_b32 v7, 2, v7
    v_xor_b32 v7, v7, v4
    v_lshlrev_b32 v7, 4, v7
    v_mul_u32_u24 v6, 3072, v3
    v_add_u32 v7, v7, v6
    s_mul_i32 s{sT+6}, s{sLW}, 49152
    s_lshl_b32 s{sT+7}, s{sG}, 7
    {f"s_xor_b32 s{sT+7}, s{sT+7}, {cfg.wx*128}" if cfg.wx else ""}
    s_add_u32 s{sT+6}, s{sT+6}, s{sT+7}
    s_mul_i32 s{sWB}, s{sLW}, 6144
    """)
    for m in range(2):
        e(f"""
        s_xor_b32 s{sKO}, s{sB}, {m}
        s_mul_i32 s{sMW+m}, s{sKO}, 3072
        s_add_u32 s{sMW+m}, s{sMW+m}, s{sWB}
        s_lshl_b32 s{sT+7}, s{sKO}, 6
        s_mul_i32 s{sKO}, s{sKO}, 24576
        s_add_u32 s{sKO}, s{sKO}, s{sT+6}
        v_xor_b32 v{vW+m}, s{sT+7}, v7
        v_add_u32 v{vW+m}, s{sKO}, v{vW+m}
        """)
    if cfg.hp:
        nl = -(-192 * cfg.hp // 112)
        e(f"""
        s_and_b32 s{sT+6}, s{sRT}, 3
        s_mul_i32 s{sT+6}, s{sT+6}, 7
        s_add_u32 s{sT+6}, s{sT+6}, s{sG}
        s_cmp_gt_u32 s{sG}, 3
        s_subb_u32 s{sT+6}, s{sT+6}, 0
        s_lshl_b32 s{sT+6}, s{sT+6}, 2
        s_add_u32 s{sT+6}, s{sT+6}, s{sLW}
        s_cmp_eq_u32 s{sG}, 3
        s_cselect_b32 s{sT+6}, 0x10000, s{sT+6}
        v_mul_u32_u24 v21, 112, v0
        v_add_u32 v21, s{sT+6}, v21
        v_cmp_gt_u32 vcc, {192 * cfg.hp}, v21
        s_and_b32 s{sT+7}, s{sRT}, 12
        s_lshr_b32 s{sT+7}, {cfg.xr & 0xffff}, s{sT+7}
        s_and_b32 s{sT+7}, s{sT+7}, 7
        s_add_u32 s{sT+7}, s{sT+7}, {cfg.hp0}
        s_mul_i32 s{sT+7}, s{sT+7}, 192
        v_add_u32 v21, s{sT+7}, v21
        v_subrev_u32 v22, 1536, v21
        v_min_u32 v21, v21, v22
        v_lshl_add_u32 v21, v21, 10, 0
        v_add_u32 v21, 384, v21
        v_bfrev_b32 v22, 2
        v_cndmask_b32 v21, v22, v21, vcc
        """)
    e(f"""
    s_lshl_b32 s{sT+6}, s{sLW}, 4
    s_lshl_b64 s[{sHM}:{sHM+1}], 0xffff, s{sT+6}
    s_waitcnt lgkmcnt(0)
    """)
    stamp()
    e(f"""
    s_cmp_eq_u32 s{sBR}, 0
    s_cselect_b32 s{sX}, s4, s10
    s_cselect_b32 s{sX+1}, s5, s11
    s_mov_b32 s{sX+2}, 0x200000
    s_mov_b32 s{sX+3}, 0x20000
    s_cselect_b32 s{sW}, s6, s12
    s_cselect_b32 s{sW+1}, s7, s13
    s_mov_b32 s{sW+2}, 0x180000
    s_mov_b32 s{sW+3}, 0x20000
    s_cselect_b32 s{sWO}, s8, s14
    s_cselect_b32 s{sWO+1}, s9, s15
    s_mov_b32 s{sWO+2}, 0x80000
    """)
    def issue(c):
        slot = SLOT0 + (c % 3) * SLOTSZ
        e(f"""
        s_bfe_u32 s{sT+6}, s{sCLS}, {0x30000 + 4*c}
        s_add_u32 m0, s{sMW}, {slot + 16384}
        s_mul_i32 s{sWOFF}, s{sT+6}, 196608
        s_lshl_b32 s{sKO}, s{sT+6}, 7
        """)
        def wl(m):
            for p in range(3):
                e(f"buffer_load_dwordx4 v{vW+m}, {srd(sW)}, s{sWOFF} offen offset:{1024*p} {cfg.dma_w} lds")
        def xl(j):
            e(f"s_add_u32 m0, s{sMX+j}, {slot}")
            e(f"buffer_load_dwordx4 v{vX+j}, {srd(sX)}, s{sKO} offen {cfg.dma_x} lds")
        wl(0); xl(0)
        e(f"s_mov_b32 m0, {HALO + c*1024}\ns_mov_b64 exec, s[{sHM}:{sHM+1}]")
        e(f"buffer_load_dwordx4 v{vH}, {srd(sX)}, s{sKO} offen {cfg.dma_x} lds")
        e(f"s_add_u32 m0, s{sMW+1}, {slot + 16384}\ns_mov_b64 exec, -1")
        wl(1); xl(1); xl(2); xl(3)
    OF = 0; ACC = 128; WF = 160
    vA = 224
    vO0, vO1, vPO, vP = 232, 233, 234, 235
    vSW, vSR, vOA = 236, 240, 241
    vD = 242
    vWO = 246
    sSO = 12
    sFL, sOO, sSP = 45, 46, 47
    sAV = 18
    hp_ld = f"buffer_load_dword v21, v21, {srd(sW)}, 0 offen"
    if cfg.hp and cfg.hpp == 0: e(hp_ld)
    issue(0)
    if cfg.hp and cfg.hpp == 1: e(hp_ld)
    e(f"""
    s_mov_b32 s{sWO+3}, 0x20000
    s_mov_b32 s{sWS}, s20
    s_mov_b32 s{sWS+1}, s21
    s_mov_b32 s{sWS+2}, 0x10000000
    s_mov_b32 s{sWS+3}, 0x20000
    s_mov_b32 s{sOUT}, s16
    s_mov_b32 s{sOUT+1}, s17
    s_mov_b32 s{sOUT+2}, 0x400000
    s_mov_b32 s{sOUT+3}, 0x20000
    """)
    vXw, vXo = 250, 252
    sXw, sXo = 16, 17
    e(f"""
    v_lshlrev_b32 v{vXw}, 6, v0
    v_and_b32 v1, 15, v0
    v_lshlrev_b32 v1, 6, v1
    v_lshrrev_b32 v2, 4, v0
    v_lshl_add_u32 v{vXo}, v2, 15, v1
    s_cmp_eq_u32 s{sCLS}, {cfg.tabA}
    s_cselect_b32 s22, 0, 0x40000000
    s_cselect_b32 s23, 0x40000000, 0
    s_and_b32 s{sXw}, s{sRT}, 3
    s_lshl_b32 s{sXw}, s{sXw}, 3
    s_add_u32 s{sXw}, s{sXw}, s{sG}
    s_lshl_b32 s{sXw}, s{sXw}, 2
    s_add_u32 s{sXw}, s{sXw}, s{sLW}
    s_lshl_b32 s{sXw}, s{sXw}, 12
    s_lshl_b32 s{sXo}, s{sRT}, 5
    s_add_u32 s{sXo}, s{sXo}, s{sG}
    s_lshl_b32 s{sXo}, s{sXo}, 2
    s_add_u32 s{sXo}, s{sXo}, s{sLW}
    s_lshl_b32 s{sXo}, s{sXo}, 10
    """)
    vOi = [232, 243, 244, 245, 233, 254, 251, 253]; vDV = 255; vXq = 253; sXq = 96; sDF = 97; sDS = 3
    if cfg.ptm != 15 and not cfg.om:
        e(f"""
        s_and_b32 s{sT+6}, s{sG}, 3
        v_add_u32 v3, s{sT+6}, v2
        v_and_b32 v3, 3, v3
        v_lshl_add_u32 v{vXo}, v3, 15, v1
        v_lshrrev_b32 v3, v2, {cfg.ptm}
        v_and_b32 v3, 1, v3
        v_cmp_eq_u32 vcc, 0, v3
        v_bfrev_b32 v3, 2
        v_cndmask_b32 v{vXo}, v{vXo}, v3, vcc
        """)
    if cfg.om:
        assert cfg.xoA != 9 and cfg.xoB != 9 and cfg.g3 and not cfg.ht and not cfg.diag
        e(f"""
        s_and_b32 s{sT+6}, s{sG}, 3
        v_add_u32 v3, s{sT+6}, v2
        v_and_b32 v3, 3, v3
        v_lshl_add_u32 v{vXo}, v3, 15, v1
        v_lshl_add_u32 v3, v3, 17, v1
        v_lshl_add_u32 v{vXq}, v2, 15, v3
        v_cmp_gt_u32 vcc, {cfg.om}, v2
        v_bfrev_b32 v3, 2
        v_cndmask_b32 v{vXo}, v{vXo}, v3, vcc
        v_cndmask_b32 v{vXq}, v3, v{vXq}, vcc
        s_lshl_b32 s{sXq}, s{sSEG}, 7
        s_and_b32 s{sT+6}, s{sG}, 4
        s_add_u32 s{sXq}, s{sXq}, s{sT+6}
        s_add_u32 s{sXq}, s{sXq}, s{sLW}
        s_lshl_b32 s{sXq}, s{sXq}, 1
        s_add_u32 s{sXq}, s{sXq}, s{sPAR}
        s_lshl_b32 s{sXq}, s{sXq}, 1
        s_add_u32 s{sXq}, s{sXq}, s{sBR}
        s_lshl_b32 s{sXq}, s{sXq}, 10
        """)
    def acheck():
        if cfg.diag:
            e(f"""
            s_mov_b32 s3, 0
            s_mov_b32 s{sSP}, 100000
            s_getreg_b32 s{sWOFF}, hwreg(HW_REG_XCC_ID, 0, 4)
            s_sub_u32 s{sWOFF}, s{sAV}, s{sWOFF}
L_dg:
            s_waitcnt lgkmcnt(0)
            s_mov_b32 s{sKO}, 0
            """)
            for i in range(8):
                e(f"s_sub_u32 s{sT+7}, s{4+i}, s{sWOFF}\ns_or_b32 s{sKO}, s{sKO}, s{sT+7}")
            e(f"""
            s_cmp_lt_u32 s{sKO}, 16
            s_cbranch_scc1 L_dgx
            s_mov_b32 s3, 800
            s_sub_u32 s{sSP}, s{sSP}, 1
            s_cbranch_scc1 L_dgx
            s_add_u32 s{sT+6}, s19, {WS_A}
            s_load_dwordx8 s[4:11], s[20:21], s{sT+6} glc
            s_branch L_dg
L_dgx:
            """)
        e(f"""
        s_mov_b32 s19, s{sAV}
        s_waitcnt lgkmcnt(0)
        s_xor_b64 s[4:5], s[4:5], s[18:19]
        s_xor_b64 s[6:7], s[6:7], s[18:19]
        s_xor_b64 s[8:9], s[8:9], s[18:19]
        s_xor_b64 s[10:11], s[10:11], s[18:19]
        s_or_b64 s[4:5], s[4:5], s[6:7]
        s_or_b64 s[8:9], s[8:9], s[10:11]
        s_or_b64 s[4:5], s[4:5], s[8:9]
        s_cselect_b32 s4, 0, {0 if cfg.nofast else 1}
        {"s_cselect_b32 s5, 1600, 0" if cfg.diag else ""}
        {"s_add_u32 s3, s3, s5" if cfg.diag else ""}
        v_mov_b32 v1, 0
        v_mov_b32 v2, s4
        ds_write_b32 v1, v2
        """)
        if cfg.b8 < 0:
            e(f"s_lshl_b32 s5, s{sLW}, 2\nv_mov_b32 v3, s5\nds_write_b32 v3, v1 offset:16")
    def xat(pos):
        n = 0
        T = [(cfg.xwA, cfg.xwB, vXw, sWO, sXw, "", 4)]
        if cfg.om: T.append((cfg.xoA, cfg.xoB, vXq, sOUT, sXq, cfg.pt_flags, 5))
        if cfg.om < 4: T.append((cfg.xoA, cfg.xoB, vXo, sWS, sXo, cfg.pt_flags, 6))
        for (pa, pb, v, sr, so, fl, d) in T:
            if pa == pos and pb == pos:
                e(f"buffer_load_dword v{d}, v{v}, {srd(sr)}, s{so} offen {fl}"); n += 1
            elif pos in (pa, pb):
                d += 12 if pa == pos else 16
                e(f"v_add_u32 v{d}, s{22 if pa == pos else 23}, v{v}\nbuffer_load_dword v{d}, v{d}, {srd(sr)}, s{so} offen {fl}"); n += 1
        return n
    for c in range(8):
        nX = 0
        if c == 1 and cfg.e2: pass
        elif c + 1 <= 7 and not (c == 0 and cfg.su < 0):
            nX = xat(c + 1); issue(c + 1)
            if c == 6: nX7 = xat(10); nX += nX7
        if c == 0:
            e(f"""
            s_lshl_b32 s19, s{sRT}, 7
            s_add_u32 s{sT+6}, s19, {WS_E}
            s_load_dword s{sEP}, s[20:21], s{sT+6}
            """)
        if c == max(cfg.su, 0):
            e(f"""
            v_and_b32 v1, 1, v0
            v_bfe_u32 v2, v0, 1, 1
            v_lshl_add_u32 v1, v1, 1, v2
            v_bfe_u32 v2, v0, 4, 1
            v_lshl_add_u32 v1, v2, 2, v1
            v_lshlrev_b32 v1, 3, v1
            v_bfe_u32 v2, v0, 3, 1
            v_lshl_add_u32 v1, v2, 6, v1
            v_bfe_u32 v2, v0, 2, 2
            v_lshl_add_u32 v1, v2, 7, v1
            v_lshrrev_b32 v2, 5, v0
            v_lshl_add_u32 v1, v2, 10, v1
            s_lshl_b32 s{sOO}, s{sRT}, 2
            {f"s_and_b32 s3, s{sLW}, 1" if cfg.dup else f"s_mov_b32 s3, s{sLW}"}
            {f"s_and_b32 s{sFL}, s{sG}, 1" if cfg.dup else ""}
            {f"s_lshl1_add_u32 s3, s{sFL}, s3" if cfg.dup else ""}
            s_add_u32 s{sOO}, s{sOO}, s3
            s_lshl_b32 s{sFL}, s{sOO}, 7
            s_add_u32 s{sFL}, s{sFL}, {WS_FLAG}
            s_lshl_b32 s{sOO}, s{sOO}, {16 if cfg.sk3 else 15}
            """)
            for r in range(4):
                e(f"""
                s_sub_u32 s{sT+6}, s3, {r}
                s_and_b32 s{sT+6}, s{sT+6}, 3
                s_lshl_b32 s{sT+7}, s{sT+6}, {13 if cfg.sk3 else 12}
                s_add_u32 s{sSO+r}, s{sT+7}, s{sOO}
                s_lshl_b32 s{sT+6}, s{sT+6}, 13
                s_add_u32 s{sT+6}, s{sT+6}, {WO_L}
                """)
                if cfg.tp: e(f"v_lshl_add_u32 v{vA+r}, v0, 4, s{sT+6}")
                else: e(f"v_add_u32 v{vA+2*r}, s{sT+6}, v1\nv_xor_b32 v{vA+2*r+1}, 64, v{vA+2*r}")
            if cfg.tp:
                e(f"""
                s_lshl_b32 s{sT+6}, s{sLW}, 14
                s_add_u32 s{sT+6}, s{sT+6}, {WO_L}
                v_add_u32 v{vA+4}, s{sT+6}, v1
                v_xor_b32 v{vA+5}, 64, v{vA+4}
                v_lshl_add_u32 v{vA+6}, v0, 4, s{sT+6}
                """)
        if c == max(cfg.su, 0) * 2:
            e(f"""
            v_lshlrev_b32 v{vO0}, 4, v0
            v_add_u32 v{vO1}, 16384, v{vO0}
            """)
            if cfg.sk3:
                e(f"""
                v_cmp_lt_u32 vcc, 23, v0
                v_cndmask_b32 v1, 0, 1, vcc
                v_lshl_add_u32 v243, v1, 7, v{vO0}
                v_add_u32 v244, 4096, v243
                v_add_u32 v245, 32768, v243
                v_add_u32 v254, 36864, v243
                """)
            e(f"""
            v_and_b32 v1, 7, v0
            v_lshlrev_b32 v{vPO}, 2, v1
            v_lshrrev_b32 v2, 5, v0
            v_xor_b32 v1, v1, v2
            v_lshlrev_b32 v1, 4, v1
            v_and_b32 v2, 31, v0
            v_lshl_add_u32 v1, v2, 7, v1
            s_lshl_b32 s{sT+6}, s{sLW}, 12
            s_add_u32 s{sT+6}, s{sT+6}, {STAGE}
            v_add_u32 v{vSW}, s{sT+6}, v1
            v_xor_b32 v{vSW+1}, 32, v{vSW}
            v_xor_b32 v{vSW+2}, 64, v{vSW}
            v_xor_b32 v{vSW+3}, 96, v{vSW}
            v_add_u32 v{vSR}, s{sT+6}, v{vO0}
            v_lshrrev_b32 v2, 3, v0
            v_and_b32 v1, 7, v0
            v_xor_b32 v1, v1, v2
            v_lshlrev_b32 v1, 4, v1
            v_lshl_add_u32 v{vOA}, v2, 12, v1
            s_lshl_b32 s{sOO}, s{sSEG}, 19
            s_lshl_b32 s{sT+6}, s{sLW}, 17
            s_add_u32 s{sOO}, s{sOO}, s{sT+6}
            s_lshl_b32 s{sT+6}, s{sPAR}, 11
            s_add_u32 s{sOO}, s{sOO}, s{sT+6}
            s_lshl_b32 s{sT+6}, s{sBR}, 10
            s_add_u32 s{sOO}, s{sOO}, s{sT+6}
            """)
            for r in range(cfg.om): e(f"s_add_u32 s{sSO+r}, s{sOO}, {32768*r}")
            if cfg.om:
                for i in (1, 2, 3, 5, 6): e(f"v_add_u32 v{vOi[i]}, {4096*i}, v{vO0}")
                e(f"""
                s_add_u32 s{sDF}, s{sFL}, {WS_D - WS_FLAG}
                s_lshl_b32 s{sDS}, s{sG}, 2
                s_add_u32 s{sDS}, s{sDS}, s{sDF}
                """)
            e(f"""
            s_lshl_b32 s{sT+6}, s{sG}, 7
            s_add_u32 s{sOO}, s{sOO}, s{sT+6}
            """)
        if c == max(cfg.su, 0) * 3:
            e(f"""
            v_lshrrev_b32 v3, 3, v0
            v_and_b32 v4, 7, v0
            v_lshrrev_b32 v5, 2, v0
            v_and_b32 v5, 4, v5
            v_xor_b32 v4, v4, v5
            v_lshlrev_b32 v4, 4, v4
            v_lshl_add_u32 v4, v3, 10, v4
            s_lshl_b32 s{sT+6}, s{sLW}, 17
            s_lshl_b32 s{sT+7}, s{sG}, 7
            s_add_u32 s{sT+6}, s{sT+6}, s{sT+7}
            v_add_u32 v{vWO}, s{sT+6}, v4
            v_add_u32 v{vWO+1}, 7168, v{vWO}
            v_add_u32 v{vWO+2}, 14336, v{vWO}
            v_add_u32 v{vWO+3}, 21504, v{vWO}
            """)
        if c == 0 and cfg.su < 0: issue(1)
        if c == 0: n12 = xat(12); nX += n12
        if c == 1: nX += n12
        if c == 0 and cfg.e2: issue(2); nX = 11
        if c == 3:
            e(f"""
            s_getreg_b32 s{sAV}, hwreg(HW_REG_XCC_ID, 0, 4)
            s_waitcnt lgkmcnt(0)
            s_add_u32 s{sAV}, s{sAV}, s{sEP}
            s_add_u32 s{sAV}, s{sAV}, {K2}
            s_add_u32 s{sEP}, s{sEP}, {K1}
            """)
            if cfg.om: e(f"v_mov_b32 v{vDV}, s{sEP}")
        if c == cfg.ac:
            e(f"""
            s_add_u32 s{sT+6}, s19, {WS_A}
            s_load_dwordx8 s[4:11], s[20:21], s{sT+6} glc
            """)
        if c == 6:
            if not cfg.late: acheck()
            e(f"""
            s_lshl_b32 s{sXB}, s{sLW}, 14
            s_waitcnt vmcnt({11 + nX}) {'' if cfg.late else 'lgkmcnt(0)'}
            """)
            nX7 += xat(11)
            e("s_barrier")
            stamp()
        elif c == 7:
            nX = xat(8) + nX7
            def wo(i):
                gq, j = i >> 2, i & 3
                if j == 0 and not cfg.wsh: e(f"s_add_u32 m0, s{sXB}, {WO_L + 4096*gq}\ns_mov_b32 s{sKO}, {32768*gq}")
                if j == 0 and cfg.wsh:
                    e(f"""
                    s_add_u32 s{sKO}, s{sRT}, {gq}
                    s_and_b32 s{sKO}, s{sKO}, 3
                    s_lshl_b32 s{sWOFF}, s{sKO}, 12
                    s_add_u32 s{sWOFF}, s{sWOFF}, s{sXB}
                    s_add_u32 m0, s{sWOFF}, {WO_L}
                    s_lshl_b32 s{sKO}, s{sKO}, 15
                    """)
                e(f"buffer_load_dwordx4 v{vWO+j}, {srd(sWO)}, s{sKO} offen offset:{1024*j} lds")
            for i in range(cfg.nw0): wo(i)
            e(f"s_waitcnt vmcnt({nX + cfg.nw0})")
            if cfg.sm == 1: stamp()
            for i in range(cfg.nw0, cfg.nw): wo(i)
            if cfg.late:
                acheck(); e("s_waitcnt lgkmcnt(0)")
            if cfg.sm == 1: stamp()
            e("s_barrier")
            stamp()
            for i in range(cfg.nw, cfg.nw1): wo(i)
            if cfg.b9 >= 0: e("s_barrier")
            for i in range(max(cfg.nw, cfg.nw1), 16): wo(i)
            nX = xat(9)
            e(f"buffer_load_dword v{vP}, v{vPO}, {srd(sWS)}, s{sFL} offen sc1")
            e(f"s_mov_b32 s{sSP}, {0x10000000 if cfg.stamps else 0x200000}\ns_waitcnt vmcnt({nX+1})")
        else:
            e(f"s_waitcnt vmcnt({11+nX})\ns_barrier")
            if c == 0 or cfg.sm == 2: stamp()
    if cfg.sm != 2: stamp()
    if cfg.lp2: e(f"s_setprio {cfg.lp2}")
    if cfg.tp:
        n = 0
        for h in range(8 + 1):
            if h < 8:
                for m in range(2):
                    for j in range(2):
                        d = WF + 8*h + 4*m + 2*j
                        e(f"ds_read_b64_tr_b16 v[{d}:{d+1}], v{vA+4+m} offset:{h*2048 + j*512}")
            if h >= 1:
                k = h - 1
                e(f"s_waitcnt lgkmcnt({[4, 6, 6, 6, 6, 6, 6, 2][k]})")
                for m in range(2):
                    e(f"ds_write_b128 v{vA+6}, {vr(WF + 8*k + 4*m, 4)} offset:{k*2048 + m*1024}")
    if cfg.b8 < 0: e("v_mov_b32 v2, 1\nds_write_b32 v3, v2 offset:16")
    def lsync(sx=""):
        if cfg.b8 >= 0: e("s_barrier"); return
        e(f"""
L_ls{sx}:
        ds_read_b128 v[{WF}:{WF+3}], v{vD} offset:16
        s_sub_u32 s{sSP}, s{sSP}, 1
        s_cmp_lt_i32 s{sSP}, 0
        s_cbranch_scc1 L_lsx{sx}
        s_waitcnt lgkmcnt(0)
        v_and_b32 v{WF}, v{WF}, v{WF+1}
        v_and_b32 v{WF+2}, v{WF+2}, v{WF+3}
        v_and_b32 v{WF}, v{WF}, v{WF+2}
        v_cmp_eq_u32 vcc, 0, v{WF}
        s_cbranch_vccnz L_ls{sx}
L_lsx{sx}:
        """)
    e(f"v_mov_b32 v{vD}, 0")
    if cfg.om: e(f"v_add_u32 v{vOi[7]}, {4096*7}, v{vO0}")
    def wrd(H):
        r, i = H >> 3, H & 7
        R = []
        if cfg.tp:
            return [f"ds_read_b128 {vr(WF + 8*i + 4*m, 4)}, v{vA+r} offset:{(i>>2)*32768 + (i&3)*2048 + m*1024}" for m in range(2)]
        for m in range(2):
            for j in range(2):
                d = WF + 8*i + 4*m + 2*j
                R.append(f"ds_read_b64_tr_b16 v[{d}:{d+1}], v{vA+2*r+m} offset:{(i>>2)*32768 + (i&3)*2048 + j*512}")
        return R
    def oload(H):
        r, i = H >> 3, H & 7
        if r < cfg.om: return f"buffer_load_dwordx4 {vr(OF+4*H,4)}, v{vOi[i]}, {srd(sOUT)}, s{sSO+r} offen {cfg.ld_flags}"
        if cfg.sk3: return f"buffer_load_dwordx4 {vr(OF+4*H,4)}, v{[243, 244, 245, 254][i >> 1]}, {srd(sWS)}, s{sSO+r} offen offset:{(i&1)*2048} {cfg.ld_flags}"
        return f"buffer_load_dwordx4 {vr(OF+4*H,4)}, v{vO0 + (i>>2)}, {srd(sWS)}, s{sSO+r} offen offset:{(i&3)*1024} {cfg.ld_flags}"
    def poll(r): return f"buffer_load_dword v{vP}, v{vPO}, {srd(sWS)}, s{sFL} offen offset:{32*r} sc1"
    vq = []
    dq = []
    def ivm(tag, text): e(text); vq.append(tag)
    def ids(tag, text):
        if len(dq) >= 14:
            e(f"s_waitcnt lgkmcnt({cfg.lk})"); del dq[:len(dq) - cfg.lk]
        e(text); dq.append(tag)
    def wait(vt=None, dt=None):
        parts = []
        if vt is not None and vt in vq:
            k = len(vq) - 1 - max(i for i, t in enumerate(vq) if t == vt)
            parts.append(f"vmcnt({k})"); del vq[:len(vq) - k]
        if dt is not None and dt in dq:
            k = len(dq) - 1 - max(i for i, t in enumerate(dq) if t == dt)
            k2 = min(k, 15)
            parts.append(f"lgkmcnt({k2})"); del dq[:len(dq) - k2]
        if parts: e("s_waitcnt " + " ".join(parts))
    def check(r):
        wait(vt=("P", r))
        e(f"""
L_chk{r}:
        v_cmp_ne_u32 vcc, s{sEP}, v{vP}
        s_cbranch_vccnz L_spin{r}
L_ok{r}:
        """)
    def stage_loads(r):
        T = [(("L", 8*r + i), oload(8*r + i)) for i in range(8)]
        if r < 3: T.insert(cfg.kp, (("P", r + 1), poll(r + 1)))
        return T
    if cfg.g2 == 0:
        lsync()
        ivm(("P", 0), poll(0))
        for H in range(7):
            for x in wrd(H): ids(H, x)
        check(0)
        stamp()
        for t, x in stage_loads(0): ivm(t, x)
    elif cfg.g2 == 2:
        vq.append(("P", 0))
        wait(vt=("P", 0))
        e(f"v_cmp_ne_u32 vcc, s{sEP}, v{vP}\ns_cbranch_vccnz L_pre")
        for t, x in stage_loads(0): ivm(t, x)
        lsync()
        for H in range(7):
            for x in wrd(H): ids(H, x)
        e("L_prej:")
        if cfg.sm != 2: stamp()
        v1, d1 = list(vq), list(dq)
        mark = len(L); vq[:] = []; dq[:] = []
        e("L_pre:")
        ivm(("P", 0), poll(0))
        lsync("b")
        for H in range(7):
            for x in wrd(H): ids(H, x)
        check(0)
        for t, x in stage_loads(0): ivm(t, x)
        e("s_branch L_prej")
        assert vq == v1 and dq == d1
        pre_alt = L[mark:]; del L[mark:]
    else:
        vq.append(("P", 0))
        e("L_again:")
        check(0)
        if cfg.sm != 2: stamp()
        for t, x in stage_loads(0): ivm(t, x)
        lsync()
        for H in range(7):
            for x in wrd(H): ids(H, x)
    alts = []; dstub = []
    dpoll = f"buffer_load_dword v{vP}, v{vPO}, {srd(sWS)}, s{sDF} offen sc1"
    def dsig():
        k = len(dstub); st = f"buffer_store_dword v{vDV}, off, {srd(sWS)}, s{sDS}"
        ivm(("D",), f"s_cmp_eq_u32 s4, 0\ns_mov_b64 exec, 1\ns_cbranch_scc1 L_dst{k}\n{st} {cfg.ddf_flags}\nL_dsb{k}:\ns_mov_b64 exec, -1")
        dstub.append(f"L_dst{k}:\n{st} sc1\ns_branch L_dsb{k}")
    def heads(r, pending, per, alt=False):
        for i in range(8):
            H = 8*r + i
            wait(vt=("L", H), dt=H)
            for m in range(2):
                cc = "0" if H == 0 else vr(ACC+16*m, 16)
                e(f"v_mfma_f32_32x32x16_bf16 {vr(ACC+16*m,16)}, {vr(WF+8*i+4*m,4)}, {vr(OF+4*H,4)}, {cc}")
                if cfg.om and m == 0 and H == 8*cfg.om - 1 and not alt: dsig()
                if cfg.om and m == 1 and H == 24 + cfg.dp: ivm(("DP",), dpoll)
                if cfg.ht and m == 0 and i & 1:
                    c3 = "0" if H == 1 else f"v{vD+1}"
                    e(f"v_max3_u32 v{vD+1}, v{OF+4*H-4}, v{OF+4*H}, {c3}")
                if cfg.ht and m == 1 and H == 31:
                    e(f"v_cmp_eq_u32 vcc, -1, v{vD+1}\ns_cbranch_vccnz L_redo\nL_redox:")
                for _ in range(per[2*i + m]):
                    if pending:
                        t, x = pending.pop(0); ivm(t, x)
                if H + 7 < 32:
                    for x in (wrd(H + 7)[m:m+1] if cfg.tp else wrd(H + 7)[2*m:2*m+2]): ids(H + 7, x)
        assert not pending
    if cfg.g3:
        assert cfg.kp == 0
        for r in range(4):
            if r < 3:
                wait(vt=("P", r + 1))
                e(f"v_cmp_ne_u32 vcc, s{sEP}, v{vP}\ns_cbranch_vccnz L_alt{r}")
                v0, d0 = list(vq), list(dq)
                pend = stage_loads(r + 1)
                t, x = pend.pop(0); ivm(t, x)
                heads(r, pend, [[1, 0]*8, [1, 1, 1, 0]*4, [1]*16][cfg.g3 - 1])
                e(f"L_join{r}:")
                if cfg.sm == 0 or (r == 2 and cfg.sm == 1): stamp()
                v1, d1 = list(vq), list(dq)
                mark = len(L)
                vq[:] = v0; dq[:] = d0
                e(f"L_alt{r}:")
                if cfg.stamps: e(f"s_sub_u32 s{sSP}, s{sSP}, {0x100 << (4*r)}")
                heads(r, [(("P", r + 1), poll(r + 1))], [0]*cfg.ap + [1]*16, True)
                check(r + 1)
                for t, x in stage_loads(r + 1): ivm(t, x)
                if r + 1 == cfg.om: dsig()
                e(f"s_branch L_join{r}")
                assert dq == d1 and vq[-len(v1):] == v1, (vq, v1)
                alts.append(L[mark:]); del L[mark:]
                vq[:] = v1
            else:
                heads(r, [], [0]*16)
    else:
        pending = []
        for H in range(32):
            r, i = H >> 3, H & 7
            if i == cfg.kp and r < 3:
                check(r + 1)
                if cfg.sm == 0 or r == 2: stamp()
                pending = stage_loads(r + 1)
                for _ in range(3):
                    t, x = pending.pop(0); ivm(t, x)
            wait(vt=("L", H), dt=H)
            for m in range(2):
                cc = "0" if H == 0 else vr(ACC+16*m, 16)
                e(f"v_mfma_f32_32x32x16_bf16 {vr(ACC+16*m,16)}, {vr(WF+8*i+4*m,4)}, {vr(OF+4*H,4)}, {cc}")
                if H + 7 < 32:
                    for x in (wrd(H + 7)[m:m+1] if cfg.tp else wrd(H + 7)[2*m:2*m+2]): ids(H + 7, x)
                for _ in range(2):
                    if pending:
                        t, x = pending.pop(0); ivm(t, x)
    stamp()
    cvt = lambda d, a: e(f"v_cvt_pk_bf16_f32 v{d}, v{a}, v{a+1}\nv_cvt_pk_bf16_f32 v{d+1}, v{a+2}, v{a+3}")
    for m in range(2):
        for qq in range(2):
            a = ACC + 16*m + 8*qq; d = 8*m + 4*qq
            cvt(d, a); cvt(d + 2, a + 4)
            e(f"ds_write_b128 v{vSW + 2*m + qq}, {vr(d,4)}")
        if cfg.om and cfg.dp == 8 + m: ivm(("DP",), dpoll)
    e("s_waitcnt lgkmcnt(0)")
    for it in range(4):
        e(f"ds_read_b128 {vr(16+4*it,4)}, v{vSR} offset:{1024*it}")
    if cfg.om:
        if cfg.dp == 10: ivm(("DP",), dpoll)
        e(f"""
        s_waitcnt vmcnt(0)
L_dchk:
        v_cmp_ne_u32 vcc, s{sEP}, v{vP}
        s_cbranch_vccnz L_dspin
L_dok:
        """)
    for it in range(4):
        e(f"s_waitcnt lgkmcnt({3-it})")
        if it > 0: e(f"s_add_u32 s{sOO}, s{sOO}, 32768")
        e(f"buffer_store_dwordx4 {vr(16+4*it,4)}, v{vOA}, {srd(sOUT)}, s{sOO} offen {cfg.out_flags}")
    e(f"""
    s_or_b32 s{sT+6}, s{sG}, s{sLW}
    s_cbranch_scc0 L_epoch
L_epochx:
    """)
    if cfg.diag:
        e("""
        s_memrealtime s[92:93]
L_dsp:
        s_memrealtime s[96:97]
        s_waitcnt lgkmcnt(0)
        s_sub_u32 s96, s96, s92
        s_cmp_lt_u32 s96, s3
        s_cbranch_scc1 L_dsp
        """)
    if cfg.stamps:
        e("s_waitcnt vmcnt(0)"); stamp()
    dump_stamps(nst[0], True)
    e("L_end:\ns_endpgm")
    for r in range(4):
        e(f"""
L_spin{r}:
        s_sub_u32 s{sSP}, s{sSP}, 1
        s_cmp_lt_i32 s{sSP}, 0
        s_cbranch_scc1 L_ok{r}
        {poll(r)}
        s_waitcnt vmcnt(0)
        s_branch L_chk{r}
        """)
    for al in alts: L.extend(al)
    if cfg.g2 == 2: L.extend(pre_alt)
    for x in dstub: e(x)
    if cfg.om:
        e(f"""
L_dspin:
        s_sub_u32 s{sSP}, s{sSP}, {0x80000 if cfg.stamps else 1}
        s_cmp_lt_i32 s{sSP}, 0
        s_cbranch_scc1 L_dok
        {dpoll}
        s_waitcnt vmcnt(0)
        s_branch L_dchk
        """)
    if cfg.ht:
        e(f"""
L_redo:
        s_sub_u32 s{sSP}, s{sSP}, {0x80000 if cfg.stamps else 64}
        s_cmp_lt_i32 s{sSP}, 0
        s_cbranch_scc1 L_redox
        {poll(0)}
        s_branch L_again
        """)
    e(f"""
L_epoch:
    s_lshl_b32 s{sT+6}, s{sRT}, 7
    s_add_u32 s{sT+6}, s{sT+6}, {WS_E}
    v_mov_b32 v{vD}, s{sEP}
    s_mov_b64 exec, 1
    buffer_store_dword v{vD}, off, {srd(sWS)}, s{sT+6}
    s_mov_b64 exec, -1
    s_branch L_epochx
    """)
    nst[0] = 1
    e("L_compute:")
    AQ = 0; AK = 32; AV = 68
    BUF = [104, 152]
    W15 = 200
    vB = 212; vB0 = 216; vONE = 220
    vXA = 224; vWA = 230; vHA = 233
    vSO, vFO, vFV = 235, 236, 237
    VP = 238
    def accQ(t): return AQ + 4*t
    def accK(t): return AK + 4*(t+1)
    def accV(t): return AV + 4*(t+1)
    sSC = 56; sMH = 58; sPM = 60; sDO = 12; sFO = 45; sS = 46
    e(f"""
    v_and_b32 v1, 15, v0
    v_lshrrev_b32 v2, 4, v0
    v_bfe_u32 v3, v0, 1, 3
    v_xor_b32 v3, v3, v2
    v_lshlrev_b32 v3, 4, v3
    v_lshl_add_u32 v3, v1, 7, v3
    v_add_u32 v{vXA}, {SLOT0}, v3
    v_xor_b32 v{vXA+1}, 64, v{vXA}
    v_add_u32 v{vXA+2}, {SLOTSZ}, v{vXA}
    v_add_u32 v{vXA+3}, {SLOTSZ}, v{vXA+1}
    v_add_u32 v{vXA+4}, {2*SLOTSZ}, v{vXA}
    v_add_u32 v{vXA+5}, {2*SLOTSZ}, v{vXA+1}
    v_and_b32 v3, 6, v0
    v_xor_b32 v3, v3, v2
    v_lshlrev_b32 v3, 4, v3
    v_and_b32 v4, 7, v0
    v_lshl_add_u32 v{vHA}, v4, 7, v3
    {"v_and_b32 v4, 8, v0" if cfg.hzero else ""}
    {"v_xor_b32 v4, 8, v4" if cfg.hzero else ""}
    {f"v_lshl_add_u32 v{vHA}, v4, 15, v{vHA}" if cfg.hzero else ""}
    v_xor_b32 v{vHA+1}, 64, v{vHA}
    v_bfe_u32 v3, v0, 3, 2
    v_xor_b32 v3, s{sWAVE}, v3
    v_lshlrev_b32 v3, 5, v3
    v_and_b32 v4, 3, v0
    v_lshl_add_u32 v3, v4, 3, v3
    v_bfe_u32 v4, v0, 2, 2
    v_lshl_add_u32 v3, v4, 7, v3
    v_mul_u32_u24 v4, 3072, v2
    v_add_u32 v3, v3, v4
    v_add_u32 v{vWA}, {SLOT0+16384}, v3
    v_add_u32 v{vWA+1}, {SLOT0+16384+SLOTSZ}, v3
    v_add_u32 v{vWA+2}, {SLOT0+16384+2*SLOTSZ}, v3
    v_lshlrev_b32 v3, 2, v2
    v_sub_u32 v3, v1, v3
    v_mov_b32 v5, 0xff800000
    s_cmp_eq_u32 s{sSEG}, 0
    s_cselect_b32 s{sT}, {f2u(-4e9)}, 0
    v_mov_b32 v6, s{sT}
    """)
    for r in range(4):
        e(f"""
        v_subrev_u32 v4, {r}, v3
        v_cmp_gt_i32 s[62:63], 0, v4
        v_and_b32 v4, 8, v4
        v_cmp_eq_u32 vcc, 0, v4
        v_cndmask_b32 v{vB0+r}, 0, v6, s[62:63]
        v_cndmask_b32 v{vB+r}, v5, 0, vcc
        v_cndmask_b32 v{vB0+r}, v5, v{vB0+r}, vcc
        v_mov_b32 v{vONE+r}, 0x3f803f80
        """)
    e(f"""
    v_lshlrev_b32 v{vSO}, 4, v0
    {f"v_cmp_lt_u32 vcc, 23, v0" if cfg.sk3 else ""}
    {f"v_cndmask_b32 v{vFO}, 0, 1, vcc" if cfg.sk3 else ""}
    {f"v_lshl_add_u32 v{vSO}, v{vFO}, 7, v{vSO}" if cfg.sk3 else ""}
    v_mov_b32 v{VP+2}, 0
    v_mov_b32 v{VP+4}, -1
    v_mov_b32 v{VP+5}, -1
    v_mov_b32 v{VP+6}, -1
    v_mov_b32 v{VP+7}, -1
    v_lshlrev_b32 v1, 6, v1
    v_lshl_add_u32 v{VP+3}, v2, 15, v1
    v_min_u32 v{vFO}, 1, v0
    v_lshlrev_b32 v{vFO}, 30, v{vFO}
    s_mov_b32 s{sSC}, {f2u(0.25*1.4426950408889634)}
    s_mov_b32 s{sMH}, 0xff00ff00
    s_mov_b32 s{sMH+1}, 0xff00ff00
    s_mov_b32 s{sPM}, 0
    s_mov_b32 s{sPM+1}, 0x00ff00ff
    s_and_b32 s{sS}, s{sG}, 3
    s_lshl_b32 s{sT}, s{sRT}, 7
    s_add_u32 s47, s{sT}, {WS_E}
    s_waitcnt lgkmcnt(0)
    s_load_dword s{sEP}, s[20:21], s47
    s_mov_b32 s{sWS}, s20
    s_mov_b32 s{sWS+1}, s21
    s_mov_b32 s{sWS+2}, 0x10000000
    s_mov_b32 s{sWS+3}, 0x20000
    s_lshl_b32 s47, s{sG}, 2
    s_add_u32 s62, s47, s{sT}
    s_add_u32 s62, s62, {WS_A}
    s_add_u32 s47, s47, s{sWAVE}
    s_add_u32 s47, s47, s{sT}
    s_lshl_b32 s{sDO}, s47, {11 if cfg.sk3 else 10}
    s_add_u32 s{sDO+1}, s{sDO}, {32768 << cfg.sk3}
    s_add_u32 s{sDO+2}, s{sDO}, {65536 << cfg.sk3}
    s_add_u32 s{sDO+3}, s{sDO}, {98304 << cfg.sk3}
    """)
    if cfg.om:
        e(f"""
        s_mov_b32 s{sOUT}, s16
        s_mov_b32 s{sOUT+1}, s17
        s_mov_b32 s{sOUT+2}, 0x400000
        s_mov_b32 s{sOUT+3}, 0x20000
        s_mov_b32 s16, s{sDO}
        s_lshl_b32 s17, s{sSEG}, 7
        s_and_b32 s47, s{sG}, 4
        s_add_u32 s17, s17, s47
        s_add_u32 s17, s17, s{sWAVE}
        s_lshl_b32 s17, s17, 1
        s_add_u32 s17, s17, s{sPAR}
        s_lshl_b32 s17, s17, 1
        s_add_u32 s17, s17, s{sBR}
        s_lshl_b32 s17, s17, 10
        """)
        for r in range(4):
            e(f"s_add_u32 s47, s{sS}, {r}\ns_and_b32 s47, s47, 3")
            if r < cfg.om: e(f"s_lshl_b32 s47, s47, 17\ns_add_u32 s47, s47, {32768*r}\ns_add_u32 s{sDO+r}, s47, s17")
            else: e(f"s_lshl_b32 s47, s47, 15\ns_add_u32 s{sDO+r}, s47, s16")
    e(f"""
    s_lshl_b32 s{sFO}, s{sRT}, 7
    s_and_b32 s47, s{sG}, 4
    s_add_u32 s{sFO}, s{sFO}, s47
    s_add_u32 s{sFO}, s{sFO}, s{sWAVE}
    s_lshl_b32 s{sFO}, s{sFO}, 2
    s_add_u32 s{sFO}, s{sFO}, {WS_FLAG}
    s_getreg_b32 s63, hwreg(HW_REG_XCC_ID, 0, 4)
    """)
    if cfg.rt:
        e(f"""
        v_lshlrev_b32 v1, {6 if cfg.rtn == 16 else 7}, v0
        v_bfrev_b32 v2, 2
        v_cmp_gt_u32 vcc, {cfg.rtn}, v0
        v_cndmask_b32 v234, v2, v1, vcc
        """)
    if cfg.ht and cfg.pf0 == -10:
        for q in range(4): e(f"buffer_store_dwordx4 {vr(VP+4,4)}, v{vSO}, {srd(sWS)}, s{sDO + q} offen {cfg.pf_flags}")
    if cfg.xap > 1:
        sh = {2: 5, 4: 4}[cfg.xap]
        e(f"v_lshrrev_b32 v1, {sh}, v0\nv_mov_b32 v2, v{VP+3}\nv_bfrev_b32 v3, 2")
        for k in range(cfg.xap):
            e(f"v_cmp_eq_u32 vcc, {k}, v1\nv_cndmask_b32 v{VP+3+k}, v3, v2, vcc")
    def tree(lab):
        e(f"""
        s_cmp_eq_u32 s{sS}, 1
        s_cbranch_scc1 {lab}1
        s_cmp_eq_u32 s{sS}, 2
        s_cbranch_scc1 {lab}2
        s_cmp_eq_u32 s{sS}, 3
        s_cbranch_scc1 {lab}3
        s_branch {lab}0
        """)
    e(f"""
    s_waitcnt vmcnt({4 if cfg.ht and cfg.pf0 == -10 else 0}) lgkmcnt(0)
    s_add_u32 s63, s63, s{sEP}
    s_add_u32 s63, s63, {K2}
    s_add_u32 s{sEP}, s{sEP}, {K1}
    v_mov_b32 v1, s63
    v_mov_b32 v{vFV}, s{sEP}
    s_cmp_eq_u32 s{sWAVE}, 0
    s_cbranch_scc0 L_noann
    buffer_store_dword v1, v{vFO}, {srd(sWS)}, s62 offen sc1
L_noann:
    """)
    if cfg.ht and cfg.pf0 == -11:
        for q in range(4): e(f"buffer_store_dwordx4 {vr(VP+4,4)}, v{vSO}, {srd(sWS)}, s{sDO + q} offen {cfg.pf_flags}")
    if cfg.warm and cfg.VS > 0:
        tree("L_w")
        e("L_wback:")
    def xreg(step, t): return BUF[step & 1] + 4*(t + 1)
    def wbase(step): return W15 if (step == cfg.R0 + 2) else BUF[step & 1] + 36
    def wreads(step):
        c, s = step >> 1, step & 1
        R = []
        for p in (1, 2, 0):
            for j in range(2):
                d = wbase(step) + 4*p + 2*j
                R.append(f"ds_read_b64_tr_b16 v[{d}:{d+1}], v{vWA + c % 3} offset:{s*12288 + p*1024 + j*512}")
        return R
    def xread(step, t):
        c, s = step >> 1, step & 1
        d = xreg(step, t)
        if t < 0: return f"ds_read_b128 v[{d}:{d+3}], v{vHA+s} offset:{c*1024}"
        return f"ds_read_b128 v[{d}:{d+3}], v{vXA+2*(c % 3)+s} offset:{t*2048}"
    def reads(step): return wreads(step) + [xread(step, t) for t in range(-1, 8)]
    def mf(step, t, j):
        a = (accQ, accK, accV)[j](t); w = vr(wbase(step) + 4*j, 4); x = vr(xreg(step, t), 4)
        c = "0" if step == 0 else vr(a, 4)
        ops = f"{x}, {w}" if j == 2 else f"{w}, {x}"
        return f"v_mfma_f32_16x16x32_bf16 {vr(a,4)}, {ops}, {c}"
    def mfmas(step):
        if cfg.order == 3:
            M = [mf(step, -1, 1)]
            for t in range(8):
                M += [mf(step, t, 1), mf(step, t, 0)] if t % 2 == 0 else [mf(step, t, 0), mf(step, t, 1)]
            M += [mf(step, t, 2) for t in range(-1, 8)]
        else:
            M = []
            for t in range(-1, 8):
                M += [mf(step, t, 1), mf(step, t, 2)] + ([mf(step, t, 0)] if t >= 0 else [])
        return M
    def kstep(step):
        e("s_waitcnt lgkmcnt(0)")
        late_b = cfg.bp and step & 1 and step < 15 and cfg.bpm >> step & 1
        if step & 1 and step < 15 and not late_b:
            e("s_barrier")
            if step in (7,): stamp()
        if step == 12 and not cfg.late:
            e(f"v_cmp_ne_u32 vcc, 0, v{VP}")
        M = mfmas(step); F = reads(step + 1)
        if step == 11 and not cfg.late:
            F = F + [f"v_mov_b32 v{VP+1}, 0", f"ds_read_b32 v{VP}, v{VP+1}"]
        if cfg.ht and cfg.pfi >= 0 and step == cfg.pf0:
            F = F + [""] * (cfg.pfi - len(F))
            for q in range(4):
                F = F + [f"buffer_store_dwordx4 {vr(VP+4,4)}, v{vSO}, {srd(sWS)}, s{sDO + q} offen {cfg.pf_flags}", ""]
            assert len(F) <= 27
        if cfg.ht and cfg.pfi < 0 and cfg.pf0 <= step < cfg.pf0 + 4:
            F = F + [f"buffer_store_dwordx4 {vr(VP+4,4)}, v{vSO}, {srd(sWS)}, s{sDO + step - cfg.pf0} offen {cfg.pf_flags}"]
        if cfg.xa >= 0:
            at = lambda k: f"buffer_atomic_or v{VP+2}, v{VP+3+k}, {srd(sWS)}, s{sDO} offen {cfg.xa_flags}"
            if cfg.xap > 1:
                for k in range(cfg.xap):
                    if step == cfg.xa + k * cfg.xas: F = F + [at(k)]
            elif cfg.xas == 0:
                if step == cfg.xa: F = F + [at(0)]
            else:
                for w in range(4):
                    if step == cfg.xa + w * cfg.xas:
                        F = F + [f"s_cmp_eq_u32 s{sWAVE}, {w}", f"s_cbranch_scc0 L_xa{w}\n{at(0)}\nL_xa{w}:"]
        if late_b:
            F = [""] * (cfg.bp - 1) + ["s_barrier" + ("\n" + stamp_text() if cfg.stamps and step == 7 else "")] + ["\n".join(F[k:k+cfg.rp]) for k in range(0, len(F), cfg.rp)]
            assert len(F) <= len(M)
        for i, m in enumerate(M):
            e(m)
            if i < len(F): e(F[i])
    def Vp(t): return VP + 2*(7 - t)
    def region(s):
        dstores = []
        stubs = []
        R0 = cfg.R0
        units = []
        first = 2*s - 1
        units.append((0, first, (1, 2)))
        for r in range(4):
            q = (r + s) & 3
            if q == 0 and s != 0: units.append((r, -1, (1, 2)))
            a, b = 2*q, 2*q + 1
            units.append((r, a, (1, 0, 2)))
            units.append((r, b, (0,) if b == first else (1, 0, 2)))
        I = []
        seen = set()
        for step in range(R0, 16):
            if step > R0:
                for k, x in enumerate(wreads(step)): I.append(Item(x, (-2, step, k)))
                tl = []
                for u, (r, t, js) in enumerate(units):
                    if t not in tl:
                        tl.append(t); I.append(Item(xread(step, t), (-1, u, step)))
            for u, (r, t, js) in enumerate(units):
                for k, j in enumerate(js):
                    rr = 0 if (js == (0,) and step + 2 <= 15) else r
                    I.append(Item(mf(step, t, j), (rr, 0, 0 if rr != r else u, step, k), tag=(f"g{r}" if step == 15 and u == len(units) - 1 and j == js[-1] else None)))
        if cfg.late:
            I.append(Item(f"v_mov_b32 v{vXA}, 0", (-3, 0)))
            I.append(Item(f"ds_read_b32 v{vXA+1}, v{vXA}", (-1, 99)))
            I.append(Item(f"v_cmp_ne_u32 vcc, 0, v{vXA+1}", (0, 0)))
        cv = lambda d, a, n: f"v_cvt_pk_bf16_f32 v{d}, v{a+2*n}, v{a+2*n+1}"
        kdone = set()
        prev_store = None; prev_flag = None
        for r in range(4):
            q = (r + s) & 3
            a, b = 2*q, 2*q + 1
            n = [0]
            def add(text, **kw):
                n[0] += 1
                it = Item(text, (r, 1, n[0]), **kw); I.append(it); return it
            for t in (a - 1, a, b):
                if t not in kdone:
                    kdone.add(t)
                    add(cv(accK(t), accK(t), 0)); add(cv(accK(t) + 1, accK(t), 1))
                    add(cv(Vp(t), accV(t), 0)); add(cv(Vp(t) + 1, accV(t), 1))
            XE = lambda t: BUF[0] + 4*(t + 1)
            XO = lambda t: BUF[1] + 4*(t + 1)
            for t in (a, b):
                Q = accQ(t)
                for k in range(2): add(f"v_cndmask_b32 v{accK(t)+2+k}, v{accK(t)+k}, v{accK(t-1)+k}, s[{sMH}:{sMH+1}]")
                add(cv(Q, Q, 0)); add(cv(Q + 1, Q, 1))
                for k in range(2): add(f"v_cndmask_b32 v{Q+2+k}, v{Q+k}, 0, s[{sMH}:{sMH+1}]")
                for k in range(2): add(f"v_cndmask_b32 v{Q+k}, 0, v{Q+k}, s[{sMH}:{sMH+1}]")
                add(f"v_mfma_f32_16x16x32_bf16 {vr(XE(t),4)}, {vr(accK(t),4)}, {vr(Q,4)}, {vr(vB0 if t == 0 else vB,4)}")
            for t in (a, b):
                S = XE(t)
                add(f"v_max3_f32 v{XO(t)}, v{S}, v{S+1}, v{S+2}")
                add(f"v_max_f32 v{XO(t)}, v{XO(t)}, v{S+3}")
            ma, mb = XO(a), XO(b)
            add(f"v_permlane32_swap_b32 v{ma}, v{mb}")
            add(f"v_max_f32 v{ma+1}, v{ma}, v{mb}")
            add(f"v_max_f32 v{ma}, v{ma}, v{mb}")
            add(f"v_permlane16_swap_b32 v{ma}, v{ma+1}")
            add(f"v_max_f32 v{ma}, v{ma}, v{ma+1}")
            add(f"v_mul_f32 v{mb}, s{sSC}, -v{ma}")
            add(f"v_mul_f32 v{ma}, s{sSC}, -v{ma}")
            add(f"v_permlane32_swap_b32 v{ma}, v{mb}")
            for t in (a, b):
                S = XE(t); P = accQ(t)
                for k in range(4): add(f"v_fma_f32 v{S+k}, v{S+k}, s{sSC}, v{XO(t)}")
                for k in range(4): add(f"v_exp_f32 v{S+k}, v{S+k}")
                add(cv(P, S, 0)); add(cv(P + 1, S, 1))
                for k in range(2): add(f"v_cndmask_b32 v{P+2+k}, 0, v{P+k}, s[{sPM}:{sPM+1}]")
                for k in range(2): add(f"v_cndmask_b32 v{P+k}, v{P+k}, 0, s[{sPM}:{sPM+1}]")
                add(f"v_mfma_f32_16x16x32_bf16 {vr(XO(t),4)}, {vr(vONE,4)}, {vr(P,4)}, 0")
                add(f"v_mfma_f32_16x16x32_bf16 {vr(accV(t),4)}, {vr(Vp(t),4)}, {vr(P,4)}, 0")
            OP = XE(a)
            for t in (a, b):
                O = accV(t)
                add(f"v_rcp_f32 v{XO(t)}, v{XO(t)}")
                for k in range(4): add(f"v_mul_f32 v{O+k}, v{O+k}, v{XO(t)}")
                add(cv(OP + 2*(t - a), O, 0)); add(cv(OP + 2*(t - a) + 1, O, 1))
            add(f"v_permlane16_swap_b32 v{OP}, v{OP+2}")
            add(f"v_permlane16_swap_b32 v{OP+1}, v{OP+3}")
            st = f"buffer_store_dwordx4 {vr(OP,4)}, v{vSO}, {srd(sWS)}, s{sDO+q} offen"
            if cfg.om: st = f"buffer_store_dwordx4 {vr(OP,4)}, v{vSO}, {srd(sOUT if r < cfg.om else sWS)}, s{sDO+r} offen"
            fl = f"buffer_store_dword v{vFV}, v{vFO}, {srd(sWS)}, s{sFO} offen offset:{q*128 + r*32}"
            sx = ("\n" + stamp_text()) if cfg.stamps else ""
            if cfg.ht:
                add(f"v_min_u32 v{OP}, -2, v{OP}")
                t1, t2 = (f"{st} {cfg.fast_flags}", f"{fl} {cfg.ffl_flags}")
                if cfg.hbad: t1, t2 = t2 + "\n" + "s_nop 15\n" * cfg.hbad, t1
                w0 = "s_waitcnt vmcnt(0)\n" if r == 0 else ""
                store = add(f"{w0}s_cbranch_vccz L_ss{s}{r}\n{t1}\n{t2}\nL_sb{s}{r}:{sx}", tag=f"st{r}", urgent=True,
                            after=[(prev_store, 0)] if prev_store else None)
                stubs.append(f"L_ss{s}{r}:\n{st} sc1\ns_waitcnt vmcnt(0)\n{fl} sc1\ns_branch L_sb{s}{r}")
                if r == cfg.b8 or r == cfg.b9: add("s_barrier", after=[(store, 0)], urgent=True)
                prev_store = store
                continue
            dstores.append(st)
            if cfg.scm >> r & 1:
                store = add(f"{st} sc1{sx}", tag=f"st{r}", urgent=True, after=[(prev_store, 0)] if prev_store else None)
            else:
                store = add(f"s_cbranch_vccz L_ss{s}{r}\n{st} {cfg.fast_flags}\nL_sb{s}{r}:{sx}", tag=f"st{r}", urgent=True,
                            after=[(prev_store, 0)] if prev_store else None)
                stubs.append(f"L_ss{s}{r}:\n{st} sc1\ns_branch L_sb{s}{r}")
            if r == cfg.b8 or r == cfg.b9: add("s_barrier", after=[(store, 0)], urgent=True)
            tch = f"buffer_load_dword v{OP}, v234, {srd(sWS)}, s{sDO+q} offen {cfg.rt_flags}"
            if cfg.rt >> r & 1 and cfg.rtp == 0:
                prev_flag = add(tch, tag=f"tc{r}", urgent=True, waitvm=store, after=[(store, cfg.LF)] + ([(prev_flag, 0)] if prev_flag else []))
            flag = add(f"s_cbranch_vccz L_fs{s}{r}\n{fl} {cfg.ffl_flags}\nL_fb{s}{r}:", tag=f"fl{r}", urgent=True, waitvm=None if cfg.rt >> r & 1 and cfg.rtp == 0 else store,
                       after=[(store, cfg.LF)] + ([(prev_flag, 0)] if prev_flag else []))
            if cfg.rt >> r & 1 and cfg.rtp == 1:
                flag = add(tch, tag=f"tc{r}", urgent=True, after=[(flag, 0)])
            stubs.append(f"L_fs{s}{r}:\n{fl} sc1\ns_branch L_fb{s}{r}")
            prev_store = store; prev_flag = flag
        e("s_waitcnt lgkmcnt(0)")
        if R0 & 1 and R0 < 15: e("s_barrier")
        stamp()
        if cfg.prio: e(f"s_setprio {cfg.prio}")
        out, t = schedule(I, mfma_first=bool(cfg.mf), ds_lat=cfg.dslat, verbose=cfg.verbose)
        for x in out: e(x)
        if cfg.ds:
            if cfg.wbw: e("s_waitcnt vmcnt(0)")
            for r, x in enumerate(dstores):
                if cfg.ds >> r & 1: e(f"{x} {cfg.ds_flags}")
        if cfg.wb:
            if cfg.wb == 1: e(f"s_cmp_lg_u32 s{sWAVE}, 0")
            if cfg.wb == 2: e(f"s_or_b32 s{sT+6}, s{sWAVE}, s{sG}")
            if cfg.wb == 4: e(f"s_and_b32 s{sT+6}, s{sRT}, 3\ns_or_b32 s{sT+6}, s{sT+6}, s{sWAVE}\ns_or_b32 s{sT+6}, s{sT+6}, s{sG}")
            if cfg.wb != 3: e(f"s_cbranch_scc1 L_wb{s}")
            if cfg.wbw: e("s_waitcnt vmcnt(0)")
            e(f"buffer_wbl2 sc1\nL_wb{s}:")
        return stubs
    stamp()
    if cfg.VS > 0:
        e("s_barrier")
        stamp()
        for x in reads(0): e(x)
        for step in range(cfg.VS): kstep(step)
    tree("L_v")
    n0 = nst[0]
    for s in range(4):
        nst[0] = n0
        e(f".p2align 6\nL_w{s}:")
        e("s_branch L_wback\ns_nop 0" if cfg.warm and cfg.VS > 0 else "s_nop 0\ns_nop 0")
        e(f"L_v{s}:")
        if cfg.VS == 0:
            e("s_barrier")
            stamp()
            for x in reads(0): e(x)
        for step in range(cfg.VS, cfg.R0): kstep(step)
        stubs = region(s)
        stamp()
        dump_stamps(nst[0])
        e("s_endpgm")
        for x in stubs: e(x)
        e(f"L_ve{s}:")
    body, added = hz.fix("\n".join(L))
    return body, added

def finish(body, VSZ):
    K = NAME + "_kernel"
    for s in range(4):
        body = body.replace(f"L_ve{s}:", f"L_ve{s}:\n.fill ({VSZ}-(L_ve{s}-L_w{s}))/4, 4, 0xbf800000")
    s = HDR.format(launch="; @launch grid=(256,1,1) block=(512,1,1) lds=163840") + kernel_head(K) + body + "\n"
    s += ".fill 64, 4, 0xbf800000\n"
    s += kernel_desc(K, 256, 256, 102)
    return s

def build(cfg):
    import subprocess, re, os
    body, added = gen(cfg)
    tmp = f"g3_{os.getpid()}"
    open(tmp + ".s", "w").write(finish(body, 0).replace(".fill (0-", ".fill 0*(0-"))
    subprocess.run(["clang", "-x", "assembler", "-target", "amdgcn-amd-amdhsa", "-mcpu=gfx950", "-c", tmp + ".s", "-o", tmp + ".o"], check=True)
    sy = subprocess.run(["llvm-objdump", "-t", tmp + ".o"], capture_output=True, text=True).stdout
    A = {l.split()[-1]: int(l.split()[0], 16) for l in sy.strip().split("\n") if re.match(r"^[0-9a-f]{16} ", l)}
    sz = max(A[f"L_ve{s}"] - A[f"L_w{s}"] for s in range(4))
    sz = (sz + 63) // 64 * 64
    return finish(body, sz), added, (A["L_compute"], A["L_w0"], sz)

if __name__ == "__main__":
    kw = {}
    for a in sys.argv[2:]:
        k, v = a.split("=")
        if k == "tabs":
            for nm, t in zip(("tabA", "tabB", "tabC", "tabD"), v.split(",")):
                assert sorted(t) == list("01234567"); kw[nm] = int(t[::-1], 16)
            continue
        kw[k] = v.replace("+", " ") if k.endswith("flags") or k.startswith("dma_") else int(v, 0)
    s, added, info = build(Cfg(**kw))
    open(sys.argv[1], "w").write(s)
    print("nops added", added, "sizes", info)
```

```python
import sys, struct
from asmlib import *
import hz
from sched import Item, schedule

def f2u(f): return struct.unpack("<I", struct.pack("<f", f))[0]

class Cfg:
    stamps = 0
    fast_flags = "nt"
    ffl_flags = ""
    ld_flags = "sc1"
    pt_flags = "sc1"
    out_flags = "nt"
    dma_x = ""
    dma_w = ""
    order = 3
    hzero = 1
    tabA = 0x67452310
    tabB = 0x75634021
    R0 = 13
    VS = 13
    warm = 1
    LF = 600
    prio = 3
    lprio = 0
    nofast = 0
    kp = 0
    xwA = 0
    xwB = 0
    xoA = 0
    xoB = 0
    nw = 8
    ac = 5
    b8 = -1
    wsh = 1
    diag = 0
    di = -1
    dc = -1
    dm = 4
    ht = 0
    pf0 = 2
    pf_flags = 'nt'
    pfi = -1
    hbad = 0
    nw1 = 0
    b9 = -1
    g3 = 2
    ap = 4
    lk = 10
    g2 = 2
    lp2 = 0
    nw0 = 8
    xa = -1
    xas = 0
    xap = 1
    xa_flags = ''
    sm = 0
    su = -1
    late = 1
    mf = 1
    dslat = 128
    verbose = 0
    bp = 10
    rp = 2
    bpm = 0xffff
    tp = 0
    dup = 0
    sk3 = 0
    hp = 0
    hpp = 0
    hp0 = 0
    wx = 0
    nocp = 0
    noann = 0
    gx = 0
    xr = 0x4040
    rt = 0
    rtn = 16
    rtp = 0
    rt_flags = 'sc1'
    ptm = 15
    sw = 1
    tabC = -1
    tabD = -1
    e2 = 0
    om = 0
    dp = 4
    ddf_flags = ''
    scm = 15
    ds = 0
    ds_flags = 'sc1'
    wb = 0
    wbw = 1
    cs = -1
    hb = 0
    bq = 14
    ao = 0
    hf = 0
    fl = 4
    pw = 0
    tl = 0
    pc = 2
    dq = 0
    dqh = 7
    pe = 0
    pp = 0
    wz = 0
    pa = 6
    ka = 0
    sa = 0
    ca = 0
    so = 0
    def __init__(self, **kw):
        for k, v in kw.items():
            assert hasattr(self, k), k
            setattr(self, k, v)

HALO = 0; SLOT0 = 8192; SLOTSZ = 40960; WO_L = 98304; STAGE = 8192
WS_FLAG = 8 << 20; WS_E = WS_FLAG + 65536; WS_A = WS_FLAG + 131072; WS_STAMP = 16 << 20; WS_D = WS_FLAG + 196608
K1 = 0x9e3779b9; K2 = 0x51ed270b
sX, sW, sWO, sOUT, sWS = 24, 28, 32, 36, 40
sEP = 44
sWAVE, sRT, sG, sBR, sPAR, sSEG, sCLS = 48, 49, 50, 51, 52, 53, 54
sT = 55
sST = 64
NST = 12
def srd(r): return f"s[{r}:{r+3}]"
def vr(a, n): return f"v[{a}:{a+n-1}]" if n > 1 else f"v{a}"

def gen(cfg):
    K = NAME + "_kernel"
    L = []
    def e(s):
        for ln in s.strip("\n").split("\n"):
            if ln.strip(): L.append(ln.strip() if ln.strip().endswith(":") else "    " + ln.strip())
    nst = [0]
    def stamp_text():
        i = nst[0]; nst[0] += 1
        assert i < NST
        return f"{'s_memrealtime' if cfg.stamps == 2 else 's_memtime'} s[{sST+2*i}:{sST+2*i+1}]"
    def stamp():
        if cfg.stamps: e(stamp_text())
    dcount = [0]
    def dump_stamps(n, ld=False):
        if not cfg.stamps: return
        if cfg.di >= 0 or cfg.dc >= 0:
            i = cfg.di if ld else cfg.dc
            if i < 0: return
            dcount[0] += 1
            e(f"""
            s_waitcnt vmcnt(0) lgkmcnt(0)
            s_sub_u32 s92, s{sST+2*i}, s{sST}
            s_mul_i32 s92, s92, {cfg.dm}
            s_min_u32 s92, s92, 40000
            s_add_u32 s92, s92, 4000
L_dd{dcount[0]}:
            s_memrealtime s[96:97]
            s_waitcnt lgkmcnt(0)
            s_sub_u32 s96, s96, s{sST}
            s_cmp_lt_u32 s96, s92
            s_cbranch_scc1 L_dd{dcount[0]}
            """)
            return
        e("s_memrealtime s[96:97]\ns_waitcnt lgkmcnt(0)")
        e("v_mov_b32 v16, s98\nv_mov_b32 v17, s96")
        e(f"s_getreg_b32 s{sT}, hwreg(HW_REG_XCC_ID, 0, 4)\nv_mov_b32 v18, s{sT}")
        for i in range(1, 14):
            if i < n:
                e(f"s_sub_u32 s{sT}, s{sST+2*i}, s{sST}\nv_mov_b32 v{18+i}, s{sT}")
            elif i == 13 and ld:
                e(f"s_sub_u32 s{sT}, 0x10000000, s47\nv_mov_b32 v{18+i}, s{sT}")
            else:
                e(f"v_mov_b32 v{18+i}, 0")
        e(f"""s_lshl_b32 s{sT}, s2, 3
        s_add_u32 s{sT}, s{sT}, s{sWAVE}
        s_lshl_b32 s{sT}, s{sT}, 6
        s_add_u32 s{sT}, s{sT}, {WS_STAMP}
        s_mov_b64 exec, 1
        v_mov_b32 v1, 0""")
        for i in range(4):
            e(f"buffer_store_dwordx4 v[{16+4*i}:{19+4*i}], v1, {srd(sWS)}, s{sT} offen offset:{16*i}")
        e("s_waitcnt vmcnt(0)")

    stamp()
    if cfg.stamps: e("s_memrealtime s[98:99]")
    e(f"""
    s_cmp_ge_u32 s2, 256
    s_cbranch_scc1 L_end
    s_load_dwordx16 s[4:19], s[0:1], 0
    s_load_dwordx2 s[20:21], s[0:1], 64
    s_getpc_b64 s[22:23]
L_pc:
    s_bfe_u32 s{sT+2}, s2, 0x20003
    {f's_xor_b32 s{sT+2}, s{sT+2}, {cfg.gx & 3}' if cfg.gx & 3 else ''}
    s_mul_i32 s{sT+2}, s{sT+2}, L_w1-L_w0
    v_lshlrev_b32 v1, 6, v0
    v_min_u32 v1, L_w1-L_pc, v1
    v_mov_b32 v2, s{sT+2}
    v_cmp_lt_u32 vcc, L_w0-L_pc, v1
    v_lshrrev_b32 v3, 6, v0
    s_and_b32 s{sT}, s2, 7
    v_cndmask_b32 v2, 0, v2, vcc
    v_add_u32 v1, v1, v2
    {'' if cfg.nocp else 'global_load_dword v255, v1, s[22:23]'}
    s_lshr_b32 s{sT+1}, s2, 3
    v_readfirstlane_b32 s{sWAVE}, v3
    {f"s_nop 0" if 0 else ""}
    v_and_b32 v0, 63, v0
    s_lshr_b32 s{sRT}, s{sT+1}, 3
    s_lshl_b32 s{sT}, s{sT}, 2
    s_add_u32 s{sRT}, s{sRT}, s{sT}
    s_and_b32 s{sG}, s{sT+1}, 7
    {f"s_xor_b32 s{sG}, s{sG}, {cfg.gx}" if cfg.gx else ""}
    s_lshr_b32 s{sBR}, s{sRT}, 4
    s_bfe_u32 s{sPAR}, s{sRT}, 0x10003
    s_and_b32 s{sSEG}, s{sRT}, 7
    {f"s_xor_b32 s{sWAVE}, s{sWAVE}, 4" if cfg.sw else ""}
    s_cmp_ge_u32 s{sWAVE}, 4
    s_cbranch_scc0 L_compute
    """)
    sLW, sXB, sWB, sKO, sWOFF, sHOFF = sT, sT+1, sT+2, sT+3, sT+4, sT+5
    vX, vW, vH = 8, 12, 14
    sMX, sMW, sA, sB, sHM = 88, 92, 94, 95, 100
    if cfg.lprio: e(f"s_setprio {cfg.lprio}")
    if cfg.tabC >= 0:
        e(f"""
        s_add_u32 s{sA}, s{sRT}, s{sG}
        s_bitcmp0_b32 s{sA}, 0
        s_mov_b32 s{sCLS}, {cfg.tabA}
        s_cselect_b32 s{sCLS}, s{sCLS}, {cfg.tabB}
        s_mov_b32 s{sB}, {cfg.tabC}
        s_cselect_b32 s{sB}, s{sB}, {cfg.tabD}
        s_bitcmp0_b32 s{sA}, 1
        s_cselect_b32 s{sCLS}, s{sCLS}, s{sB}
        """)
    else:
        e(f"""
        s_add_u32 s{sCLS}, s{sRT}, s{sG}
        s_and_b32 s{sCLS}, s{sCLS}, 1
        s_cmp_eq_u32 s{sCLS}, 0
        s_mov_b32 s{sCLS}, {cfg.tabA}
        s_cselect_b32 s{sCLS}, s{sCLS}, {cfg.tabB}
        """)
    if cfg.xr:
        e(f"""
        s_and_b32 s{sA}, s{sRT}, 12
        s_lshr_b32 s{sA}, {cfg.xr & 0xffff}, s{sA}
        s_and_b32 s{sA}, s{sA}, 7
        s_mul_i32 s{sA}, s{sA}, 0x11111111
        {"s_xor_b32" if cfg.xr < 0x10000 else "s_add_u32"} s{sCLS}, s{sCLS}, s{sA}
        """)
    e(f"""
    s_lshr_b32 s{sA}, s{sG}, 1
    s_bfe_u32 s{sB}, s{sRT}, 0x10001
    s_sub_u32 s{sLW}, s{sWAVE}, 4
    v_lshrrev_b32 v3, 3, v0
    v_and_b32 v4, 7, v0
    v_lshrrev_b32 v5, 4, v0
    v_xor_b32 v6, v4, v5
    v_lshlrev_b32 v6, 4, v6
    v_lshl_add_u32 v6, v3, 11, v6
    s_lshl_b32 s{sT+6}, s{sSEG}, 18
    s_lshl_b32 s{sT+7}, s{sPAR}, 10
    s_add_u32 s{sT+6}, s{sT+6}, s{sT+7}
    s_sub_u32 s{sHOFF}, s{sT+6}, 16384
    s_cmp_eq_u32 s{sSEG}, 0
    s_cselect_b32 s{sHOFF}, 0x40000000, s{sHOFF}
    s_lshl_b32 s{sT+7}, s{sLW}, 16
    s_add_u32 s{sT+6}, s{sT+6}, s{sT+7}
    s_lshl_b32 s{sXB}, s{sLW}, 12
    """)
    for j in range(4):
        e(f"""
        s_add_u32 s{sKO}, s{sA}, {j}
        s_and_b32 s{sKO}, s{sKO}, 3
        s_lshl_b32 s{sMX+j}, s{sKO}, 10
        s_add_u32 s{sMX+j}, s{sMX+j}, s{sXB}
        s_and_b32 s{sT+7}, s{sKO}, 1
        s_lshl_b32 s{sT+7}, s{sT+7}, 6
        s_lshl_b32 s{sKO}, s{sKO}, 14
        s_add_u32 s{sKO}, s{sKO}, s{sT+6}
        v_xor_b32 v{vX+j}, s{sT+7}, v6
        v_add_u32 v{vX+j}, s{sKO}, v{vX+j}
        """)
    e(f"""
    v_lshlrev_b32 v7, 1, v5
    v_xor_b32 v6, v4, v7
    v_lshlrev_b32 v6, 4, v6
    v_lshl_add_u32 v6, v3, 11, v6
    v_add_u32 v{vH}, s{sHOFF}, v6
    v_and_b32 v7, 2, v7
    v_xor_b32 v7, v7, v4
    v_lshlrev_b32 v7, 4, v7
    v_mul_u32_u24 v6, 3072, v3
    v_add_u32 v7, v7, v6
    s_mul_i32 s{sT+6}, s{sLW}, {24576 if cfg.hb else 49152}
    s_lshl_b32 s{sT+7}, s{sG}, 7
    {f"s_xor_b32 s{sT+7}, s{sT+7}, {cfg.wx*128}" if cfg.wx else ""}
    s_add_u32 s{sT+6}, s{sT+6}, s{sT+7}
    s_mul_i32 s{sWB}, s{sLW}, {3072 if cfg.hb else 6144}
    """)
    if cfg.hb:
        e(f"""
        s_and_b32 s{sT+7}, s{sLW}, 1
        s_lshl_b32 s{sT+7}, s{sT+7}, 6
        v_xor_b32 v7, s{sT+7}, v7
        s_mul_i32 s{sKO}, s{sB}, 98304
        s_add_u32 s{sT+7}, s{sKO}, s{sT+6}
        v_add_u32 v{vW}, s{sT+7}, v7
        s_sub_u32 s{sKO}, 98304, s{sKO}
        s_add_u32 s{sT+7}, s{sKO}, s{sT+6}
        v_add_u32 v{vW+1}, s{sT+7}, v7
        s_mov_b32 s{sMW}, s{sWB}
        s_add_u32 s{sMW+1}, s{sWB}, 12288
        """)
    for m in range(0 if cfg.hb else 2):
        e(f"""
        s_xor_b32 s{sKO}, s{sB}, {m}
        s_mul_i32 s{sMW+m}, s{sKO}, 3072
        s_add_u32 s{sMW+m}, s{sMW+m}, s{sWB}
        s_lshl_b32 s{sT+7}, s{sKO}, 6
        s_mul_i32 s{sKO}, s{sKO}, 24576
        s_add_u32 s{sKO}, s{sKO}, s{sT+6}
        v_xor_b32 v{vW+m}, s{sT+7}, v7
        v_add_u32 v{vW+m}, s{sKO}, v{vW+m}
        """)
    if cfg.hp:
        nl = -(-192 * cfg.hp // 112)
        e(f"""
        s_and_b32 s{sT+6}, s{sRT}, 3
        s_mul_i32 s{sT+6}, s{sT+6}, 7
        s_add_u32 s{sT+6}, s{sT+6}, s{sG}
        s_cmp_gt_u32 s{sG}, 3
        s_subb_u32 s{sT+6}, s{sT+6}, 0
        s_lshl_b32 s{sT+6}, s{sT+6}, 2
        s_add_u32 s{sT+6}, s{sT+6}, s{sLW}
        s_cmp_eq_u32 s{sG}, 3
        s_cselect_b32 s{sT+6}, 0x10000, s{sT+6}
        v_mul_u32_u24 v21, 112, v0
        v_add_u32 v21, s{sT+6}, v21
        v_cmp_gt_u32 vcc, {192 * cfg.hp}, v21
        s_and_b32 s{sT+7}, s{sRT}, 12
        s_lshr_b32 s{sT+7}, {cfg.xr & 0xffff}, s{sT+7}
        s_and_b32 s{sT+7}, s{sT+7}, 7
        s_add_u32 s{sT+7}, s{sT+7}, {cfg.hp0}
        s_mul_i32 s{sT+7}, s{sT+7}, 192
        v_add_u32 v21, s{sT+7}, v21
        v_subrev_u32 v22, 1536, v21
        v_min_u32 v21, v21, v22
        v_lshl_add_u32 v21, v21, 10, 0
        v_add_u32 v21, 384, v21
        v_bfrev_b32 v22, 2
        v_cndmask_b32 v21, v22, v21, vcc
        """)
    e(f"""
    s_lshl_b32 s{sT+6}, s{sLW}, 4
    s_lshl_b64 s[{sHM}:{sHM+1}], 0xffff, s{sT+6}
    s_waitcnt lgkmcnt(0)
    """)
    stamp()
    e(f"""
    s_cmp_eq_u32 s{sBR}, 0
    s_cselect_b32 s{sX}, s4, s10
    s_cselect_b32 s{sX+1}, s5, s11
    s_mov_b32 s{sX+2}, 0x200000
    s_mov_b32 s{sX+3}, 0x20000
    s_cselect_b32 s{sW}, s6, s12
    s_cselect_b32 s{sW+1}, s7, s13
    s_mov_b32 s{sW+2}, 0x180000
    s_mov_b32 s{sW+3}, 0x20000
    s_cselect_b32 s{sWO}, s8, s14
    s_cselect_b32 s{sWO+1}, s9, s15
    s_mov_b32 s{sWO+2}, 0x80000
    """)
    pend = []
    def flush():
        for x in pend: x()
        pend.clear()
    def issue(c, part=""):
        flush()
        pw = f"s_waitcnt vmcnt({cfg.pw})\n" if cfg.pw and c >= cfg.pc else ""
        slot = SLOT0 + (c % 3) * SLOTSZ
        if cfg.ao and c == cfg.hb and part: part = {'a': 'w', 'b': 'x'}[part]
        e(f"""
        s_bfe_u32 s{sT+6}, s{sCLS}, {0x30000 + 4*c}
        s_add_u32 m0, s{sMW + (part == 'b')}, {slot + 16384}
        s_mul_i32 s{sWOFF}, s{sT+6}, 196608
        s_lshl_b32 s{sKO}, s{sT+6}, 7
        """)
        def wl(m):
            for p in range(3):
                e(f"{pw}buffer_load_dwordx4 v{vW+m}, {srd(sW)}, s{sWOFF} offen offset:{1024*p} {cfg.dma_w} lds")
        def xl(j):
            e(f"s_add_u32 m0, s{sMX+j}, {slot}")
            e(f"{pw}buffer_load_dwordx4 v{vX+j}, {srd(sX)}, s{sKO} offen {cfg.dma_x} lds")
        if part == 'b':
            wl(1); return
        if part == 'w':
            wl(0)
            e(f"s_add_u32 m0, s{sMW+1}, {slot + 16384}")
            wl(1)
            for j in range(cfg.ao - 1): xl(3 - j)
            return
        if part == 'x':
            xl(0)
            e(f"s_mov_b32 m0, {HALO + c*1024}\ns_mov_b64 exec, s[{sHM}:{sHM+1}]")
            e(f"buffer_load_dwordx4 v{vH}, {srd(sX)}, s{sKO} offen {cfg.dma_x} lds")
            e(f"s_mov_b64 exec, -1")
            for j in range(1, 5 - cfg.ao): xl(j)
            return
        if part == 'a':
            wl(0); xl(0)
            e(f"s_mov_b32 m0, {HALO + c*1024}\ns_mov_b64 exec, s[{sHM}:{sHM+1}]")
            e(f"buffer_load_dwordx4 v{vH}, {srd(sX)}, s{sKO} offen {cfg.dma_x} lds")
            e(f"s_mov_b64 exec, -1")
            xl(1); xl(2); xl(3)
            return
        wl(0); xl(0)
        e(f"s_mov_b32 m0, {HALO + c*1024}\ns_mov_b64 exec, s[{sHM}:{sHM+1}]")
        e(f"buffer_load_dwordx4 v{vH}, {srd(sX)}, s{sKO} offen {cfg.dma_x} lds")
        e(f"s_add_u32 m0, s{sMW+1}, {slot + 16384}\ns_mov_b64 exec, -1")
        wl(1)
        for j in (1, 2, 3):
            if j > 3 - cfg.tl and c >= cfg.pc: pend.append(lambda j=j: xl(j))
            else: xl(j)
    OF = 0; ACC = 128; WF = 160
    vA = 224
    vO0, vO1, vPO, vP = 232, 233, 234, 235
    vSW, vSR, vOA = 236, 240, 241
    vD = 242
    vWO = 246
    sSO = 12
    sFL, sOO, sSP = 45, 46, 47
    sAV = 18
    hp_ld = f"buffer_load_dword v21, v21, {srd(sW)}, 0 offen"
    if cfg.hp and cfg.hpp == 0: e(hp_ld)
    if cfg.hb: issue(0, 'a'); issue(0, 'b')
    else: issue(0)
    if cfg.hp and cfg.hpp == 1: e(hp_ld)
    e(f"""
    s_mov_b32 s{sWO+3}, 0x20000
    s_mov_b32 s{sWS}, s20
    s_mov_b32 s{sWS+1}, s21
    s_mov_b32 s{sWS+2}, 0x10000000
    s_mov_b32 s{sWS+3}, 0x20000
    s_mov_b32 s{sOUT}, s16
    s_mov_b32 s{sOUT+1}, s17
    s_mov_b32 s{sOUT+2}, 0x400000
    s_mov_b32 s{sOUT+3}, 0x20000
    """)
    vXw, vXo = 250, 252
    sXw, sXo = 16, 17
    e(f"""
    v_lshlrev_b32 v{vXw}, 6, v0
    v_and_b32 v1, 15, v0
    v_lshlrev_b32 v1, 6, v1
    v_lshrrev_b32 v2, 4, v0
    v_lshl_add_u32 v{vXo}, v2, 15, v1
    s_cmp_eq_u32 s{sCLS}, {cfg.tabA}
    s_cselect_b32 s22, 0, 0x40000000
    s_cselect_b32 s23, 0x40000000, 0
    s_and_b32 s{sXw}, s{sRT}, 3
    s_lshl_b32 s{sXw}, s{sXw}, 3
    s_add_u32 s{sXw}, s{sXw}, s{sG}
    s_lshl_b32 s{sXw}, s{sXw}, 2
    s_add_u32 s{sXw}, s{sXw}, s{sLW}
    s_lshl_b32 s{sXw}, s{sXw}, 12
    s_lshl_b32 s{sXo}, s{sRT}, 5
    s_add_u32 s{sXo}, s{sXo}, s{sG}
    s_lshl_b32 s{sXo}, s{sXo}, 2
    s_add_u32 s{sXo}, s{sXo}, s{sLW}
    s_lshl_b32 s{sXo}, s{sXo}, 10
    """)
    vOi = [232, 243, 244, 245, 233, 254, 251, 253]; vDV = 255; vXq = 253; sXq = 96; sDF = 97; sDS = 3
    if cfg.ptm != 15 and not cfg.om:
        e(f"""
        s_and_b32 s{sT+6}, s{sG}, 3
        v_add_u32 v3, s{sT+6}, v2
        v_and_b32 v3, 3, v3
        v_lshl_add_u32 v{vXo}, v3, 15, v1
        v_lshrrev_b32 v3, v2, {cfg.ptm}
        v_and_b32 v3, 1, v3
        v_cmp_eq_u32 vcc, 0, v3
        v_bfrev_b32 v3, 2
        v_cndmask_b32 v{vXo}, v{vXo}, v3, vcc
        """)
    if cfg.om:
        assert cfg.xoA != 9 and cfg.xoB != 9 and cfg.g3 and not cfg.ht and not cfg.diag
        e(f"""
        s_and_b32 s{sT+6}, s{sG}, 3
        v_add_u32 v3, s{sT+6}, v2
        v_and_b32 v3, 3, v3
        v_lshl_add_u32 v{vXo}, v3, 15, v1
        v_lshl_add_u32 v3, v3, 17, v1
        v_lshl_add_u32 v{vXq}, v2, 15, v3
        v_cmp_gt_u32 vcc, {cfg.om}, v2
        v_bfrev_b32 v3, 2
        v_cndmask_b32 v{vXo}, v{vXo}, v3, vcc
        v_cndmask_b32 v{vXq}, v3, v{vXq}, vcc
        s_lshl_b32 s{sXq}, s{sSEG}, 7
        s_and_b32 s{sT+6}, s{sG}, 4
        s_add_u32 s{sXq}, s{sXq}, s{sT+6}
        s_add_u32 s{sXq}, s{sXq}, s{sLW}
        s_lshl_b32 s{sXq}, s{sXq}, 1
        s_add_u32 s{sXq}, s{sXq}, s{sPAR}
        s_lshl_b32 s{sXq}, s{sXq}, 1
        s_add_u32 s{sXq}, s{sXq}, s{sBR}
        s_lshl_b32 s{sXq}, s{sXq}, 10
        """)
    def acheck():
        if cfg.diag:
            e(f"""
            s_mov_b32 s3, 0
            s_mov_b32 s{sSP}, 100000
            s_getreg_b32 s{sWOFF}, hwreg(HW_REG_XCC_ID, 0, 4)
            s_sub_u32 s{sWOFF}, s{sAV}, s{sWOFF}
L_dg:
            s_waitcnt lgkmcnt(0)
            s_mov_b32 s{sKO}, 0
            """)
            for i in range(8):
                e(f"s_sub_u32 s{sT+7}, s{4+i}, s{sWOFF}\ns_or_b32 s{sKO}, s{sKO}, s{sT+7}")
            e(f"""
            s_cmp_lt_u32 s{sKO}, 16
            s_cbranch_scc1 L_dgx
            s_mov_b32 s3, 800
            s_sub_u32 s{sSP}, s{sSP}, 1
            s_cbranch_scc1 L_dgx
            s_add_u32 s{sT+6}, s19, {WS_A}
            s_load_dwordx8 s[4:11], s[20:21], s{sT+6} glc
            s_branch L_dg
L_dgx:
            """)
        e(f"""
        s_mov_b32 s19, s{sAV}
        s_waitcnt lgkmcnt(0)
        s_xor_b64 s[4:5], s[4:5], s[18:19]
        s_xor_b64 s[6:7], s[6:7], s[18:19]
        s_xor_b64 s[8:9], s[8:9], s[18:19]
        s_xor_b64 s[10:11], s[10:11], s[18:19]
        s_or_b64 s[4:5], s[4:5], s[6:7]
        s_or_b64 s[8:9], s[8:9], s[10:11]
        s_or_b64 s[4:5], s[4:5], s[8:9]
        s_cselect_b32 s4, 0, {0 if cfg.nofast else 1}
        {"s_cselect_b32 s5, 1600, 0" if cfg.diag else ""}
        {"s_add_u32 s3, s3, s5" if cfg.diag else ""}
        v_mov_b32 v1, 0
        v_mov_b32 v2, s4
        ds_write_b32 v1, v2
        """)
        if cfg.b8 < 0:
            e(f"s_lshl_b32 s5, s{sLW}, 2\nv_mov_b32 v3, s5\nds_write_b32 v3, v1 offset:16")
    def xat(pos):
        n = 0
        T = [(cfg.xwA, cfg.xwB, vXw, sWO, sXw, "", 4)]
        if cfg.om: T.append((cfg.xoA, cfg.xoB, vXq, sOUT, sXq, cfg.pt_flags, 5))
        if cfg.om < 4: T.append((cfg.xoA, cfg.xoB, vXo, sWS, sXo, cfg.pt_flags, 6))
        for (pa, pb, v, sr, so, fl, d) in T:
            if pa == pos and pb == pos:
                e(f"buffer_load_dword v{d}, v{v}, {srd(sr)}, s{so} offen {fl}"); n += 1
            elif pos in (pa, pb):
                d += 12 if pa == pos else 16
                e(f"v_add_u32 v{d}, s{22 if pa == pos else 23}, v{v}\nbuffer_load_dword v{d}, v{d}, {srd(sr)}, s{so} offen {fl}"); n += 1
        return n
    for c in range(8):
        nX = 0
        if c == 1 and cfg.e2: pass
        elif c + 1 <= 7 and not (c == 0 and cfg.su < 0):
            nX = xat(c + 1); issue(c + 1, 'a' if c < cfg.hb else '')
            if c == 6: nX7 = xat(10); nX += nX7
        if c == 0:
            e(f"""
            s_lshl_b32 s19, s{sRT}, 7
            s_add_u32 s{sT+6}, s19, {WS_E}
            s_load_dword s{sEP}, s[20:21], s{sT+6}
            """)
        if c == max(cfg.su, 0):
            e(f"""
            v_and_b32 v1, 1, v0
            v_bfe_u32 v2, v0, 1, 1
            v_lshl_add_u32 v1, v1, 1, v2
            v_bfe_u32 v2, v0, 4, 1
            v_lshl_add_u32 v1, v2, 2, v1
            v_lshlrev_b32 v1, 3, v1
            v_bfe_u32 v2, v0, 3, 1
            v_lshl_add_u32 v1, v2, 6, v1
            v_bfe_u32 v2, v0, 2, 2
            v_lshl_add_u32 v1, v2, 7, v1
            v_lshrrev_b32 v2, 5, v0
            v_lshl_add_u32 v1, v2, 10, v1
            s_lshl_b32 s{sOO}, s{sRT}, 2
            {f"s_and_b32 s3, s{sLW}, 1" if cfg.dup else f"s_mov_b32 s3, s{sLW}"}
            {f"s_and_b32 s{sFL}, s{sG}, 1" if cfg.dup else ""}
            {f"s_lshl1_add_u32 s3, s{sFL}, s3" if cfg.dup else ""}
            s_add_u32 s{sOO}, s{sOO}, s3
            s_lshl_b32 s{sFL}, s{sOO}, 7
            s_add_u32 s{sFL}, s{sFL}, {WS_FLAG}
            s_lshl_b32 s{sOO}, s{sOO}, {16 if cfg.sk3 else 15}
            """)
            for r in range(4):
                e(f"""
                s_sub_u32 s{sT+6}, s3, {r}
                s_and_b32 s{sT+6}, s{sT+6}, 3
                s_lshl_b32 s{sT+7}, s{sT+6}, {13 if cfg.sk3 else 12}
                s_add_u32 s{sSO+r}, s{sT+7}, s{sOO}
                s_lshl_b32 s{sT+6}, s{sT+6}, 13
                s_add_u32 s{sT+6}, s{sT+6}, {WO_L}
                """)
                if cfg.tp: e(f"v_lshl_add_u32 v{vA+r}, v0, 4, s{sT+6}")
                else: e(f"v_add_u32 v{vA+2*r}, s{sT+6}, v1\nv_xor_b32 v{vA+2*r+1}, 64, v{vA+2*r}")
            if cfg.tp:
                e(f"""
                s_lshl_b32 s{sT+6}, s{sLW}, 14
                s_add_u32 s{sT+6}, s{sT+6}, {WO_L}
                v_add_u32 v{vA+4}, s{sT+6}, v1
                v_xor_b32 v{vA+5}, 64, v{vA+4}
                v_lshl_add_u32 v{vA+6}, v0, 4, s{sT+6}
                """)
        if c == max(cfg.su, 0) * 2:
            e(f"""
            v_lshlrev_b32 v{vO0}, 4, v0
            v_add_u32 v{vO1}, 16384, v{vO0}
            """)
            if cfg.sk3:
                e(f"""
                v_cmp_lt_u32 vcc, 23, v0
                v_cndmask_b32 v1, 0, 1, vcc
                v_lshl_add_u32 v243, v1, 7, v{vO0}
                v_add_u32 v244, 4096, v243
                v_add_u32 v245, 32768, v243
                v_add_u32 v254, 36864, v243
                """)
            e(f"""
            v_and_b32 v1, 7, v0
            v_lshlrev_b32 v{vPO}, 2, v1
            v_lshrrev_b32 v2, 5, v0
            v_xor_b32 v1, v1, v2
            v_lshlrev_b32 v1, 4, v1
            v_and_b32 v2, 31, v0
            v_lshl_add_u32 v1, v2, 7, v1
            s_lshl_b32 s{sT+6}, s{sLW}, 12
            s_add_u32 s{sT+6}, s{sT+6}, {STAGE}
            v_add_u32 v{vSW}, s{sT+6}, v1
            v_xor_b32 v{vSW+1}, 32, v{vSW}
            v_xor_b32 v{vSW+2}, 64, v{vSW}
            v_xor_b32 v{vSW+3}, 96, v{vSW}
            v_add_u32 v{vSR}, s{sT+6}, v{vO0}
            v_lshrrev_b32 v2, 3, v0
            v_and_b32 v1, 7, v0
            v_xor_b32 v1, v1, v2
            v_lshlrev_b32 v1, 4, v1
            v_lshl_add_u32 v{vOA}, v2, 12, v1
            s_lshl_b32 s{sOO}, s{sSEG}, 19
            s_lshl_b32 s{sT+6}, s{sLW}, 17
            s_add_u32 s{sOO}, s{sOO}, s{sT+6}
            s_lshl_b32 s{sT+6}, s{sPAR}, 11
            s_add_u32 s{sOO}, s{sOO}, s{sT+6}
            s_lshl_b32 s{sT+6}, s{sBR}, 10
            s_add_u32 s{sOO}, s{sOO}, s{sT+6}
            """)
            for r in range(cfg.om): e(f"s_add_u32 s{sSO+r}, s{sOO}, {32768*r}")
            if cfg.om:
                for i in (1, 2, 3, 5, 6): e(f"v_add_u32 v{vOi[i]}, {4096*i}, v{vO0}")
                e(f"""
                s_add_u32 s{sDF}, s{sFL}, {WS_D - WS_FLAG}
                s_lshl_b32 s{sDS}, s{sG}, 2
                s_add_u32 s{sDS}, s{sDS}, s{sDF}
                """)
            e(f"""
            s_lshl_b32 s{sT+6}, s{sG}, 7
            s_add_u32 s{sOO}, s{sOO}, s{sT+6}
            """)
        if c == max(cfg.su, 0) * 3:
            e(f"""
            v_lshrrev_b32 v3, 3, v0
            v_and_b32 v4, 7, v0
            v_lshrrev_b32 v5, 2, v0
            v_and_b32 v5, 4, v5
            v_xor_b32 v4, v4, v5
            v_lshlrev_b32 v4, 4, v4
            v_lshl_add_u32 v4, v3, 10, v4
            s_lshl_b32 s{sT+6}, s{sLW}, 17
            s_lshl_b32 s{sT+7}, s{sG}, 7
            s_add_u32 s{sT+6}, s{sT+6}, s{sT+7}
            v_add_u32 v{vWO}, s{sT+6}, v4
            v_add_u32 v{vWO+1}, 7168, v{vWO}
            v_add_u32 v{vWO+2}, 14336, v{vWO}
            v_add_u32 v{vWO+3}, 21504, v{vWO}
            """)
        if c == 0 and cfg.hf:
            assert not cfg.hf & 0xaa9 and cfg.hf < 1 << 2*cfg.hb
            e("v_mov_b32 v15, 0x20000\nv_mov_b32 v16, 1")
        if c == 0 and cfg.su < 0: issue(1, 'a' if cfg.hb else '')
        if c == 0: n12 = xat(12); nX += n12
        if c == 1: nX += n12
        if c == 0 and cfg.e2: issue(2); nX = 11
        if c == 3:
            e(f"""
            s_getreg_b32 s{sAV}, hwreg(HW_REG_XCC_ID, 0, 4)
            s_waitcnt lgkmcnt(0)
            s_add_u32 s{sAV}, s{sAV}, s{sEP}
            s_add_u32 s{sAV}, s{sAV}, {K2}
            s_add_u32 s{sEP}, s{sEP}, {K1}
            """)
            if cfg.om: e(f"v_mov_b32 v{vDV}, s{sEP}")
        if c == cfg.ac:
            e(f"""
            s_add_u32 s{sT+6}, s19, {WS_A}
            s_load_dwordx8 s[4:11], s[20:21], s{sT+6} glc
            """)
        if c == 6:
            if not cfg.late: acheck()
            e(f"""
            s_lshl_b32 s{sXB}, s{sLW}, 14
            s_waitcnt vmcnt({11 + nX - len(pend)}) {'' if cfg.late else 'lgkmcnt(0)'}
            """)
            nX7 += xat(11)
            e("s_barrier")
            stamp()
        elif c == 7:
            flush()
            nX = xat(8) + nX7
            def wo(i):
                gq, j = i >> 2, i & 3
                if j == 0 and not cfg.wsh: e(f"s_add_u32 m0, s{sXB}, {WO_L + 4096*gq}\ns_mov_b32 s{sKO}, {32768*gq}")
                if j == 0 and cfg.wsh:
                    e(f"""
                    s_add_u32 s{sKO}, s{sRT}, {gq}
                    s_and_b32 s{sKO}, s{sKO}, 3
                    s_lshl_b32 s{sWOFF}, s{sKO}, 12
                    s_add_u32 s{sWOFF}, s{sWOFF}, s{sXB}
                    s_add_u32 m0, s{sWOFF}, {WO_L}
                    s_lshl_b32 s{sKO}, s{sKO}, 15
                    """)
                e(f"buffer_load_dwordx4 v{vWO+j}, {srd(sWO)}, s{sKO} offen offset:{1024*j} lds")
            for i in range(cfg.nw0): wo(i)
            e(f"s_waitcnt vmcnt({nX + cfg.nw0})")
            if cfg.sm == 1: stamp()
            for i in range(cfg.nw0, cfg.nw): wo(i)
            if cfg.late:
                acheck(); e("s_waitcnt lgkmcnt(0)")
            if cfg.sm == 1: stamp()
            e("s_barrier")
            stamp()
            for i in range(cfg.nw, cfg.nw1): wo(i)
            if cfg.b9 >= 0: e("s_barrier")
            for i in range(max(cfg.nw, cfg.nw1), 16): wo(i)
            nX = xat(9)
            e(f"buffer_load_dword v{vP}, v{vPO}, {srd(sWS)}, s{sFL} offen sc1")
            e(f"s_mov_b32 s{sSP}, {0x10000000 if cfg.stamps else 0x200000}\ns_waitcnt vmcnt({nX+1})")
        else:
            def lsig(k): return f"s_mov_b64 exec, 1\nds_add_u32 v15, v16 offset:{4*k}\ns_mov_b64 exec, -1" if cfg.hf >> k & 1 else "s_barrier"
            e(f"s_waitcnt vmcnt({8 + cfg.ao if cfg.ao and c == cfg.hb - 1 else 11+nX-len(pend)})\n{lsig(2*c) if c < cfg.hb else 's_barrier'}")
            if c == 0 or cfg.sm == 2: stamp()
            if c < cfg.hb:
                assert nX == 0 and cfg.su < 0 and not cfg.e2 and cfg.hb <= 6
                issue(c + 1, 'b')
                e("s_waitcnt vmcnt(11)\n" + lsig(2*c + 1))
    if cfg.sm != 2: stamp()
    if cfg.lp2: e(f"s_setprio {cfg.lp2}")
    if cfg.tp:
        n = 0
        for h in range(8 + 1):
            if h < 8:
                for m in range(2):
                    for j in range(2):
                        d = WF + 8*h + 4*m + 2*j
                        e(f"ds_read_b64_tr_b16 v[{d}:{d+1}], v{vA+4+m} offset:{h*2048 + j*512}")
            if h >= 1:
                k = h - 1
                e(f"s_waitcnt lgkmcnt({[4, 6, 6, 6, 6, 6, 6, 2][k]})")
                for m in range(2):
                    e(f"ds_write_b128 v{vA+6}, {vr(WF + 8*k + 4*m, 4)} offset:{k*2048 + m*1024}")
    if cfg.b8 < 0: e("v_mov_b32 v2, 1\nds_write_b32 v3, v2 offset:16")
    def lsync(sx=""):
        if cfg.b8 >= 0: e("s_barrier"); return
        e(f"""
L_ls{sx}:
        ds_read_b128 v[{WF}:{WF+3}], v{vD} offset:16
        s_sub_u32 s{sSP}, s{sSP}, 1
        s_cmp_lt_i32 s{sSP}, 0
        s_cbranch_scc1 L_lsx{sx}
        s_waitcnt lgkmcnt(0)
        v_and_b32 v{WF}, v{WF}, v{WF+1}
        v_and_b32 v{WF+2}, v{WF+2}, v{WF+3}
        v_and_b32 v{WF}, v{WF}, v{WF+2}
        v_cmp_eq_u32 vcc, 0, v{WF}
        s_cbranch_vccnz L_ls{sx}
L_lsx{sx}:
        """)
    e(f"v_mov_b32 v{vD}, 0")
    if cfg.om: e(f"v_add_u32 v{vOi[7]}, {4096*7}, v{vO0}")
    def wrd(H):
        r, i = H >> 3, H & 7
        R = []
        if cfg.tp:
            return [f"ds_read_b128 {vr(WF + 8*i + 4*m, 4)}, v{vA+r} offset:{(i>>2)*32768 + (i&3)*2048 + m*1024}" for m in range(2)]
        for m in range(2):
            for j in range(2):
                d = WF + 8*i + 4*m + 2*j
                R.append(f"ds_read_b64_tr_b16 v[{d}:{d+1}], v{vA+2*r+m} offset:{(i>>2)*32768 + (i&3)*2048 + j*512}")
        return R
    def oload(H):
        r, i = H >> 3, H & 7
        if r < cfg.om: return f"buffer_load_dwordx4 {vr(OF+4*H,4)}, v{vOi[i]}, {srd(sOUT)}, s{sSO+r} offen {cfg.ld_flags}"
        if cfg.sk3: return f"buffer_load_dwordx4 {vr(OF+4*H,4)}, v{[243, 244, 245, 254][i >> 1]}, {srd(sWS)}, s{sSO+r} offen offset:{(i&1)*2048} {cfg.ld_flags}"
        return f"buffer_load_dwordx4 {vr(OF+4*H,4)}, v{vO0 + (i>>2)}, {srd(sWS)}, s{sSO+r} offen offset:{(i&3)*1024} {cfg.ld_flags}"
    def poll(r): return f"buffer_load_dword v{vP}, v{vPO}, {srd(sWS)}, s{sFL} offen offset:{32*r} sc1"
    vq = []
    dq = []
    def ivm(tag, text): e(text); vq.append(tag)
    def ids(tag, text):
        if len(dq) >= 14:
            e(f"s_waitcnt lgkmcnt({cfg.lk})"); del dq[:len(dq) - cfg.lk]
        e(text); dq.append(tag)
    def wait(vt=None, dt=None):
        parts = []
        if vt is not None and vt in vq:
            k = len(vq) - 1 - max(i for i, t in enumerate(vq) if t == vt)
            parts.append(f"vmcnt({k})"); del vq[:len(vq) - k]
        if dt is not None and dt in dq:
            k = len(dq) - 1 - max(i for i, t in enumerate(dq) if t == dt)
            k2 = min(k, 15)
            parts.append(f"lgkmcnt({k2})"); del dq[:len(dq) - k2]
        if parts: e("s_waitcnt " + " ".join(parts))
    def check(r):
        wait(vt=("P", r))
        e(f"""
L_chk{r}:
        v_cmp_ne_u32 vcc, s{sEP}, v{vP}
        s_cbranch_vccnz L_spin{r}
L_ok{r}:
        """)
    def stage_loads(r):
        T = [(("L", 8*r + i), oload(8*r + i)) for i in range(8)]
        if r < 3: T.insert(cfg.kp, (("P", r + 1), poll(r + 1)))
        return T
    if cfg.g2 == 0:
        lsync()
        ivm(("P", 0), poll(0))
        for H in range(7):
            for x in wrd(H): ids(H, x)
        check(0)
        stamp()
        for t, x in stage_loads(0): ivm(t, x)
    elif cfg.g2 == 2:
        vq.append(("P", 0))
        wait(vt=("P", 0))
        e(f"v_cmp_ne_u32 vcc, s{sEP}, v{vP}\ns_cbranch_vccnz L_pre")
        for t, x in stage_loads(0): ivm(t, x)
        lsync()
        for H in range(7):
            for x in wrd(H): ids(H, x)
        e("L_prej:")
        if cfg.sm != 2: stamp()
        v1, d1 = list(vq), list(dq)
        mark = len(L); vq[:] = []; dq[:] = []
        e("L_pre:")
        ivm(("P", 0), poll(0))
        lsync("b")
        vP2 = 250
        pl = [poll(0)] + [poll(0).replace(f"dword v{vP},", f"dword v{vP2+k},") for k in range(cfg.dq)]
        rg = [vP] + [vP2 + k for k in range(cfg.dq)]
        hs = [cfg.dqh] if cfg.dq == 1 else [4, 7]
        for H in range(7):
            for x in wrd(H): ids(H, x)
            if cfg.dq and H + 1 in hs:
                e("s_waitcnt lgkmcnt(0)\n" + pl[1 + hs.index(H + 1)])
        if cfg.dq:
            e("L_dq:")
            for k in range(cfg.dq + 1):
                e(f"s_waitcnt vmcnt({cfg.dq})\nv_cmp_ne_u32 vcc, s{sEP}, v{rg[k]}\ns_cbranch_vccz L_ok0\n{pl[k]}")
            e(f"s_sub_u32 s{sSP}, s{sSP}, 1\ns_cmp_lt_i32 s{sSP}, 0\ns_cbranch_scc0 L_dq\nL_ok0:")
            vq[:] = []
        else: check(0)
        for t, x in stage_loads(0): ivm(t, x)
        e("s_branch L_prej")
        assert vq == v1 and dq == d1
        pre_alt = L[mark:]; del L[mark:]
    else:
        vq.append(("P", 0))
        e("L_again:")
        check(0)
        if cfg.sm != 2: stamp()
        for t, x in stage_loads(0): ivm(t, x)
        lsync()
        for H in range(7):
            for x in wrd(H): ids(H, x)
    alts = []; dstub = []
    dpoll = f"buffer_load_dword v{vP}, v{vPO}, {srd(sWS)}, s{sDF} offen sc1"
    def dsig():
        k = len(dstub); st = f"buffer_store_dword v{vDV}, off, {srd(sWS)}, s{sDS}"
        ivm(("D",), f"s_cmp_eq_u32 s4, 0\ns_mov_b64 exec, 1\ns_cbranch_scc1 L_dst{k}\n{st} {cfg.ddf_flags}\nL_dsb{k}:\ns_mov_b64 exec, -1")
        dstub.append(f"L_dst{k}:\n{st} sc1\ns_branch L_dsb{k}")
    def heads(r, pending, per, alt=False):
        for i in range(8):
            H = 8*r + i
            wait(vt=("L", H), dt=H)
            for m in range(2):
                cc = "0" if H == 0 else vr(ACC+16*m, 16)
                e(f"v_mfma_f32_32x32x16_bf16 {vr(ACC+16*m,16)}, {vr(WF+8*i+4*m,4)}, {vr(OF+4*H,4)}, {cc}")
                if cfg.om and m == 0 and H == 8*cfg.om - 1 and not alt: dsig()
                if cfg.om and m == 1 and H == 24 + cfg.dp: ivm(("DP",), dpoll)
                if cfg.ht and m == 0 and i & 1:
                    c3 = "0" if H == 1 else f"v{vD+1}"
                    e(f"v_max3_u32 v{vD+1}, v{OF+4*H-4}, v{OF+4*H}, {c3}")
                if cfg.ht and m == 1 and H == 31:
                    e(f"v_cmp_eq_u32 vcc, -1, v{vD+1}\ns_cbranch_vccnz L_redo\nL_redox:")
                for _ in range(per[2*i + m]):
                    if pending:
                        t, x = pending.pop(0); ivm(t, x)
                if H + 7 < 32:
                    for x in (wrd(H + 7)[m:m+1] if cfg.tp else wrd(H + 7)[2*m:2*m+2]): ids(H + 7, x)
        assert not pending
    if cfg.g3:
        assert cfg.kp == 0
        for r in range(4):
            if r < 3:
                wait(vt=("P", r + 1))
                e(f"v_cmp_ne_u32 vcc, s{sEP}, v{vP}\ns_cbranch_vccnz L_alt{r}")
                v0, d0 = list(vq), list(dq)
                pend = stage_loads(r + 1)
                for _ in range(1 + (cfg.pe >> (4*r) & 15)):
                    t, x = pend.pop(0); ivm(t, x)
                heads(r, pend, [[1, 0]*8, [1, 1, 1, 0]*4, [1]*16][cfg.g3 - 1])
                e(f"L_join{r}:")
                if cfg.sm == 0 or (r == 2 and cfg.sm == 1): stamp()
                v1, d1 = list(vq), list(dq)
                mark = len(L)
                vq[:] = v0; dq[:] = d0
                e(f"L_alt{r}:")
                if cfg.stamps: e(f"s_sub_u32 s{sSP}, s{sSP}, {0x100 << (4*r)}")
                heads(r, [(("P", r + 1), poll(r + 1))], [0]*cfg.ap + [1]*16, True)
                check(r + 1)
                for t, x in stage_loads(r + 1): ivm(t, x)
                if r + 1 == cfg.om: dsig()
                e(f"s_branch L_join{r}")
                assert dq == d1 and vq[-len(v1):] == v1, (vq, v1)
                alts.append(L[mark:]); del L[mark:]
                vq[:] = v1
            else:
                heads(r, [], [0]*16)
    else:
        pending = []
        for H in range(32):
            r, i = H >> 3, H & 7
            if i == cfg.kp and r < 3:
                check(r + 1)
                if cfg.sm == 0 or r == 2: stamp()
                pending = stage_loads(r + 1)
                for _ in range(3):
                    t, x = pending.pop(0); ivm(t, x)
            wait(vt=("L", H), dt=H)
            for m in range(2):
                cc = "0" if H == 0 else vr(ACC+16*m, 16)
                e(f"v_mfma_f32_32x32x16_bf16 {vr(ACC+16*m,16)}, {vr(WF+8*i+4*m,4)}, {vr(OF+4*H,4)}, {cc}")
                if H + 7 < 32:
                    for x in (wrd(H + 7)[m:m+1] if cfg.tp else wrd(H + 7)[2*m:2*m+2]): ids(H + 7, x)
                for _ in range(2):
                    if pending:
                        t, x = pending.pop(0); ivm(t, x)
    stamp()
    cvt = lambda d, a: e(f"v_cvt_pk_bf16_f32 v{d}, v{a}, v{a+1}\nv_cvt_pk_bf16_f32 v{d+1}, v{a+2}, v{a+3}")
    for m in range(2):
        for qq in range(2):
            a = ACC + 16*m + 8*qq; d = 8*m + 4*qq
            cvt(d, a); cvt(d + 2, a + 4)
            e(f"ds_write_b128 v{vSW + 2*m + qq}, {vr(d,4)}")
        if cfg.om and cfg.dp == 8 + m: ivm(("DP",), dpoll)
    e("s_waitcnt lgkmcnt(0)")
    for it in range(4):
        e(f"ds_read_b128 {vr(16+4*it,4)}, v{vSR} offset:{1024*it}")
    if cfg.om:
        if cfg.dp == 10: ivm(("DP",), dpoll)
        e(f"""
        s_waitcnt vmcnt(0)
L_dchk:
        v_cmp_ne_u32 vcc, s{sEP}, v{vP}
        s_cbranch_vccnz L_dspin
L_dok:
        """)
    for it in range(4):
        e(f"s_waitcnt lgkmcnt({3-it})")
        if it > 0: e(f"s_add_u32 s{sOO}, s{sOO}, 32768")
        e(f"buffer_store_dwordx4 {vr(16+4*it,4)}, v{vOA}, {srd(sOUT)}, s{sOO} offen {cfg.out_flags}")
    e(f"""
    s_or_b32 s{sT+6}, s{sG}, s{sLW}
    s_cbranch_scc0 L_epoch
L_epochx:
    """)
    if cfg.diag:
        e("""
        s_memrealtime s[92:93]
L_dsp:
        s_memrealtime s[96:97]
        s_waitcnt lgkmcnt(0)
        s_sub_u32 s96, s96, s92
        s_cmp_lt_u32 s96, s3
        s_cbranch_scc1 L_dsp
        """)
    if cfg.stamps:
        e("s_waitcnt vmcnt(0)"); stamp()
    dump_stamps(nst[0], True)
    e("L_end:\ns_endpgm")
    for r in range(1 if cfg.dq and cfg.g2 == 2 else 0, 4):
        e(f"""
L_spin{r}:
        s_sub_u32 s{sSP}, s{sSP}, 1
        s_cmp_lt_i32 s{sSP}, 0
        s_cbranch_scc1 L_ok{r}
        {poll(r)}
        s_waitcnt vmcnt(0)
        s_branch L_chk{r}
        """)
    for al in alts: L.extend(al)
    if cfg.g2 == 2: L.extend(pre_alt)
    for x in dstub: e(x)
    if cfg.om:
        e(f"""
L_dspin:
        s_sub_u32 s{sSP}, s{sSP}, {0x80000 if cfg.stamps else 1}
        s_cmp_lt_i32 s{sSP}, 0
        s_cbranch_scc1 L_dok
        {dpoll}
        s_waitcnt vmcnt(0)
        s_branch L_dchk
        """)
    if cfg.ht:
        e(f"""
L_redo:
        s_sub_u32 s{sSP}, s{sSP}, {0x80000 if cfg.stamps else 64}
        s_cmp_lt_i32 s{sSP}, 0
        s_cbranch_scc1 L_redox
        {poll(0)}
        s_branch L_again
        """)
    e(f"""
L_epoch:
    s_lshl_b32 s{sT+6}, s{sRT}, 7
    s_add_u32 s{sT+6}, s{sT+6}, {WS_E}
    v_mov_b32 v{vD}, s{sEP}
    s_mov_b64 exec, 1
    buffer_store_dword v{vD}, off, {srd(sWS)}, s{sT+6}
    s_mov_b64 exec, -1
    s_branch L_epochx
    """)
    nst[0] = 1
    if cfg.ca: e(f".p2align {cfg.ca}")
    e("L_compute:")
    AQ = 0; AK = 32; AV = 68
    BUF = [104, 152]
    W15 = 200
    vB = 212; vB0 = 216; vONE = 220
    vXA = 224; vWA = 230; vHA = 233
    vSO, vFO, vFV = 235, 236, 237
    VP = 238
    vFA = 246
    pstubs = []
    def csync(F, pos, k):
        if not cfg.hf >> k & 1: return F
        rd = f"ds_read_b32 v{vFA+1}, v{vFA} offset:{4*k}"
        F[pos - cfg.fl] = (F[pos - cfg.fl] + "\n" + rd).strip()
        F[pos] = F[pos].replace("s_barrier", f"L_pb{k}:\ns_waitcnt lgkmcnt(0)\nv_cmp_gt_u32 vcc, 4, v{vFA+1}\n{rd}\ns_cbranch_vccnz L_pb{k}")
        return F
    def accQ(t): return AQ + 4*t
    def accK(t): return AK + 4*(t+1)
    def accV(t): return AV + 4*(t+1)
    sSC = 56; sMH = 58; sPM = 60; sDO = 12; sFO = 45; sS = 46
    e(f"""
    v_and_b32 v1, 15, v0
    v_lshrrev_b32 v2, 4, v0
    v_bfe_u32 v3, v0, 1, 3
    v_xor_b32 v3, v3, v2
    v_lshlrev_b32 v3, 4, v3
    v_lshl_add_u32 v3, v1, 7, v3
    {f"s_bfe_u32 s{sT}, s{sRT}, 0x10001" if cfg.hb else ""}
    {f"s_lshl_b32 s{sT}, s{sT}, 6" if cfg.hb else ""}
    {f"v_xor_b32 v3, s{sT}, v3" if cfg.hb else ""}
    v_add_u32 v{vXA}, {SLOT0}, v3
    v_xor_b32 v{vXA+1}, 64, v{vXA}
    v_add_u32 v{vXA+2}, {SLOTSZ}, v{vXA}
    v_add_u32 v{vXA+3}, {SLOTSZ}, v{vXA+1}
    v_add_u32 v{vXA+4}, {2*SLOTSZ}, v{vXA}
    v_add_u32 v{vXA+5}, {2*SLOTSZ}, v{vXA+1}
    v_and_b32 v3, 6, v0
    v_xor_b32 v3, v3, v2
    v_lshlrev_b32 v3, 4, v3
    {f"v_xor_b32 v3, s{sT}, v3" if cfg.hb else ""}
    v_and_b32 v4, 7, v0
    v_lshl_add_u32 v{vHA}, v4, 7, v3
    {"v_and_b32 v4, 8, v0" if cfg.hzero else ""}
    {"v_xor_b32 v4, 8, v4" if cfg.hzero else ""}
    {f"v_lshl_add_u32 v{vHA}, v4, 15, v{vHA}" if cfg.hzero else ""}
    v_xor_b32 v{vHA+1}, 64, v{vHA}
    v_bfe_u32 v3, v0, 3, 2
    v_xor_b32 v3, s{sWAVE}, v3
    v_lshlrev_b32 v3, 5, v3
    v_and_b32 v4, 3, v0
    v_lshl_add_u32 v3, v4, 3, v3
    v_bfe_u32 v4, v0, 2, 2
    v_lshl_add_u32 v3, v4, 7, v3
    v_mul_u32_u24 v4, 3072, v2
    v_add_u32 v3, v3, v4
    v_add_u32 v{vWA}, {SLOT0+16384}, v3
    v_add_u32 v{vWA+1}, {SLOT0+16384+SLOTSZ}, v3
    v_add_u32 v{vWA+2}, {SLOT0+16384+2*SLOTSZ}, v3
    v_lshlrev_b32 v3, 2, v2
    v_sub_u32 v3, v1, v3
    v_mov_b32 v5, 0xff800000
    s_cmp_eq_u32 s{sSEG}, 0
    s_cselect_b32 s{sT}, {f2u(-4e9)}, 0
    v_mov_b32 v6, s{sT}
    """)
    for r in range(4):
        e(f"""
        v_subrev_u32 v4, {r}, v3
        v_cmp_gt_i32 s[62:63], 0, v4
        v_and_b32 v4, 8, v4
        v_cmp_eq_u32 vcc, 0, v4
        v_cndmask_b32 v{vB0+r}, 0, v6, s[62:63]
        v_cndmask_b32 v{vB+r}, v5, 0, vcc
        v_cndmask_b32 v{vB0+r}, v5, v{vB0+r}, vcc
        v_mov_b32 v{vONE+r}, 0x3f803f80
        """)
    e(f"""
    v_lshlrev_b32 v{vSO}, 4, v0
    {f"v_cmp_lt_u32 vcc, 23, v0" if cfg.sk3 else ""}
    {f"v_cndmask_b32 v{vFO}, 0, 1, vcc" if cfg.sk3 else ""}
    {f"v_lshl_add_u32 v{vSO}, v{vFO}, 7, v{vSO}" if cfg.sk3 else ""}
    v_mov_b32 v{VP+2}, 0
    v_mov_b32 v{VP+4}, -1
    v_mov_b32 v{VP+5}, -1
    v_mov_b32 v{VP+6}, -1
    v_mov_b32 v{VP+7}, -1
    v_lshlrev_b32 v1, 6, v1
    v_lshl_add_u32 v{VP+3}, v2, 15, v1
    v_min_u32 v{vFO}, 1, v0
    {f"v_mov_b32 v{vFA}, 0x20000" if cfg.hf else ""}
    {f"v_mov_b32 v{vFA+1}, 0" if cfg.hf else ""}
    {f"v_lshl_add_u32 v1, v0, 2, v{vFA}" if cfg.hf else ""}
    {f"ds_write_b32 v1, v{vFA+1}" if cfg.hf else ""}
    v_lshlrev_b32 v{vFO}, 30, v{vFO}
    s_mov_b32 s{sSC}, {f2u(0.25*1.4426950408889634)}
    s_mov_b32 s{sMH}, 0xff00ff00
    s_mov_b32 s{sMH+1}, 0xff00ff00
    s_mov_b32 s{sPM}, 0
    s_mov_b32 s{sPM+1}, 0x00ff00ff
    s_and_b32 s{sS}, s{sG}, 3
    s_lshl_b32 s{sT}, s{sRT}, 7
    s_add_u32 s47, s{sT}, {WS_E}
    s_waitcnt lgkmcnt(0)
    s_load_dword s{sEP}, s[20:21], s47
    s_mov_b32 s{sWS}, s20
    s_mov_b32 s{sWS+1}, s21
    s_mov_b32 s{sWS+2}, 0x10000000
    s_mov_b32 s{sWS+3}, 0x20000
    s_lshl_b32 s47, s{sG}, 2
    s_add_u32 s62, s47, s{sT}
    s_add_u32 s62, s62, {WS_A}
    s_add_u32 s47, s47, s{sWAVE}
    s_add_u32 s47, s47, s{sT}
    s_lshl_b32 s{sDO}, s47, {11 if cfg.sk3 else 10}
    s_add_u32 s{sDO+1}, s{sDO}, {32768 << cfg.sk3}
    s_add_u32 s{sDO+2}, s{sDO}, {65536 << cfg.sk3}
    s_add_u32 s{sDO+3}, s{sDO}, {98304 << cfg.sk3}
    """)
    if cfg.om:
        e(f"""
        s_mov_b32 s{sOUT}, s16
        s_mov_b32 s{sOUT+1}, s17
        s_mov_b32 s{sOUT+2}, 0x400000
        s_mov_b32 s{sOUT+3}, 0x20000
        s_mov_b32 s16, s{sDO}
        s_lshl_b32 s17, s{sSEG}, 7
        s_and_b32 s47, s{sG}, 4
        s_add_u32 s17, s17, s47
        s_add_u32 s17, s17, s{sWAVE}
        s_lshl_b32 s17, s17, 1
        s_add_u32 s17, s17, s{sPAR}
        s_lshl_b32 s17, s17, 1
        s_add_u32 s17, s17, s{sBR}
        s_lshl_b32 s17, s17, 10
        """)
        for r in range(4):
            e(f"s_add_u32 s47, s{sS}, {r}\ns_and_b32 s47, s47, 3")
            if r < cfg.om: e(f"s_lshl_b32 s47, s47, 17\ns_add_u32 s47, s47, {32768*r}\ns_add_u32 s{sDO+r}, s47, s17")
            else: e(f"s_lshl_b32 s47, s47, 15\ns_add_u32 s{sDO+r}, s47, s16")
    e(f"""
    s_lshl_b32 s{sFO}, s{sRT}, 7
    s_and_b32 s47, s{sG}, 4
    s_add_u32 s{sFO}, s{sFO}, s47
    s_add_u32 s{sFO}, s{sFO}, s{sWAVE}
    s_lshl_b32 s{sFO}, s{sFO}, 2
    s_add_u32 s{sFO}, s{sFO}, {WS_FLAG}
    s_getreg_b32 s63, hwreg(HW_REG_XCC_ID, 0, 4)
    """)
    if cfg.rt:
        e(f"""
        v_lshlrev_b32 v1, {6 if cfg.rtn == 16 else 7}, v0
        v_bfrev_b32 v2, 2
        v_cmp_gt_u32 vcc, {cfg.rtn}, v0
        v_cndmask_b32 v234, v2, v1, vcc
        """)
    if cfg.ht and cfg.pf0 == -10:
        for q in range(4): e(f"buffer_store_dwordx4 {vr(VP+4,4)}, v{vSO}, {srd(sWS)}, s{sDO + q} offen {cfg.pf_flags}")
    if cfg.xap > 1:
        sh = {2: 5, 4: 4}[cfg.xap]
        e(f"v_lshrrev_b32 v1, {sh}, v0\nv_mov_b32 v2, v{VP+3}\nv_bfrev_b32 v3, 2")
        for k in range(cfg.xap):
            e(f"v_cmp_eq_u32 vcc, {k}, v1\nv_cndmask_b32 v{VP+3+k}, v3, v2, vcc")
    def tree(lab):
        e(f"""
        s_cmp_eq_u32 s{sS}, 1
        s_cbranch_scc1 {lab}1
        s_cmp_eq_u32 s{sS}, 2
        s_cbranch_scc1 {lab}2
        s_cmp_eq_u32 s{sS}, 3
        s_cbranch_scc1 {lab}3
        s_branch {lab}0
        """)
    e(f"""
    s_waitcnt vmcnt({4 if cfg.ht and cfg.pf0 == -10 else 0}) lgkmcnt(0)
    s_add_u32 s63, s63, s{sEP}
    s_add_u32 s63, s63, {K2}
    s_add_u32 s{sEP}, s{sEP}, {K1}
    v_mov_b32 v1, s63
    v_mov_b32 v{vFV}, s{sEP}
    s_cmp_eq_u32 s{sWAVE}, 0
    s_cbranch_scc0 L_noann
    buffer_store_dword v1, v{vFO}, {srd(sWS)}, s62 offen sc1
L_noann:
    """)
    if cfg.ht and cfg.pf0 == -11:
        for q in range(4): e(f"buffer_store_dwordx4 {vr(VP+4,4)}, v{vSO}, {srd(sWS)}, s{sDO + q} offen {cfg.pf_flags}")
    if cfg.warm and cfg.VS > 0:
        if cfg.wz: e("s_branch L_wz\nL_wzb:")
        tree("L_w")
        if cfg.sa: e(f".p2align {cfg.sa}")
        if cfg.so: e(f".fill {cfg.so // 4}, 4, 0xbf800000")
        e("L_wback:")
    def xreg(step, t): return BUF[step & 1] + 4*(t + 1)
    def wbase(step): return W15 if (step == cfg.R0 + 2) else BUF[step & 1] + 36
    def wreads(step):
        c, s = step >> 1, step & 1
        R = []
        for p in (1, 2, 0):
            for j in range(2):
                d = wbase(step) + 4*p + 2*j
                R.append(f"ds_read_b64_tr_b16 v[{d}:{d+1}], v{vWA + c % 3} offset:{s*12288 + p*1024 + j*512}")
        return R
    def xread(step, t):
        c, s = step >> 1, step & 1
        d = xreg(step, t)
        if t < 0: return f"ds_read_b128 v[{d}:{d+3}], v{vHA+s} offset:{c*1024}"
        return f"ds_read_b128 v[{d}:{d+3}], v{vXA+2*(c % 3)+s} offset:{t*2048}"
    def reads(step): return wreads(step) + [xread(step, t) for t in range(-1, 8)]
    def mf(step, t, j):
        a = (accQ, accK, accV)[j](t); w = vr(wbase(step) + 4*j, 4); x = vr(xreg(step, t), 4)
        c = "0" if step == 0 else vr(a, 4)
        ops = f"{x}, {w}" if j == 2 else f"{w}, {x}"
        return f"v_mfma_f32_16x16x32_bf16 {vr(a,4)}, {ops}, {c}"
    def mfmas(step):
        if cfg.order == 3:
            M = [mf(step, -1, 1)]
            for t in range(8):
                M += [mf(step, t, 1), mf(step, t, 0)] if t % 2 == 0 else [mf(step, t, 0), mf(step, t, 1)]
            M += [mf(step, t, 2) for t in range(-1, 8)]
        else:
            M = []
            for t in range(-1, 8):
                M += [mf(step, t, 1), mf(step, t, 2)] + ([mf(step, t, 0)] if t >= 0 else [])
        return M
    def kstep(step):
        e("s_waitcnt lgkmcnt(0)")
        if cfg.cs >= 0 and cfg.cs <= step < cfg.cs + 4: stamp()
        late_b = cfg.bp and step & 1 and step < 15 and cfg.bpm >> step & 1
        if step & 1 and step < 15 and not late_b:
            e("s_barrier")
            if step in (7,): stamp()
        if step == 12 and not cfg.late:
            e(f"v_cmp_ne_u32 vcc, 0, v{VP}")
        M = mfmas(step); F = reads(step + 1)
        if step == 11 and not cfg.late:
            F = F + [f"v_mov_b32 v{VP+1}, 0", f"ds_read_b32 v{VP}, v{VP+1}"]
        if cfg.ht and cfg.pfi >= 0 and step == cfg.pf0:
            F = F + [""] * (cfg.pfi - len(F))
            for q in range(4):
                F = F + [f"buffer_store_dwordx4 {vr(VP+4,4)}, v{vSO}, {srd(sWS)}, s{sDO + q} offen {cfg.pf_flags}", ""]
            assert len(F) <= 27
        if cfg.ht and cfg.pfi < 0 and cfg.pf0 <= step < cfg.pf0 + 4:
            F = F + [f"buffer_store_dwordx4 {vr(VP+4,4)}, v{vSO}, {srd(sWS)}, s{sDO + step - cfg.pf0} offen {cfg.pf_flags}"]
        if cfg.xa >= 0:
            at = lambda k: f"buffer_atomic_or v{VP+2}, v{VP+3+k}, {srd(sWS)}, s{sDO} offen {cfg.xa_flags}"
            if cfg.xap > 1:
                for k in range(cfg.xap):
                    if step == cfg.xa + k * cfg.xas: F = F + [at(k)]
            elif cfg.xas == 0:
                if step == cfg.xa: F = F + [at(0)]
            else:
                for w in range(4):
                    if step == cfg.xa + w * cfg.xas:
                        F = F + [f"s_cmp_eq_u32 s{sWAVE}, {w}", f"s_cbranch_scc0 L_xa{w}\n{at(0)}\nL_xa{w}:"]
        if not step & 1 and step >> 1 < cfg.hb:
            assert len(F) == 15 and cfg.bq >= 10
            F = F[6:] + [""] * (cfg.bq - 10) + ["s_barrier"] + ["\n".join(F[k:k+cfg.rp]) for k in range(0, 6, cfg.rp)]
            F = csync(F, cfg.bq - 1, step + 1)
        if late_b:
            F = [""] * (cfg.bp - 1) + ["s_barrier" + ("\n" + stamp_text() if cfg.stamps and (step == 7 if cfg.cs < 0 else cfg.cs <= step < cfg.cs + 4) else "")] + ["\n".join(F[k:k+cfg.rp]) for k in range(0, len(F), cfg.rp)]
            assert len(F) <= len(M)
            F = csync(F, cfg.bp - 1, step + 1)
        for i, m in enumerate(M):
            e(m)
            if i < len(F): e(F[i])
    def Vp(t): return VP + 2*(7 - t)
    def region(s):
        dstores = []
        stubs = []
        R0 = cfg.R0
        units = []
        first = 2*s - 1
        units.append((0, first, (1, 2)))
        for r in range(4):
            q = (r + s) & 3
            if q == 0 and s != 0: units.append((r, -1, (1, 2)))
            a, b = 2*q, 2*q + 1
            units.append((r, a, (1, 0, 2)))
            units.append((r, b, (0,) if b == first else (1, 0, 2)))
        I = []
        seen = set()
        for step in range(R0, 16):
            if step > R0:
                for k, x in enumerate(wreads(step)): I.append(Item(x, (-2, step, k)))
                tl = []
                for u, (r, t, js) in enumerate(units):
                    if t not in tl:
                        tl.append(t); I.append(Item(xread(step, t), (-1, u, step)))
            for u, (r, t, js) in enumerate(units):
                for k, j in enumerate(js):
                    rr = 0 if (js == (0,) and step + 2 <= 15) else r
                    I.append(Item(mf(step, t, j), (rr, 0, 0 if rr != r else u, step, k), tag=(f"g{r}" if step == 15 and u == len(units) - 1 and j == js[-1] else None)))
        if cfg.late:
            I.append(Item(f"v_mov_b32 v{vXA}, 0", (-3, 0)))
            I.append(Item(f"ds_read_b32 v{vXA+1}, v{vXA}", (-1, 99)))
            I.append(Item(f"v_cmp_ne_u32 vcc, 0, v{vXA+1}", (0, 0)))
        cv = lambda d, a, n: f"v_cvt_pk_bf16_f32 v{d}, v{a+2*n}, v{a+2*n+1}"
        kdone = set()
        prev_store = None; prev_flag = None
        for r in range(4):
            q = (r + s) & 3
            a, b = 2*q, 2*q + 1
            n = [0]
            def add(text, **kw):
                n[0] += 1
                it = Item(text, (r, 1, n[0]), **kw); I.append(it); return it
            for t in (a - 1, a, b):
                if t not in kdone:
                    kdone.add(t)
                    add(cv(accK(t), accK(t), 0)); add(cv(accK(t) + 1, accK(t), 1))
                    add(cv(Vp(t), accV(t), 0)); add(cv(Vp(t) + 1, accV(t), 1))
            XE = lambda t: BUF[0] + 4*(t + 1)
            XO = lambda t: BUF[1] + 4*(t + 1)
            for t in (a, b):
                Q = accQ(t)
                for k in range(2): add(f"v_cndmask_b32 v{accK(t)+2+k}, v{accK(t)+k}, v{accK(t-1)+k}, s[{sMH}:{sMH+1}]")
                add(cv(Q, Q, 0)); add(cv(Q + 1, Q, 1))
                for k in range(2): add(f"v_cndmask_b32 v{Q+2+k}, v{Q+k}, 0, s[{sMH}:{sMH+1}]")
                for k in range(2): add(f"v_cndmask_b32 v{Q+k}, 0, v{Q+k}, s[{sMH}:{sMH+1}]")
                add(f"v_mfma_f32_16x16x32_bf16 {vr(XE(t),4)}, {vr(accK(t),4)}, {vr(Q,4)}, {vr(vB0 if t == 0 else vB,4)}")
            for t in (a, b):
                S = XE(t)
                add(f"v_max3_f32 v{XO(t)}, v{S}, v{S+1}, v{S+2}")
                add(f"v_max_f32 v{XO(t)}, v{XO(t)}, v{S+3}")
            ma, mb = XO(a), XO(b)
            add(f"v_permlane32_swap_b32 v{ma}, v{mb}")
            add(f"v_max_f32 v{ma+1}, v{ma}, v{mb}")
            add(f"v_max_f32 v{ma}, v{ma}, v{mb}")
            add(f"v_permlane16_swap_b32 v{ma}, v{ma+1}")
            add(f"v_max_f32 v{ma}, v{ma}, v{ma+1}")
            add(f"v_mul_f32 v{mb}, s{sSC}, -v{ma}")
            add(f"v_mul_f32 v{ma}, s{sSC}, -v{ma}")
            add(f"v_permlane32_swap_b32 v{ma}, v{mb}")
            for t in (a, b):
                S = XE(t); P = accQ(t)
                for k in range(4): add(f"v_fma_f32 v{S+k}, v{S+k}, s{sSC}, v{XO(t)}")
                for k in range(4): add(f"v_exp_f32 v{S+k}, v{S+k}")
                add(cv(P, S, 0)); add(cv(P + 1, S, 1))
                for k in range(2): add(f"v_cndmask_b32 v{P+2+k}, 0, v{P+k}, s[{sPM}:{sPM+1}]")
                for k in range(2): add(f"v_cndmask_b32 v{P+k}, v{P+k}, 0, s[{sPM}:{sPM+1}]")
                add(f"v_mfma_f32_16x16x32_bf16 {vr(XO(t),4)}, {vr(vONE,4)}, {vr(P,4)}, 0")
                add(f"v_mfma_f32_16x16x32_bf16 {vr(accV(t),4)}, {vr(Vp(t),4)}, {vr(P,4)}, 0")
            OP = XE(a)
            for t in (a, b):
                O = accV(t)
                add(f"v_rcp_f32 v{XO(t)}, v{XO(t)}")
                for k in range(4): add(f"v_mul_f32 v{O+k}, v{O+k}, v{XO(t)}")
                add(cv(OP + 2*(t - a), O, 0)); add(cv(OP + 2*(t - a) + 1, O, 1))
            add(f"v_permlane16_swap_b32 v{OP}, v{OP+2}")
            add(f"v_permlane16_swap_b32 v{OP+1}, v{OP+3}")
            st = f"buffer_store_dwordx4 {vr(OP,4)}, v{vSO}, {srd(sWS)}, s{sDO+q} offen"
            if cfg.om: st = f"buffer_store_dwordx4 {vr(OP,4)}, v{vSO}, {srd(sOUT if r < cfg.om else sWS)}, s{sDO+r} offen"
            fl = f"buffer_store_dword v{vFV}, v{vFO}, {srd(sWS)}, s{sFO} offen offset:{q*128 + r*32}"
            sx = ("\n" + stamp_text()) if cfg.stamps and cfg.cs < 0 else ""
            if cfg.ht:
                add(f"v_min_u32 v{OP}, -2, v{OP}")
                t1, t2 = (f"{st} {cfg.fast_flags}", f"{fl} {cfg.ffl_flags}")
                if cfg.hbad: t1, t2 = t2 + "\n" + "s_nop 15\n" * cfg.hbad, t1
                w0 = "s_waitcnt vmcnt(0)\n" if r == 0 else ""
                store = add(f"{w0}s_cbranch_vccz L_ss{s}{r}\n{t1}\n{t2}\nL_sb{s}{r}:{sx}", tag=f"st{r}", urgent=True,
                            after=[(prev_store, 0)] if prev_store else None)
                stubs.append(f"L_ss{s}{r}:\n{st} sc1\ns_waitcnt vmcnt(0)\n{fl} sc1\ns_branch L_sb{s}{r}")
                if r == cfg.b8 or r == cfg.b9: add("s_barrier", after=[(store, 0)], urgent=True)
                prev_store = store
                continue
            dstores.append(st)
            if cfg.scm >> r & 1:
                store = add(f"{st} sc1{sx}", tag=f"st{r}", urgent=True, after=[(prev_store, 0)] if prev_store else None)
            else:
                store = add(f"s_cbranch_vccz L_ss{s}{r}\n{st} {cfg.fast_flags}\nL_sb{s}{r}:{sx}", tag=f"st{r}", urgent=True,
                            after=[(prev_store, 0)] if prev_store else None)
                stubs.append(f"L_ss{s}{r}:\n{st} sc1\ns_branch L_sb{s}{r}")
            if r == cfg.b8 or r == cfg.b9: add("s_barrier", after=[(store, 0)], urgent=True)
            tch = f"buffer_load_dword v{OP}, v234, {srd(sWS)}, s{sDO+q} offen {cfg.rt_flags}"
            if cfg.rt >> r & 1 and cfg.rtp == 0:
                prev_flag = add(tch, tag=f"tc{r}", urgent=True, waitvm=store, after=[(store, cfg.LF)] + ([(prev_flag, 0)] if prev_flag else []))
            flag = add(f"s_cbranch_vccz L_fs{s}{r}\n{fl} {cfg.ffl_flags}\nL_fb{s}{r}:", tag=f"fl{r}", urgent=True, waitvm=None if cfg.rt >> r & 1 and cfg.rtp == 0 else store,
                       after=[(store, cfg.LF)] + ([(prev_flag, 0)] if prev_flag else []))
            if cfg.rt >> r & 1 and cfg.rtp == 1:
                flag = add(tch, tag=f"tc{r}", urgent=True, after=[(flag, 0)])
            stubs.append(f"L_fs{s}{r}:\n{fl} sc1\ns_branch L_fb{s}{r}")
            prev_store = store; prev_flag = flag
        e("s_waitcnt lgkmcnt(0)")
        if R0 & 1 and R0 < 15: e("s_barrier")
        stamp()
        if cfg.prio: e(f"s_setprio {cfg.prio}")
        out, t = schedule(I, mfma_first=bool(cfg.mf), ds_lat=cfg.dslat, verbose=cfg.verbose)
        for x in out: e(x)
        if cfg.ds:
            if cfg.wbw: e("s_waitcnt vmcnt(0)")
            for r, x in enumerate(dstores):
                if cfg.ds >> r & 1: e(f"{x} {cfg.ds_flags}")
        if cfg.wb:
            if cfg.wb == 1: e(f"s_cmp_lg_u32 s{sWAVE}, 0")
            if cfg.wb == 2: e(f"s_or_b32 s{sT+6}, s{sWAVE}, s{sG}")
            if cfg.wb == 4: e(f"s_and_b32 s{sT+6}, s{sRT}, 3\ns_or_b32 s{sT+6}, s{sT+6}, s{sWAVE}\ns_or_b32 s{sT+6}, s{sT+6}, s{sG}")
            if cfg.wb != 3: e(f"s_cbranch_scc1 L_wb{s}")
            if cfg.wbw: e("s_waitcnt vmcnt(0)")
            e(f"buffer_wbl2 sc1\nL_wb{s}:")
        return stubs
    stamp()
    if cfg.VS > 0:
        e("s_barrier")
        stamp()
        for x in reads(0): e(x)
        for step in range(cfg.VS): kstep(step)
    tree("L_v")
    for x in pstubs: e(x)
    if cfg.wz: e("L_wz:\ns_branch L_wzb")
    n0 = nst[0]
    for s in range(4):
        nst[0] = n0
        e(f".p2align {cfg.pa}\nL_w{s}:")
        e("s_branch L_wback\ns_nop 0" if cfg.warm and cfg.VS > 0 else "s_nop 0\ns_nop 0")
        e(f"L_v{s}:")
        if cfg.VS == 0:
            e("s_barrier")
            stamp()
            for x in reads(0): e(x)
        for step in range(cfg.VS, cfg.R0): kstep(step)
        stubs = region(s)
        stamp()
        dump_stamps(nst[0])
        e("s_endpgm")
        for x in stubs: e(x)
        e(f"L_ve{s}:")
    if cfg.ka: e(f".p2align {cfg.ka}")
    body, added = hz.fix("\n".join(L))
    return body, added

def finish(body, VSZ):
    K = NAME + "_kernel"
    for s in range(4):
        body = body.replace(f"L_ve{s}:", f"L_ve{s}:\n.fill ({VSZ}-(L_ve{s}-L_w{s}))/4, 4, 0xbf800000")
    s = HDR.format(launch="; @launch grid=(256,1,1) block=(512,1,1) lds=163840") + kernel_head(K) + body + "\n"
    s += ".fill 64, 4, 0xbf800000\n"
    s += kernel_desc(K, 256, 256, 102)
    return s

def build(cfg):
    import subprocess, re, os
    body, added = gen(cfg)
    tmp = f"g3_{os.getpid()}"
    open(tmp + ".s", "w").write(finish(body, 0).replace(".fill (0-", ".fill 0*(0-"))
    subprocess.run(["clang", "-x", "assembler", "-target", "amdgcn-amd-amdhsa", "-mcpu=gfx950", "-c", tmp + ".s", "-o", tmp + ".o"], check=True)
    sy = subprocess.run(["llvm-objdump", "-t", tmp + ".o"], capture_output=True, text=True).stdout
    A = {l.split()[-1]: int(l.split()[0], 16) for l in sy.strip().split("\n") if re.match(r"^[0-9a-f]{16} ", l)}
    sz = max(A[f"L_ve{s}"] - A[f"L_w{s}"] for s in range(4))
    sz = (sz + 63) // 64 * 64
    return finish(body, sz), added, (A["L_compute"], A["L_w0"], sz)

if __name__ == "__main__":
    kw = {}
    for a in sys.argv[2:]:
        k, v = a.split("=")
        if k == "tabs":
            for nm, t in zip(("tabA", "tabB", "tabC", "tabD"), v.split(",")):
                assert sorted(t) == list("01234567"); kw[nm] = int(t[::-1], 16)
            continue
        kw[k] = v.replace("+", " ") if k.endswith("flags") or k.startswith("dma_") else int(v, 0)
    s, added, info = build(Cfg(**kw))
    open(sys.argv[1], "w").write(s)
    print("nops added", added, "sizes", info)
```

```python
import sys, struct
from asmlib import *
import hz
from sched import Item, schedule

def f2u(f): return struct.unpack("<I", struct.pack("<f", f))[0]

class Cfg:
    stamps = 0
    fast_flags = "nt"
    ffl_flags = ""
    ld_flags = "sc1"
    pt_flags = "sc1"
    out_flags = "nt"
    dma_x = ""
    dma_w = ""
    order = 3
    hzero = 1
    tabA = 0x67452310
    tabB = 0x75634021
    R0 = 13
    VS = 13
    warm = 1
    LF = 600
    prio = 3
    lprio = 0
    nofast = 0
    kp = 0
    xwA = 0
    xwB = 0
    xoA = 0
    xoB = 0
    nw = 8
    ac = 5
    b8 = -1
    wsh = 1
    diag = 0
    di = -1
    dc = -1
    dm = 4
    ht = 0
    pf0 = 2
    pf_flags = 'nt'
    pfi = -1
    hbad = 0
    nw1 = 0
    b9 = -1
    g3 = 2
    ap = 4
    lk = 10
    g2 = 2
    lp2 = 0
    nw0 = 8
    xa = -1
    xas = 0
    xap = 1
    xa_flags = ''
    sm = 0
    su = -1
    late = 1
    mf = 1
    dslat = 128
    verbose = 0
    bp = 10
    rp = 2
    bpm = 0xffff
    tp = 0
    dup = 0
    sk3 = 0
    hp = 0
    hpp = 0
    hp0 = 0
    wx = 0
    nocp = 0
    noann = 0
    gx = 0
    xr = 0x4040
    rt = 0
    rtn = 16
    rtp = 0
    rt_flags = 'sc1'
    ptm = 15
    sw = 1
    tabC = -1
    tabD = -1
    e2 = 0
    om = 0
    dp = 4
    ddf_flags = ''
    scm = 15
    ds = 0
    ds_flags = 'sc1'
    wb = 0
    wbw = 1
    cs = -1
    hb = 0
    bq = 14
    ao = 0
    hf = 0
    fl = 4
    pw = 0
    tl = 0
    pc = 2
    dj = 0
    iw = 0
    ic = 1
    tm = 0xfc
    dq = 0
    dqh = 7
    pe = 0
    pp = 0
    wz = 0
    pa = 12
    ko = 0
    ka = 12
    sa = 0
    ca = 0
    so = 0
    def __init__(self, **kw):
        for k, v in kw.items():
            assert hasattr(self, k), k
            setattr(self, k, v)

HALO = 0; SLOT0 = 8192; SLOTSZ = 40960; WO_L = 98304; STAGE = 8192
WS_FLAG = 8 << 20; WS_E = WS_FLAG + 65536; WS_A = WS_FLAG + 131072; WS_STAMP = 16 << 20; WS_D = WS_FLAG + 196608
K1 = 0x9e3779b9; K2 = 0x51ed270b
sX, sW, sWO, sOUT, sWS = 24, 28, 32, 36, 40
sEP = 44
sWAVE, sRT, sG, sBR, sPAR, sSEG, sCLS = 48, 49, 50, 51, 52, 53, 54
sT = 55
sST = 64
NST = 12
def srd(r): return f"s[{r}:{r+3}]"
def vr(a, n): return f"v[{a}:{a+n-1}]" if n > 1 else f"v{a}"

def gen(cfg):
    K = NAME + "_kernel"
    L = []
    def e(s):
        for ln in s.strip("\n").split("\n"):
            if ln.strip(): L.append(ln.strip() if ln.strip().endswith(":") else "    " + ln.strip())
    nst = [0]
    def stamp_text():
        i = nst[0]; nst[0] += 1
        assert i < NST
        return f"{'s_memrealtime' if cfg.stamps == 2 else 's_memtime'} s[{sST+2*i}:{sST+2*i+1}]"
    def stamp():
        if cfg.stamps: e(stamp_text())
    dcount = [0]
    def dump_stamps(n, ld=False):
        if not cfg.stamps: return
        if cfg.di >= 0 or cfg.dc >= 0:
            i = cfg.di if ld else cfg.dc
            if i < 0: return
            dcount[0] += 1
            e(f"""
            s_waitcnt vmcnt(0) lgkmcnt(0)
            s_sub_u32 s92, s{sST+2*i}, s{sST}
            s_mul_i32 s92, s92, {cfg.dm}
            s_min_u32 s92, s92, 40000
            s_add_u32 s92, s92, 4000
L_dd{dcount[0]}:
            s_memrealtime s[96:97]
            s_waitcnt lgkmcnt(0)
            s_sub_u32 s96, s96, s{sST}
            s_cmp_lt_u32 s96, s92
            s_cbranch_scc1 L_dd{dcount[0]}
            """)
            return
        e("s_memrealtime s[96:97]\ns_waitcnt lgkmcnt(0)")
        e("v_mov_b32 v16, s98\nv_mov_b32 v17, s96")
        e(f"s_getreg_b32 s{sT}, hwreg(HW_REG_XCC_ID, 0, 4)\nv_mov_b32 v18, s{sT}")
        for i in range(1, 14):
            if i < n:
                e(f"s_sub_u32 s{sT}, s{sST+2*i}, s{sST}\nv_mov_b32 v{18+i}, s{sT}")
            elif i == 13 and ld:
                e(f"s_sub_u32 s{sT}, 0x10000000, s47\nv_mov_b32 v{18+i}, s{sT}")
            else:
                e(f"v_mov_b32 v{18+i}, 0")
        e(f"""s_lshl_b32 s{sT}, s2, 3
        s_add_u32 s{sT}, s{sT}, s{sWAVE}
        s_lshl_b32 s{sT}, s{sT}, 6
        s_add_u32 s{sT}, s{sT}, {WS_STAMP}
        s_mov_b64 exec, 1
        v_mov_b32 v1, 0""")
        for i in range(4):
            e(f"buffer_store_dwordx4 v[{16+4*i}:{19+4*i}], v1, {srd(sWS)}, s{sT} offen offset:{16*i}")
        e("s_waitcnt vmcnt(0)")

    stamp()
    if cfg.stamps: e("s_memrealtime s[98:99]")
    e(f"""
    s_cmp_ge_u32 s2, 256
    s_cbranch_scc1 L_end
    s_load_dwordx16 s[4:19], s[0:1], 0
    s_load_dwordx2 s[20:21], s[0:1], 64
    s_getpc_b64 s[22:23]
L_pc:
    s_bfe_u32 s{sT+2}, s2, 0x20003
    {f's_xor_b32 s{sT+2}, s{sT+2}, {cfg.gx & 3}' if cfg.gx & 3 else ''}
    s_mul_i32 s{sT+2}, s{sT+2}, L_w1-L_w0
    v_lshlrev_b32 v1, 6, v0
    v_min_u32 v1, L_w1-L_pc, v1
    v_mov_b32 v2, s{sT+2}
    v_cmp_lt_u32 vcc, L_w0-L_pc, v1
    v_lshrrev_b32 v3, 6, v0
    s_and_b32 s{sT}, s2, 7
    v_cndmask_b32 v2, 0, v2, vcc
    v_add_u32 v1, v1, v2
    {'' if cfg.nocp else 'global_load_dword v255, v1, s[22:23]'}
    s_lshr_b32 s{sT+1}, s2, 3
    v_readfirstlane_b32 s{sWAVE}, v3
    {f"s_nop 0" if 0 else ""}
    v_and_b32 v0, 63, v0
    s_lshr_b32 s{sRT}, s{sT+1}, 3
    s_lshl_b32 s{sT}, s{sT}, 2
    s_add_u32 s{sRT}, s{sRT}, s{sT}
    s_and_b32 s{sG}, s{sT+1}, 7
    {f"s_xor_b32 s{sG}, s{sG}, {cfg.gx}" if cfg.gx else ""}
    s_lshr_b32 s{sBR}, s{sRT}, 4
    s_bfe_u32 s{sPAR}, s{sRT}, 0x10003
    s_and_b32 s{sSEG}, s{sRT}, 7
    {f"s_xor_b32 s{sWAVE}, s{sWAVE}, 4" if cfg.sw else ""}
    s_cmp_ge_u32 s{sWAVE}, 4
    s_cbranch_scc0 L_compute
    """)
    sLW, sXB, sWB, sKO, sWOFF, sHOFF = sT, sT+1, sT+2, sT+3, sT+4, sT+5
    vX, vW, vH = 8, 12, 14
    sMX, sMW, sA, sB, sHM = 88, 92, 94, 95, 100
    if cfg.lprio: e(f"s_setprio {cfg.lprio}")
    if cfg.tabC >= 0:
        e(f"""
        s_add_u32 s{sA}, s{sRT}, s{sG}
        s_bitcmp0_b32 s{sA}, 0
        s_mov_b32 s{sCLS}, {cfg.tabA}
        s_cselect_b32 s{sCLS}, s{sCLS}, {cfg.tabB}
        s_mov_b32 s{sB}, {cfg.tabC}
        s_cselect_b32 s{sB}, s{sB}, {cfg.tabD}
        s_bitcmp0_b32 s{sA}, 1
        s_cselect_b32 s{sCLS}, s{sCLS}, s{sB}
        """)
    else:
        e(f"""
        s_add_u32 s{sCLS}, s{sRT}, s{sG}
        s_and_b32 s{sCLS}, s{sCLS}, 1
        s_cmp_eq_u32 s{sCLS}, 0
        s_mov_b32 s{sCLS}, {cfg.tabA}
        s_cselect_b32 s{sCLS}, s{sCLS}, {cfg.tabB}
        """)
    if cfg.xr:
        e(f"""
        s_and_b32 s{sA}, s{sRT}, 12
        s_lshr_b32 s{sA}, {cfg.xr & 0xffff}, s{sA}
        s_and_b32 s{sA}, s{sA}, 7
        s_mul_i32 s{sA}, s{sA}, 0x11111111
        {"s_xor_b32" if cfg.xr < 0x10000 else "s_add_u32"} s{sCLS}, s{sCLS}, s{sA}
        """)
    e(f"""
    s_lshr_b32 s{sA}, s{sG}, 1
    s_bfe_u32 s{sB}, s{sRT}, 0x10001
    s_sub_u32 s{sLW}, s{sWAVE}, 4
    v_lshrrev_b32 v3, 3, v0
    v_and_b32 v4, 7, v0
    v_lshrrev_b32 v5, 4, v0
    v_xor_b32 v6, v4, v5
    v_lshlrev_b32 v6, 4, v6
    v_lshl_add_u32 v6, v3, 11, v6
    s_lshl_b32 s{sT+6}, s{sSEG}, 18
    s_lshl_b32 s{sT+7}, s{sPAR}, 10
    s_add_u32 s{sT+6}, s{sT+6}, s{sT+7}
    s_sub_u32 s{sHOFF}, s{sT+6}, 16384
    s_cmp_eq_u32 s{sSEG}, 0
    s_cselect_b32 s{sHOFF}, 0x40000000, s{sHOFF}
    s_lshl_b32 s{sT+7}, s{sLW}, 16
    s_add_u32 s{sT+6}, s{sT+6}, s{sT+7}
    s_lshl_b32 s{sXB}, s{sLW}, 12
    """)
    def xset(j, k, t7, t6, v):
        return f"""
        s_add_u32 s{k}, s{sA}, {j}
        s_and_b32 s{k}, s{k}, 3
        s_lshl_b32 s{sMX+j}, s{k}, 10
        s_add_u32 s{sMX+j}, s{sMX+j}, s{sXB}
        s_and_b32 s{t7}, s{k}, 1
        s_lshl_b32 s{t7}, s{t7}, 6
        s_lshl_b32 s{k}, s{k}, 14
        s_add_u32 s{k}, s{k}, s{t6}
        v_xor_b32 v{vX+j}, s{t7}, v{v}
        v_add_u32 v{vX+j}, s{k}, v{vX+j}
        """
    late_x = []
    for j in range(4):
        if j >= 4 - cfg.dj: late_x.append(xset(j, 96, 97, 3, 17))
        else: e(xset(j, sKO, sT+7, sT+6, 6))
    if cfg.dj:
        assert not cfg.om and not cfg.diag and not cfg.hb
        e(f"s_mov_b32 s3, s{sT+6}\nv_mov_b32 v17, v6")
    e(f"""
    v_lshlrev_b32 v7, 1, v5
    v_xor_b32 v6, v4, v7
    v_lshlrev_b32 v6, 4, v6
    v_lshl_add_u32 v6, v3, 11, v6
    v_add_u32 v{vH}, s{sHOFF}, v6
    v_and_b32 v7, 2, v7
    v_xor_b32 v7, v7, v4
    v_lshlrev_b32 v7, 4, v7
    v_mul_u32_u24 v6, 3072, v3
    v_add_u32 v7, v7, v6
    s_mul_i32 s{sT+6}, s{sLW}, {24576 if cfg.hb else 49152}
    s_lshl_b32 s{sT+7}, s{sG}, 7
    {f"s_xor_b32 s{sT+7}, s{sT+7}, {cfg.wx*128}" if cfg.wx else ""}
    s_add_u32 s{sT+6}, s{sT+6}, s{sT+7}
    s_mul_i32 s{sWB}, s{sLW}, {3072 if cfg.hb else 6144}
    """)
    if cfg.hb:
        e(f"""
        s_and_b32 s{sT+7}, s{sLW}, 1
        s_lshl_b32 s{sT+7}, s{sT+7}, 6
        v_xor_b32 v7, s{sT+7}, v7
        s_mul_i32 s{sKO}, s{sB}, 98304
        s_add_u32 s{sT+7}, s{sKO}, s{sT+6}
        v_add_u32 v{vW}, s{sT+7}, v7
        s_sub_u32 s{sKO}, 98304, s{sKO}
        s_add_u32 s{sT+7}, s{sKO}, s{sT+6}
        v_add_u32 v{vW+1}, s{sT+7}, v7
        s_mov_b32 s{sMW}, s{sWB}
        s_add_u32 s{sMW+1}, s{sWB}, 12288
        """)
    for m in range(0 if cfg.hb else 2):
        e(f"""
        s_xor_b32 s{sKO}, s{sB}, {m}
        s_mul_i32 s{sMW+m}, s{sKO}, 3072
        s_add_u32 s{sMW+m}, s{sMW+m}, s{sWB}
        s_lshl_b32 s{sT+7}, s{sKO}, 6
        s_mul_i32 s{sKO}, s{sKO}, 24576
        s_add_u32 s{sKO}, s{sKO}, s{sT+6}
        v_xor_b32 v{vW+m}, s{sT+7}, v7
        v_add_u32 v{vW+m}, s{sKO}, v{vW+m}
        """)
    if cfg.hp:
        nl = -(-192 * cfg.hp // 112)
        e(f"""
        s_and_b32 s{sT+6}, s{sRT}, 3
        s_mul_i32 s{sT+6}, s{sT+6}, 7
        s_add_u32 s{sT+6}, s{sT+6}, s{sG}
        s_cmp_gt_u32 s{sG}, 3
        s_subb_u32 s{sT+6}, s{sT+6}, 0
        s_lshl_b32 s{sT+6}, s{sT+6}, 2
        s_add_u32 s{sT+6}, s{sT+6}, s{sLW}
        s_cmp_eq_u32 s{sG}, 3
        s_cselect_b32 s{sT+6}, 0x10000, s{sT+6}
        v_mul_u32_u24 v21, 112, v0
        v_add_u32 v21, s{sT+6}, v21
        v_cmp_gt_u32 vcc, {192 * cfg.hp}, v21
        s_and_b32 s{sT+7}, s{sRT}, 12
        s_lshr_b32 s{sT+7}, {cfg.xr & 0xffff}, s{sT+7}
        s_and_b32 s{sT+7}, s{sT+7}, 7
        s_add_u32 s{sT+7}, s{sT+7}, {cfg.hp0}
        s_mul_i32 s{sT+7}, s{sT+7}, 192
        v_add_u32 v21, s{sT+7}, v21
        v_subrev_u32 v22, 1536, v21
        v_min_u32 v21, v21, v22
        v_lshl_add_u32 v21, v21, 10, 0
        v_add_u32 v21, 384, v21
        v_bfrev_b32 v22, 2
        v_cndmask_b32 v21, v22, v21, vcc
        """)
    e(f"""
    s_lshl_b32 s{sT+6}, s{sLW}, 4
    s_lshl_b64 s[{sHM}:{sHM+1}], 0xffff, s{sT+6}
    s_waitcnt lgkmcnt(0)
    """)
    stamp()
    e(f"""
    s_cmp_eq_u32 s{sBR}, 0
    s_cselect_b32 s{sX}, s4, s10
    s_cselect_b32 s{sX+1}, s5, s11
    s_mov_b32 s{sX+2}, 0x200000
    s_mov_b32 s{sX+3}, 0x20000
    s_cselect_b32 s{sW}, s6, s12
    s_cselect_b32 s{sW+1}, s7, s13
    s_mov_b32 s{sW+2}, 0x180000
    s_mov_b32 s{sW+3}, 0x20000
    s_cselect_b32 s{sWO}, s8, s14
    s_cselect_b32 s{sWO+1}, s9, s15
    s_mov_b32 s{sWO+2}, 0x80000
    """)
    pend = []
    def flush():
        for x in pend: x()
        pend.clear()
    def issue(c, part=""):
        flush()
        pw = f"s_waitcnt vmcnt({cfg.pw})\n" if cfg.pw and c >= cfg.pc else ""
        slot = SLOT0 + (c % 3) * SLOTSZ
        if cfg.ao and c == cfg.hb and part: part = {'a': 'w', 'b': 'x'}[part]
        e(f"""
        s_bfe_u32 s{sT+6}, s{sCLS}, {0x30000 + 4*c}
        s_add_u32 m0, s{sMW + (part == 'b')}, {slot + 16384}
        s_mul_i32 s{sWOFF}, s{sT+6}, 196608
        s_lshl_b32 s{sKO}, s{sT+6}, 7
        """)
        def wl(m):
            for p in range(3):
                e(f"{pw}buffer_load_dwordx4 v{vW+m}, {srd(sW)}, s{sWOFF} offen offset:{1024*p} {cfg.dma_w} lds")
        def xl(j):
            e(f"s_add_u32 m0, s{sMX+j}, {slot}")
            e(f"{pw}buffer_load_dwordx4 v{vX+j}, {srd(sX)}, s{sKO} offen {cfg.dma_x} lds")
        if part == 'b':
            wl(1); return
        if part == 'w':
            wl(0)
            e(f"s_add_u32 m0, s{sMW+1}, {slot + 16384}")
            wl(1)
            for j in range(cfg.ao - 1): xl(3 - j)
            return
        if part == 'x':
            xl(0)
            e(f"s_mov_b32 m0, {HALO + c*1024}\ns_mov_b64 exec, s[{sHM}:{sHM+1}]")
            e(f"buffer_load_dwordx4 v{vH}, {srd(sX)}, s{sKO} offen {cfg.dma_x} lds")
            e(f"s_mov_b64 exec, -1")
            for j in range(1, 5 - cfg.ao): xl(j)
            return
        if part == 'a':
            wl(0); xl(0)
            e(f"s_mov_b32 m0, {HALO + c*1024}\ns_mov_b64 exec, s[{sHM}:{sHM+1}]")
            e(f"buffer_load_dwordx4 v{vH}, {srd(sX)}, s{sKO} offen {cfg.dma_x} lds")
            e(f"s_mov_b64 exec, -1")
            xl(1); xl(2); xl(3)
            return
        wl(0)
        for x in late_x: e(x)
        late_x.clear()
        xl(0)
        e(f"s_mov_b32 m0, {HALO + c*1024}\ns_mov_b64 exec, s[{sHM}:{sHM+1}]")
        e(f"buffer_load_dwordx4 v{vH}, {srd(sX)}, s{sKO} offen {cfg.dma_x} lds")
        e(f"s_add_u32 m0, s{sMW+1}, {slot + 16384}\ns_mov_b64 exec, -1")
        tl = cfg.tl if cfg.tm >> c & 1 else 0
        for p in range(3):
            t = f"{pw}buffer_load_dwordx4 v{vW+1}, {srd(sW)}, s{sWOFF} offen offset:{1024*p} {cfg.dma_w} lds"
            if p >= 6 - tl: pend.append(lambda t=t: e(f"s_add_u32 m0, s{sMW+1}, {slot + 16384}\n" + t))
            else: e(t)
        for j in (1, 2, 3):
            if j > 3 - tl: pend.append(lambda j=j: xl(j))
            else: xl(j)
    OF = 0; ACC = 128; WF = 160
    vA = 224
    vO0, vO1, vPO, vP = 232, 233, 234, 235
    vSW, vSR, vOA = 236, 240, 241
    vD = 242
    vWO = 246
    sSO = 12
    sFL, sOO, sSP = 45, 46, 47
    sAV = 18
    hp_ld = f"buffer_load_dword v21, v21, {srd(sW)}, 0 offen"
    if cfg.hp and cfg.hpp == 0: e(hp_ld)
    if cfg.hb: issue(0, 'a'); issue(0, 'b')
    else: issue(0)
    if cfg.sm == 3: stamp()
    if cfg.hp and cfg.hpp == 1: e(hp_ld)
    e(f"""
    s_mov_b32 s{sWO+3}, 0x20000
    s_mov_b32 s{sWS}, s20
    s_mov_b32 s{sWS+1}, s21
    s_mov_b32 s{sWS+2}, 0x10000000
    s_mov_b32 s{sWS+3}, 0x20000
    s_mov_b32 s{sOUT}, s16
    s_mov_b32 s{sOUT+1}, s17
    s_mov_b32 s{sOUT+2}, 0x400000
    s_mov_b32 s{sOUT+3}, 0x20000
    """)
    vXw, vXo = 250, 252
    sXw, sXo = 16, 17
    e(f"""
    v_lshlrev_b32 v{vXw}, 6, v0
    v_and_b32 v1, 15, v0
    v_lshlrev_b32 v1, 6, v1
    v_lshrrev_b32 v2, 4, v0
    v_lshl_add_u32 v{vXo}, v2, 15, v1
    s_cmp_eq_u32 s{sCLS}, {cfg.tabA}
    s_cselect_b32 s22, 0, 0x40000000
    s_cselect_b32 s23, 0x40000000, 0
    s_and_b32 s{sXw}, s{sRT}, 3
    s_lshl_b32 s{sXw}, s{sXw}, 3
    s_add_u32 s{sXw}, s{sXw}, s{sG}
    s_lshl_b32 s{sXw}, s{sXw}, 2
    s_add_u32 s{sXw}, s{sXw}, s{sLW}
    s_lshl_b32 s{sXw}, s{sXw}, 12
    s_lshl_b32 s{sXo}, s{sRT}, 5
    s_add_u32 s{sXo}, s{sXo}, s{sG}
    s_lshl_b32 s{sXo}, s{sXo}, 2
    s_add_u32 s{sXo}, s{sXo}, s{sLW}
    s_lshl_b32 s{sXo}, s{sXo}, 10
    """)
    vOi = [232, 243, 244, 245, 233, 254, 251, 253]; vDV = 255; vXq = 253; sXq = 96; sDF = 97; sDS = 3
    if cfg.ptm != 15 and not cfg.om:
        e(f"""
        s_and_b32 s{sT+6}, s{sG}, 3
        v_add_u32 v3, s{sT+6}, v2
        v_and_b32 v3, 3, v3
        v_lshl_add_u32 v{vXo}, v3, 15, v1
        v_lshrrev_b32 v3, v2, {cfg.ptm}
        v_and_b32 v3, 1, v3
        v_cmp_eq_u32 vcc, 0, v3
        v_bfrev_b32 v3, 2
        v_cndmask_b32 v{vXo}, v{vXo}, v3, vcc
        """)
    if cfg.om:
        assert cfg.xoA != 9 and cfg.xoB != 9 and cfg.g3 and not cfg.ht and not cfg.diag
        e(f"""
        s_and_b32 s{sT+6}, s{sG}, 3
        v_add_u32 v3, s{sT+6}, v2
        v_and_b32 v3, 3, v3
        v_lshl_add_u32 v{vXo}, v3, 15, v1
        v_lshl_add_u32 v3, v3, 17, v1
        v_lshl_add_u32 v{vXq}, v2, 15, v3
        v_cmp_gt_u32 vcc, {cfg.om}, v2
        v_bfrev_b32 v3, 2
        v_cndmask_b32 v{vXo}, v{vXo}, v3, vcc
        v_cndmask_b32 v{vXq}, v3, v{vXq}, vcc
        s_lshl_b32 s{sXq}, s{sSEG}, 7
        s_and_b32 s{sT+6}, s{sG}, 4
        s_add_u32 s{sXq}, s{sXq}, s{sT+6}
        s_add_u32 s{sXq}, s{sXq}, s{sLW}
        s_lshl_b32 s{sXq}, s{sXq}, 1
        s_add_u32 s{sXq}, s{sXq}, s{sPAR}
        s_lshl_b32 s{sXq}, s{sXq}, 1
        s_add_u32 s{sXq}, s{sXq}, s{sBR}
        s_lshl_b32 s{sXq}, s{sXq}, 10
        """)
    def acheck():
        if cfg.diag:
            e(f"""
            s_mov_b32 s3, 0
            s_mov_b32 s{sSP}, 100000
            s_getreg_b32 s{sWOFF}, hwreg(HW_REG_XCC_ID, 0, 4)
            s_sub_u32 s{sWOFF}, s{sAV}, s{sWOFF}
L_dg:
            s_waitcnt lgkmcnt(0)
            s_mov_b32 s{sKO}, 0
            """)
            for i in range(8):
                e(f"s_sub_u32 s{sT+7}, s{4+i}, s{sWOFF}\ns_or_b32 s{sKO}, s{sKO}, s{sT+7}")
            e(f"""
            s_cmp_lt_u32 s{sKO}, 16
            s_cbranch_scc1 L_dgx
            s_mov_b32 s3, 800
            s_sub_u32 s{sSP}, s{sSP}, 1
            s_cbranch_scc1 L_dgx
            s_add_u32 s{sT+6}, s19, {WS_A}
            s_load_dwordx8 s[4:11], s[20:21], s{sT+6} glc
            s_branch L_dg
L_dgx:
            """)
        e(f"""
        s_mov_b32 s19, s{sAV}
        s_waitcnt lgkmcnt(0)
        s_xor_b64 s[4:5], s[4:5], s[18:19]
        s_xor_b64 s[6:7], s[6:7], s[18:19]
        s_xor_b64 s[8:9], s[8:9], s[18:19]
        s_xor_b64 s[10:11], s[10:11], s[18:19]
        s_or_b64 s[4:5], s[4:5], s[6:7]
        s_or_b64 s[8:9], s[8:9], s[10:11]
        s_or_b64 s[4:5], s[4:5], s[8:9]
        s_cselect_b32 s4, 0, {0 if cfg.nofast else 1}
        {"s_cselect_b32 s5, 1600, 0" if cfg.diag else ""}
        {"s_add_u32 s3, s3, s5" if cfg.diag else ""}
        v_mov_b32 v1, 0
        v_mov_b32 v2, s4
        ds_write_b32 v1, v2
        """)
        if cfg.b8 < 0:
            e(f"s_lshl_b32 s5, s{sLW}, 2\nv_mov_b32 v3, s5\nds_write_b32 v3, v1 offset:16")
    def xat(pos):
        n = 0
        T = [(cfg.xwA, cfg.xwB, vXw, sWO, sXw, "", 4)]
        if cfg.om: T.append((cfg.xoA, cfg.xoB, vXq, sOUT, sXq, cfg.pt_flags, 5))
        if cfg.om < 4: T.append((cfg.xoA, cfg.xoB, vXo, sWS, sXo, cfg.pt_flags, 6))
        for (pa, pb, v, sr, so, fl, d) in T:
            if pa == pos and pb == pos:
                e(f"buffer_load_dword v{d}, v{v}, {srd(sr)}, s{so} offen {fl}"); n += 1
            elif pos in (pa, pb):
                d += 12 if pa == pos else 16
                e(f"v_add_u32 v{d}, s{22 if pa == pos else 23}, v{v}\nbuffer_load_dword v{d}, v{d}, {srd(sr)}, s{so} offen {fl}"); n += 1
        return n
    for c in range(8):
        nX = 0
        if c == 1 and cfg.e2: pass
        elif c + 1 <= 7 and not (c == 0 and cfg.su < 0):
            nX = xat(c + 1); issue(c + 1, 'a' if c < cfg.hb else '')
            if c == 6: nX7 = xat(10); nX += nX7
        if c == 0:
            e(f"""
            s_lshl_b32 s19, s{sRT}, 7
            s_add_u32 s{sT+6}, s19, {WS_E}
            s_load_dword s{sEP}, s[20:21], s{sT+6}
            """)
        if c == max(cfg.su, 0):
            e(f"""
            v_and_b32 v1, 1, v0
            v_bfe_u32 v2, v0, 1, 1
            v_lshl_add_u32 v1, v1, 1, v2
            v_bfe_u32 v2, v0, 4, 1
            v_lshl_add_u32 v1, v2, 2, v1
            v_lshlrev_b32 v1, 3, v1
            v_bfe_u32 v2, v0, 3, 1
            v_lshl_add_u32 v1, v2, 6, v1
            v_bfe_u32 v2, v0, 2, 2
            v_lshl_add_u32 v1, v2, 7, v1
            v_lshrrev_b32 v2, 5, v0
            v_lshl_add_u32 v1, v2, 10, v1
            s_lshl_b32 s{sOO}, s{sRT}, 2
            {f"s_and_b32 s3, s{sLW}, 1" if cfg.dup else f"s_mov_b32 s3, s{sLW}"}
            {f"s_and_b32 s{sFL}, s{sG}, 1" if cfg.dup else ""}
            {f"s_lshl1_add_u32 s3, s{sFL}, s3" if cfg.dup else ""}
            s_add_u32 s{sOO}, s{sOO}, s3
            s_lshl_b32 s{sFL}, s{sOO}, 7
            s_add_u32 s{sFL}, s{sFL}, {WS_FLAG}
            s_lshl_b32 s{sOO}, s{sOO}, {16 if cfg.sk3 else 15}
            """)
            for r in range(4):
                e(f"""
                s_sub_u32 s{sT+6}, s3, {r}
                s_and_b32 s{sT+6}, s{sT+6}, 3
                s_lshl_b32 s{sT+7}, s{sT+6}, {13 if cfg.sk3 else 12}
                s_add_u32 s{sSO+r}, s{sT+7}, s{sOO}
                s_lshl_b32 s{sT+6}, s{sT+6}, 13
                s_add_u32 s{sT+6}, s{sT+6}, {WO_L}
                """)
                if cfg.tp: e(f"v_lshl_add_u32 v{vA+r}, v0, 4, s{sT+6}")
                else: e(f"v_add_u32 v{vA+2*r}, s{sT+6}, v1\nv_xor_b32 v{vA+2*r+1}, 64, v{vA+2*r}")
            if cfg.tp:
                e(f"""
                s_lshl_b32 s{sT+6}, s{sLW}, 14
                s_add_u32 s{sT+6}, s{sT+6}, {WO_L}
                v_add_u32 v{vA+4}, s{sT+6}, v1
                v_xor_b32 v{vA+5}, 64, v{vA+4}
                v_lshl_add_u32 v{vA+6}, v0, 4, s{sT+6}
                """)
        if c == max(cfg.su, 0) * 2:
            e(f"""
            v_lshlrev_b32 v{vO0}, 4, v0
            v_add_u32 v{vO1}, 16384, v{vO0}
            """)
            if cfg.sk3:
                e(f"""
                v_cmp_lt_u32 vcc, 23, v0
                v_cndmask_b32 v1, 0, 1, vcc
                v_lshl_add_u32 v243, v1, 7, v{vO0}
                v_add_u32 v244, 4096, v243
                v_add_u32 v245, 32768, v243
                v_add_u32 v254, 36864, v243
                """)
            e(f"""
            v_and_b32 v1, 7, v0
            v_lshlrev_b32 v{vPO}, 2, v1
            v_lshrrev_b32 v2, 5, v0
            v_xor_b32 v1, v1, v2
            v_lshlrev_b32 v1, 4, v1
            v_and_b32 v2, 31, v0
            v_lshl_add_u32 v1, v2, 7, v1
            s_lshl_b32 s{sT+6}, s{sLW}, 12
            s_add_u32 s{sT+6}, s{sT+6}, {STAGE}
            v_add_u32 v{vSW}, s{sT+6}, v1
            v_xor_b32 v{vSW+1}, 32, v{vSW}
            v_xor_b32 v{vSW+2}, 64, v{vSW}
            v_xor_b32 v{vSW+3}, 96, v{vSW}
            v_add_u32 v{vSR}, s{sT+6}, v{vO0}
            v_lshrrev_b32 v2, 3, v0
            v_and_b32 v1, 7, v0
            v_xor_b32 v1, v1, v2
            v_lshlrev_b32 v1, 4, v1
            v_lshl_add_u32 v{vOA}, v2, 12, v1
            s_lshl_b32 s{sOO}, s{sSEG}, 19
            s_lshl_b32 s{sT+6}, s{sLW}, 17
            s_add_u32 s{sOO}, s{sOO}, s{sT+6}
            s_lshl_b32 s{sT+6}, s{sPAR}, 11
            s_add_u32 s{sOO}, s{sOO}, s{sT+6}
            s_lshl_b32 s{sT+6}, s{sBR}, 10
            s_add_u32 s{sOO}, s{sOO}, s{sT+6}
            """)
            for r in range(cfg.om): e(f"s_add_u32 s{sSO+r}, s{sOO}, {32768*r}")
            if cfg.om:
                for i in (1, 2, 3, 5, 6): e(f"v_add_u32 v{vOi[i]}, {4096*i}, v{vO0}")
                e(f"""
                s_add_u32 s{sDF}, s{sFL}, {WS_D - WS_FLAG}
                s_lshl_b32 s{sDS}, s{sG}, 2
                s_add_u32 s{sDS}, s{sDS}, s{sDF}
                """)
            e(f"""
            s_lshl_b32 s{sT+6}, s{sG}, 7
            s_add_u32 s{sOO}, s{sOO}, s{sT+6}
            """)
        if c == max(cfg.su, 0) * 3:
            e(f"""
            v_lshrrev_b32 v3, 3, v0
            v_and_b32 v4, 7, v0
            v_lshrrev_b32 v5, 2, v0
            v_and_b32 v5, 4, v5
            v_xor_b32 v4, v4, v5
            v_lshlrev_b32 v4, 4, v4
            v_lshl_add_u32 v4, v3, 10, v4
            s_lshl_b32 s{sT+6}, s{sLW}, 17
            s_lshl_b32 s{sT+7}, s{sG}, 7
            s_add_u32 s{sT+6}, s{sT+6}, s{sT+7}
            v_add_u32 v{vWO}, s{sT+6}, v4
            v_add_u32 v{vWO+1}, 7168, v{vWO}
            v_add_u32 v{vWO+2}, 14336, v{vWO}
            v_add_u32 v{vWO+3}, 21504, v{vWO}
            """)
        if c == 0 and cfg.hf:
            assert not cfg.hf & 0xaa9 and cfg.hf < 1 << 2*cfg.hb
            e("v_mov_b32 v15, 0x20000\nv_mov_b32 v16, 1")
        if c == 0 and cfg.sm == 3: stamp()
        if c == 0 and cfg.su < 0: issue(1, 'a' if cfg.hb else '')
        if c == 0 and cfg.sm == 3: stamp()
        if c == 0: n12 = xat(12); nX += n12
        if c == 1: nX += n12
        if c == 0 and cfg.e2: issue(2); nX = 11
        if cfg.iw and cfg.ic <= c < cfg.ic + 4:
            b = (c - cfg.ic) * 8
            e("s_mov_b64 exec, 0")
            for w in range(3): e(f"s_cmp_eq_u32 s{sLW}, {w}\ns_cbranch_scc1 L_iw{b + 2*w}")
            e(f"s_branch L_iw{b + 6}\nL_ir{c - cfg.ic}:\ns_mov_b64 exec, -1")
        if c == 3:
            e(f"""
            s_getreg_b32 s{sAV}, hwreg(HW_REG_XCC_ID, 0, 4)
            s_waitcnt lgkmcnt(0)
            s_add_u32 s{sAV}, s{sAV}, s{sEP}
            s_add_u32 s{sAV}, s{sAV}, {K2}
            s_add_u32 s{sEP}, s{sEP}, {K1}
            """)
            if cfg.om: e(f"v_mov_b32 v{vDV}, s{sEP}")
        if c == cfg.ac:
            e(f"""
            s_add_u32 s{sT+6}, s19, {WS_A}
            s_load_dwordx8 s[4:11], s[20:21], s{sT+6} glc
            """)
        if c == 6:
            if not cfg.late: acheck()
            e(f"""
            s_lshl_b32 s{sXB}, s{sLW}, 14
            s_waitcnt vmcnt({11 + nX - len(pend)}) {'' if cfg.late else 'lgkmcnt(0)'}
            """)
            nX7 += xat(11)
            e("s_barrier")
            stamp()
        elif c == 7:
            flush()
            nX = xat(8) + nX7
            def wo(i):
                gq, j = i >> 2, i & 3
                if j == 0 and not cfg.wsh: e(f"s_add_u32 m0, s{sXB}, {WO_L + 4096*gq}\ns_mov_b32 s{sKO}, {32768*gq}")
                if j == 0 and cfg.wsh:
                    e(f"""
                    s_add_u32 s{sKO}, s{sRT}, {gq}
                    s_and_b32 s{sKO}, s{sKO}, 3
                    s_lshl_b32 s{sWOFF}, s{sKO}, 12
                    s_add_u32 s{sWOFF}, s{sWOFF}, s{sXB}
                    s_add_u32 m0, s{sWOFF}, {WO_L}
                    s_lshl_b32 s{sKO}, s{sKO}, 15
                    """)
                e(f"buffer_load_dwordx4 v{vWO+j}, {srd(sWO)}, s{sKO} offen offset:{1024*j} lds")
            for i in range(cfg.nw0): wo(i)
            e(f"s_waitcnt vmcnt({nX + cfg.nw0})")
            if cfg.sm == 1: stamp()
            for i in range(cfg.nw0, cfg.nw): wo(i)
            if cfg.late:
                acheck(); e("s_waitcnt lgkmcnt(0)")
            if cfg.sm == 1: stamp()
            e("s_barrier")
            stamp()
            for i in range(cfg.nw, cfg.nw1): wo(i)
            if cfg.b9 >= 0: e("s_barrier")
            for i in range(max(cfg.nw, cfg.nw1), 16): wo(i)
            nX = xat(9)
            e(f"buffer_load_dword v{vP}, v{vPO}, {srd(sWS)}, s{sFL} offen sc1")
            e(f"s_mov_b32 s{sSP}, {0x10000000 if cfg.stamps else 0x200000}\ns_waitcnt vmcnt({nX+1})")
        else:
            def lsig(k): return f"s_mov_b64 exec, 1\nds_add_u32 v15, v16 offset:{4*k}\ns_mov_b64 exec, -1" if cfg.hf >> k & 1 else "s_barrier"
            e(f"s_waitcnt vmcnt({8 + cfg.ao if cfg.ao and c == cfg.hb - 1 else 11+nX-len(pend)})\n{lsig(2*c) if c < cfg.hb else 's_barrier'}")
            if c == 0 or cfg.sm == 2: stamp()
            if c < cfg.hb:
                assert nX == 0 and cfg.su < 0 and not cfg.e2 and cfg.hb <= 6
                issue(c + 1, 'b')
                e("s_waitcnt vmcnt(11)\n" + lsig(2*c + 1))
    if cfg.sm != 2: stamp()
    if cfg.lp2: e(f"s_setprio {cfg.lp2}")
    if cfg.tp:
        n = 0
        for h in range(8 + 1):
            if h < 8:
                for m in range(2):
                    for j in range(2):
                        d = WF + 8*h + 4*m + 2*j
                        e(f"ds_read_b64_tr_b16 v[{d}:{d+1}], v{vA+4+m} offset:{h*2048 + j*512}")
            if h >= 1:
                k = h - 1
                e(f"s_waitcnt lgkmcnt({[4, 6, 6, 6, 6, 6, 6, 2][k]})")
                for m in range(2):
                    e(f"ds_write_b128 v{vA+6}, {vr(WF + 8*k + 4*m, 4)} offset:{k*2048 + m*1024}")
    if cfg.b8 < 0: e("v_mov_b32 v2, 1\nds_write_b32 v3, v2 offset:16")
    def lsync(sx=""):
        if cfg.b8 >= 0: e("s_barrier"); return
        e(f"""
L_ls{sx}:
        ds_read_b128 v[{WF}:{WF+3}], v{vD} offset:16
        s_sub_u32 s{sSP}, s{sSP}, 1
        s_cmp_lt_i32 s{sSP}, 0
        s_cbranch_scc1 L_lsx{sx}
        s_waitcnt lgkmcnt(0)
        v_and_b32 v{WF}, v{WF}, v{WF+1}
        v_and_b32 v{WF+2}, v{WF+2}, v{WF+3}
        v_and_b32 v{WF}, v{WF}, v{WF+2}
        v_cmp_eq_u32 vcc, 0, v{WF}
        s_cbranch_vccnz L_ls{sx}
L_lsx{sx}:
        """)
    e(f"v_mov_b32 v{vD}, 0")
    if cfg.om: e(f"v_add_u32 v{vOi[7]}, {4096*7}, v{vO0}")
    def wrd(H):
        r, i = H >> 3, H & 7
        R = []
        if cfg.tp:
            return [f"ds_read_b128 {vr(WF + 8*i + 4*m, 4)}, v{vA+r} offset:{(i>>2)*32768 + (i&3)*2048 + m*1024}" for m in range(2)]
        for m in range(2):
            for j in range(2):
                d = WF + 8*i + 4*m + 2*j
                R.append(f"ds_read_b64_tr_b16 v[{d}:{d+1}], v{vA+2*r+m} offset:{(i>>2)*32768 + (i&3)*2048 + j*512}")
        return R
    def oload(H):
        r, i = H >> 3, H & 7
        if r < cfg.om: return f"buffer_load_dwordx4 {vr(OF+4*H,4)}, v{vOi[i]}, {srd(sOUT)}, s{sSO+r} offen {cfg.ld_flags}"
        if cfg.sk3: return f"buffer_load_dwordx4 {vr(OF+4*H,4)}, v{[243, 244, 245, 254][i >> 1]}, {srd(sWS)}, s{sSO+r} offen offset:{(i&1)*2048} {cfg.ld_flags}"
        return f"buffer_load_dwordx4 {vr(OF+4*H,4)}, v{vO0 + (i>>2)}, {srd(sWS)}, s{sSO+r} offen offset:{(i&3)*1024} {cfg.ld_flags}"
    def poll(r): return f"buffer_load_dword v{vP}, v{vPO}, {srd(sWS)}, s{sFL} offen offset:{32*r} sc1"
    vq = []
    dq = []
    def ivm(tag, text): e(text); vq.append(tag)
    def ids(tag, text):
        if len(dq) >= 14:
            e(f"s_waitcnt lgkmcnt({cfg.lk})"); del dq[:len(dq) - cfg.lk]
        e(text); dq.append(tag)
    def wait(vt=None, dt=None):
        parts = []
        if vt is not None and vt in vq:
            k = len(vq) - 1 - max(i for i, t in enumerate(vq) if t == vt)
            parts.append(f"vmcnt({k})"); del vq[:len(vq) - k]
        if dt is not None and dt in dq:
            k = len(dq) - 1 - max(i for i, t in enumerate(dq) if t == dt)
            k2 = min(k, 15)
            parts.append(f"lgkmcnt({k2})"); del dq[:len(dq) - k2]
        if parts: e("s_waitcnt " + " ".join(parts))
    def check(r):
        wait(vt=("P", r))
        e(f"""
L_chk{r}:
        v_cmp_ne_u32 vcc, s{sEP}, v{vP}
        s_cbranch_vccnz L_spin{r}
L_ok{r}:
        """)
    def stage_loads(r):
        T = [(("L", 8*r + i), oload(8*r + i)) for i in range(8)]
        if r < 3: T.insert(cfg.kp, (("P", r + 1), poll(r + 1)))
        return T
    if cfg.g2 == 0:
        lsync()
        ivm(("P", 0), poll(0))
        for H in range(7):
            for x in wrd(H): ids(H, x)
        check(0)
        stamp()
        for t, x in stage_loads(0): ivm(t, x)
    elif cfg.g2 == 2:
        vq.append(("P", 0))
        wait(vt=("P", 0))
        e(f"v_cmp_ne_u32 vcc, s{sEP}, v{vP}\ns_cbranch_vccnz L_pre")
        for t, x in stage_loads(0): ivm(t, x)
        lsync()
        for H in range(7):
            for x in wrd(H): ids(H, x)
        e("L_prej:")
        if cfg.sm != 2: stamp()
        v1, d1 = list(vq), list(dq)
        mark = len(L); vq[:] = []; dq[:] = []
        e("L_pre:")
        ivm(("P", 0), poll(0))
        lsync("b")
        vP2 = 250
        pl = [poll(0)] + [poll(0).replace(f"dword v{vP},", f"dword v{vP2+k},") for k in range(cfg.dq)]
        rg = [vP] + [vP2 + k for k in range(cfg.dq)]
        hs = [cfg.dqh] if cfg.dq == 1 else [4, 7]
        for H in range(7):
            for x in wrd(H): ids(H, x)
            if cfg.dq and H + 1 in hs:
                e("s_waitcnt lgkmcnt(0)\n" + pl[1 + hs.index(H + 1)])
        if cfg.dq:
            e("L_dq:")
            for k in range(cfg.dq + 1):
                e(f"s_waitcnt vmcnt({cfg.dq})\nv_cmp_ne_u32 vcc, s{sEP}, v{rg[k]}\ns_cbranch_vccz L_ok0\n{pl[k]}")
            e(f"s_sub_u32 s{sSP}, s{sSP}, 1\ns_cmp_lt_i32 s{sSP}, 0\ns_cbranch_scc0 L_dq\nL_ok0:")
            vq[:] = []
        else: check(0)
        for t, x in stage_loads(0): ivm(t, x)
        e("s_branch L_prej")
        assert vq == v1 and dq == d1
        pre_alt = L[mark:]; del L[mark:]
    else:
        vq.append(("P", 0))
        e("L_again:")
        check(0)
        if cfg.sm != 2: stamp()
        for t, x in stage_loads(0): ivm(t, x)
        lsync()
        for H in range(7):
            for x in wrd(H): ids(H, x)
    alts = []; dstub = []
    dpoll = f"buffer_load_dword v{vP}, v{vPO}, {srd(sWS)}, s{sDF} offen sc1"
    def dsig():
        k = len(dstub); st = f"buffer_store_dword v{vDV}, off, {srd(sWS)}, s{sDS}"
        ivm(("D",), f"s_cmp_eq_u32 s4, 0\ns_mov_b64 exec, 1\ns_cbranch_scc1 L_dst{k}\n{st} {cfg.ddf_flags}\nL_dsb{k}:\ns_mov_b64 exec, -1")
        dstub.append(f"L_dst{k}:\n{st} sc1\ns_branch L_dsb{k}")
    def heads(r, pending, per, alt=False):
        for i in range(8):
            H = 8*r + i
            if cfg.iw and not alt and (cfg.iw == 2 or not H & 1):
                e(f"L_iw{H}:\ns_cbranch_execz " + (f"L_iw{H+1}" if cfg.iw == 2 and not H & 1 else f"L_ir{r}"))
            wait(vt=("L", H), dt=H)
            for m in range(2):
                cc = "0" if H == 0 else vr(ACC+16*m, 16)
                e(f"v_mfma_f32_32x32x16_bf16 {vr(ACC+16*m,16)}, {vr(WF+8*i+4*m,4)}, {vr(OF+4*H,4)}, {cc}")
                if cfg.om and m == 0 and H == 8*cfg.om - 1 and not alt: dsig()
                if cfg.om and m == 1 and H == 24 + cfg.dp: ivm(("DP",), dpoll)
                if cfg.ht and m == 0 and i & 1:
                    c3 = "0" if H == 1 else f"v{vD+1}"
                    e(f"v_max3_u32 v{vD+1}, v{OF+4*H-4}, v{OF+4*H}, {c3}")
                if cfg.ht and m == 1 and H == 31:
                    e(f"v_cmp_eq_u32 vcc, -1, v{vD+1}\ns_cbranch_vccnz L_redo\nL_redox:")
                for _ in range(per[2*i + m]):
                    if pending:
                        t, x = pending.pop(0); ivm(t, x)
                if H + 7 < 32:
                    for x in (wrd(H + 7)[m:m+1] if cfg.tp else wrd(H + 7)[2*m:2*m+2]): ids(H + 7, x)
        assert not pending
    if cfg.g3:
        assert cfg.kp == 0
        for r in range(4):
            if r < 3:
                wait(vt=("P", r + 1))
                e(f"v_cmp_ne_u32 vcc, s{sEP}, v{vP}\ns_cbranch_vccnz L_alt{r}")
                v0, d0 = list(vq), list(dq)
                pend = stage_loads(r + 1)
                for _ in range(1 + (cfg.pe >> (4*r) & 15)):
                    t, x = pend.pop(0); ivm(t, x)
                heads(r, pend, [[1, 0]*8, [1, 1, 1, 0]*4, [1]*16][cfg.g3 - 1])
                e(f"L_join{r}:")
                if cfg.sm == 0 or (r == 2 and cfg.sm == 1): stamp()
                v1, d1 = list(vq), list(dq)
                mark = len(L)
                vq[:] = v0; dq[:] = d0
                e(f"L_alt{r}:")
                if cfg.stamps: e(f"s_sub_u32 s{sSP}, s{sSP}, {0x100 << (4*r)}")
                heads(r, [(("P", r + 1), poll(r + 1))], [0]*cfg.ap + [1]*16, True)
                check(r + 1)
                for t, x in stage_loads(r + 1): ivm(t, x)
                if r + 1 == cfg.om: dsig()
                e(f"s_branch L_join{r}")
                assert dq == d1 and vq[-len(v1):] == v1, (vq, v1)
                alts.append(L[mark:]); del L[mark:]
                vq[:] = v1
            else:
                heads(r, [], [0]*16)
    else:
        pending = []
        for H in range(32):
            r, i = H >> 3, H & 7
            if i == cfg.kp and r < 3:
                check(r + 1)
                if cfg.sm == 0 or r == 2: stamp()
                pending = stage_loads(r + 1)
                for _ in range(3):
                    t, x = pending.pop(0); ivm(t, x)
            wait(vt=("L", H), dt=H)
            for m in range(2):
                cc = "0" if H == 0 else vr(ACC+16*m, 16)
                e(f"v_mfma_f32_32x32x16_bf16 {vr(ACC+16*m,16)}, {vr(WF+8*i+4*m,4)}, {vr(OF+4*H,4)}, {cc}")
                if H + 7 < 32:
                    for x in (wrd(H + 7)[m:m+1] if cfg.tp else wrd(H + 7)[2*m:2*m+2]): ids(H + 7, x)
                for _ in range(2):
                    if pending:
                        t, x = pending.pop(0); ivm(t, x)
    stamp()
    cvt = lambda d, a: e(f"v_cvt_pk_bf16_f32 v{d}, v{a}, v{a+1}\nv_cvt_pk_bf16_f32 v{d+1}, v{a+2}, v{a+3}")
    for m in range(2):
        for qq in range(2):
            a = ACC + 16*m + 8*qq; d = 8*m + 4*qq
            cvt(d, a); cvt(d + 2, a + 4)
            e(f"ds_write_b128 v{vSW + 2*m + qq}, {vr(d,4)}")
        if cfg.om and cfg.dp == 8 + m: ivm(("DP",), dpoll)
    e("s_waitcnt lgkmcnt(0)")
    for it in range(4):
        e(f"ds_read_b128 {vr(16+4*it,4)}, v{vSR} offset:{1024*it}")
    if cfg.om:
        if cfg.dp == 10: ivm(("DP",), dpoll)
        e(f"""
        s_waitcnt vmcnt(0)
L_dchk:
        v_cmp_ne_u32 vcc, s{sEP}, v{vP}
        s_cbranch_vccnz L_dspin
L_dok:
        """)
    for it in range(4):
        e(f"s_waitcnt lgkmcnt({3-it})")
        if it > 0: e(f"s_add_u32 s{sOO}, s{sOO}, 32768")
        e(f"buffer_store_dwordx4 {vr(16+4*it,4)}, v{vOA}, {srd(sOUT)}, s{sOO} offen {cfg.out_flags}")
    e(f"""
    s_or_b32 s{sT+6}, s{sG}, s{sLW}
    s_cbranch_scc0 L_epoch
L_epochx:
    """)
    if cfg.diag:
        e("""
        s_memrealtime s[92:93]
L_dsp:
        s_memrealtime s[96:97]
        s_waitcnt lgkmcnt(0)
        s_sub_u32 s96, s96, s92
        s_cmp_lt_u32 s96, s3
        s_cbranch_scc1 L_dsp
        """)
    if cfg.stamps:
        e("s_waitcnt vmcnt(0)"); stamp()
    dump_stamps(nst[0], True)
    e("L_end:\ns_endpgm")
    for r in range(1 if cfg.dq and cfg.g2 == 2 else 0, 4):
        e(f"""
L_spin{r}:
        s_sub_u32 s{sSP}, s{sSP}, 1
        s_cmp_lt_i32 s{sSP}, 0
        s_cbranch_scc1 L_ok{r}
        {poll(r)}
        s_waitcnt vmcnt(0)
        s_branch L_chk{r}
        """)
    for al in alts: L.extend(al)
    if cfg.g2 == 2: L.extend(pre_alt)
    for x in dstub: e(x)
    if cfg.om:
        e(f"""
L_dspin:
        s_sub_u32 s{sSP}, s{sSP}, {0x80000 if cfg.stamps else 1}
        s_cmp_lt_i32 s{sSP}, 0
        s_cbranch_scc1 L_dok
        {dpoll}
        s_waitcnt vmcnt(0)
        s_branch L_dchk
        """)
    if cfg.ht:
        e(f"""
L_redo:
        s_sub_u32 s{sSP}, s{sSP}, {0x80000 if cfg.stamps else 64}
        s_cmp_lt_i32 s{sSP}, 0
        s_cbranch_scc1 L_redox
        {poll(0)}
        s_branch L_again
        """)
    e(f"""
L_epoch:
    s_lshl_b32 s{sT+6}, s{sRT}, 7
    s_add_u32 s{sT+6}, s{sT+6}, {WS_E}
    v_mov_b32 v{vD}, s{sEP}
    s_mov_b64 exec, 1
    buffer_store_dword v{vD}, off, {srd(sWS)}, s{sT+6}
    s_mov_b64 exec, -1
    s_branch L_epochx
    """)
    nst[0] = 1
    if cfg.ca: e(f".p2align {cfg.ca}")
    e("L_compute:")
    AQ = 0; AK = 32; AV = 68
    BUF = [104, 152]
    W15 = 200
    vB = 212; vB0 = 216; vONE = 220
    vXA = 224; vWA = 230; vHA = 233
    vSO, vFO, vFV = 235, 236, 237
    VP = 238
    vFA = 246
    pstubs = []
    def csync(F, pos, k):
        if not cfg.hf >> k & 1: return F
        rd = f"ds_read_b32 v{vFA+1}, v{vFA} offset:{4*k}"
        F[pos - cfg.fl] = (F[pos - cfg.fl] + "\n" + rd).strip()
        F[pos] = F[pos].replace("s_barrier", f"L_pb{k}:\ns_waitcnt lgkmcnt(0)\nv_cmp_gt_u32 vcc, 4, v{vFA+1}\n{rd}\ns_cbranch_vccnz L_pb{k}")
        return F
    def accQ(t): return AQ + 4*t
    def accK(t): return AK + 4*(t+1)
    def accV(t): return AV + 4*(t+1)
    sSC = 56; sMH = 58; sPM = 60; sDO = 12; sFO = 45; sS = 46
    e(f"""
    v_and_b32 v1, 15, v0
    v_lshrrev_b32 v2, 4, v0
    v_bfe_u32 v3, v0, 1, 3
    v_xor_b32 v3, v3, v2
    v_lshlrev_b32 v3, 4, v3
    v_lshl_add_u32 v3, v1, 7, v3
    {f"s_bfe_u32 s{sT}, s{sRT}, 0x10001" if cfg.hb else ""}
    {f"s_lshl_b32 s{sT}, s{sT}, 6" if cfg.hb else ""}
    {f"v_xor_b32 v3, s{sT}, v3" if cfg.hb else ""}
    v_add_u32 v{vXA}, {SLOT0}, v3
    v_xor_b32 v{vXA+1}, 64, v{vXA}
    v_add_u32 v{vXA+2}, {SLOTSZ}, v{vXA}
    v_add_u32 v{vXA+3}, {SLOTSZ}, v{vXA+1}
    v_add_u32 v{vXA+4}, {2*SLOTSZ}, v{vXA}
    v_add_u32 v{vXA+5}, {2*SLOTSZ}, v{vXA+1}
    v_and_b32 v3, 6, v0
    v_xor_b32 v3, v3, v2
    v_lshlrev_b32 v3, 4, v3
    {f"v_xor_b32 v3, s{sT}, v3" if cfg.hb else ""}
    v_and_b32 v4, 7, v0
    v_lshl_add_u32 v{vHA}, v4, 7, v3
    {"v_and_b32 v4, 8, v0" if cfg.hzero else ""}
    {"v_xor_b32 v4, 8, v4" if cfg.hzero else ""}
    {f"v_lshl_add_u32 v{vHA}, v4, 15, v{vHA}" if cfg.hzero else ""}
    v_xor_b32 v{vHA+1}, 64, v{vHA}
    v_bfe_u32 v3, v0, 3, 2
    v_xor_b32 v3, s{sWAVE}, v3
    v_lshlrev_b32 v3, 5, v3
    v_and_b32 v4, 3, v0
    v_lshl_add_u32 v3, v4, 3, v3
    v_bfe_u32 v4, v0, 2, 2
    v_lshl_add_u32 v3, v4, 7, v3
    v_mul_u32_u24 v4, 3072, v2
    v_add_u32 v3, v3, v4
    v_add_u32 v{vWA}, {SLOT0+16384}, v3
    v_add_u32 v{vWA+1}, {SLOT0+16384+SLOTSZ}, v3
    v_add_u32 v{vWA+2}, {SLOT0+16384+2*SLOTSZ}, v3
    v_lshlrev_b32 v3, 2, v2
    v_sub_u32 v3, v1, v3
    v_mov_b32 v5, 0xff800000
    s_cmp_eq_u32 s{sSEG}, 0
    s_cselect_b32 s{sT}, {f2u(-4e9)}, 0
    v_mov_b32 v6, s{sT}
    """)
    for r in range(4):
        e(f"""
        v_subrev_u32 v4, {r}, v3
        v_cmp_gt_i32 s[62:63], 0, v4
        v_and_b32 v4, 8, v4
        v_cmp_eq_u32 vcc, 0, v4
        v_cndmask_b32 v{vB0+r}, 0, v6, s[62:63]
        v_cndmask_b32 v{vB+r}, v5, 0, vcc
        v_cndmask_b32 v{vB0+r}, v5, v{vB0+r}, vcc
        v_mov_b32 v{vONE+r}, 0x3f803f80
        """)
    e(f"""
    v_lshlrev_b32 v{vSO}, 4, v0
    {f"v_cmp_lt_u32 vcc, 23, v0" if cfg.sk3 else ""}
    {f"v_cndmask_b32 v{vFO}, 0, 1, vcc" if cfg.sk3 else ""}
    {f"v_lshl_add_u32 v{vSO}, v{vFO}, 7, v{vSO}" if cfg.sk3 else ""}
    v_mov_b32 v{VP+2}, 0
    v_mov_b32 v{VP+4}, -1
    v_mov_b32 v{VP+5}, -1
    v_mov_b32 v{VP+6}, -1
    v_mov_b32 v{VP+7}, -1
    v_lshlrev_b32 v1, 6, v1
    v_lshl_add_u32 v{VP+3}, v2, 15, v1
    v_min_u32 v{vFO}, 1, v0
    {f"v_mov_b32 v{vFA}, 0x20000" if cfg.hf else ""}
    {f"v_mov_b32 v{vFA+1}, 0" if cfg.hf else ""}
    {f"v_lshl_add_u32 v1, v0, 2, v{vFA}" if cfg.hf else ""}
    {f"ds_write_b32 v1, v{vFA+1}" if cfg.hf else ""}
    v_lshlrev_b32 v{vFO}, 30, v{vFO}
    s_mov_b32 s{sSC}, {f2u(0.25*1.4426950408889634)}
    s_mov_b32 s{sMH}, 0xff00ff00
    s_mov_b32 s{sMH+1}, 0xff00ff00
    s_mov_b32 s{sPM}, 0
    s_mov_b32 s{sPM+1}, 0x00ff00ff
    s_and_b32 s{sS}, s{sG}, 3
    s_lshl_b32 s{sT}, s{sRT}, 7
    s_add_u32 s47, s{sT}, {WS_E}
    s_waitcnt lgkmcnt(0)
    s_load_dword s{sEP}, s[20:21], s47
    s_mov_b32 s{sWS}, s20
    s_mov_b32 s{sWS+1}, s21
    s_mov_b32 s{sWS+2}, 0x10000000
    s_mov_b32 s{sWS+3}, 0x20000
    s_lshl_b32 s47, s{sG}, 2
    s_add_u32 s62, s47, s{sT}
    s_add_u32 s62, s62, {WS_A}
    s_add_u32 s47, s47, s{sWAVE}
    s_add_u32 s47, s47, s{sT}
    s_lshl_b32 s{sDO}, s47, {11 if cfg.sk3 else 10}
    s_add_u32 s{sDO+1}, s{sDO}, {32768 << cfg.sk3}
    s_add_u32 s{sDO+2}, s{sDO}, {65536 << cfg.sk3}
    s_add_u32 s{sDO+3}, s{sDO}, {98304 << cfg.sk3}
    """)
    if cfg.om:
        e(f"""
        s_mov_b32 s{sOUT}, s16
        s_mov_b32 s{sOUT+1}, s17
        s_mov_b32 s{sOUT+2}, 0x400000
        s_mov_b32 s{sOUT+3}, 0x20000
        s_mov_b32 s16, s{sDO}
        s_lshl_b32 s17, s{sSEG}, 7
        s_and_b32 s47, s{sG}, 4
        s_add_u32 s17, s17, s47
        s_add_u32 s17, s17, s{sWAVE}
        s_lshl_b32 s17, s17, 1
        s_add_u32 s17, s17, s{sPAR}
        s_lshl_b32 s17, s17, 1
        s_add_u32 s17, s17, s{sBR}
        s_lshl_b32 s17, s17, 10
        """)
        for r in range(4):
            e(f"s_add_u32 s47, s{sS}, {r}\ns_and_b32 s47, s47, 3")
            if r < cfg.om: e(f"s_lshl_b32 s47, s47, 17\ns_add_u32 s47, s47, {32768*r}\ns_add_u32 s{sDO+r}, s47, s17")
            else: e(f"s_lshl_b32 s47, s47, 15\ns_add_u32 s{sDO+r}, s47, s16")
    e(f"""
    s_lshl_b32 s{sFO}, s{sRT}, 7
    s_and_b32 s47, s{sG}, 4
    s_add_u32 s{sFO}, s{sFO}, s47
    s_add_u32 s{sFO}, s{sFO}, s{sWAVE}
    s_lshl_b32 s{sFO}, s{sFO}, 2
    s_add_u32 s{sFO}, s{sFO}, {WS_FLAG}
    s_getreg_b32 s63, hwreg(HW_REG_XCC_ID, 0, 4)
    """)
    if cfg.rt:
        e(f"""
        v_lshlrev_b32 v1, {6 if cfg.rtn == 16 else 7}, v0
        v_bfrev_b32 v2, 2
        v_cmp_gt_u32 vcc, {cfg.rtn}, v0
        v_cndmask_b32 v234, v2, v1, vcc
        """)
    if cfg.ht and cfg.pf0 == -10:
        for q in range(4): e(f"buffer_store_dwordx4 {vr(VP+4,4)}, v{vSO}, {srd(sWS)}, s{sDO + q} offen {cfg.pf_flags}")
    if cfg.xap > 1:
        sh = {2: 5, 4: 4}[cfg.xap]
        e(f"v_lshrrev_b32 v1, {sh}, v0\nv_mov_b32 v2, v{VP+3}\nv_bfrev_b32 v3, 2")
        for k in range(cfg.xap):
            e(f"v_cmp_eq_u32 vcc, {k}, v1\nv_cndmask_b32 v{VP+3+k}, v3, v2, vcc")
    def tree(lab):
        e(f"""
        s_cmp_eq_u32 s{sS}, 1
        s_cbranch_scc1 {lab}1
        s_cmp_eq_u32 s{sS}, 2
        s_cbranch_scc1 {lab}2
        s_cmp_eq_u32 s{sS}, 3
        s_cbranch_scc1 {lab}3
        s_branch {lab}0
        """)
    e(f"""
    s_waitcnt vmcnt({4 if cfg.ht and cfg.pf0 == -10 else 0}) lgkmcnt(0)
    s_add_u32 s63, s63, s{sEP}
    s_add_u32 s63, s63, {K2}
    s_add_u32 s{sEP}, s{sEP}, {K1}
    v_mov_b32 v1, s63
    v_mov_b32 v{vFV}, s{sEP}
    s_cmp_eq_u32 s{sWAVE}, 0
    s_cbranch_scc0 L_noann
    buffer_store_dword v1, v{vFO}, {srd(sWS)}, s62 offen sc1
L_noann:
    """)
    if cfg.ht and cfg.pf0 == -11:
        for q in range(4): e(f"buffer_store_dwordx4 {vr(VP+4,4)}, v{vSO}, {srd(sWS)}, s{sDO + q} offen {cfg.pf_flags}")
    if cfg.warm and cfg.VS > 0:
        if cfg.wz: e("s_branch L_wz\nL_wzb:")
        tree("L_w")
        if cfg.sa: e(f".p2align {cfg.sa}")
        if cfg.so: e(f".fill {cfg.so // 4}, 4, 0xbf800000")
        e("L_wback:")
    def xreg(step, t): return BUF[step & 1] + 4*(t + 1)
    def wbase(step): return W15 if (step == cfg.R0 + 2) else BUF[step & 1] + 36
    def wreads(step):
        c, s = step >> 1, step & 1
        R = []
        for p in (1, 2, 0):
            for j in range(2):
                d = wbase(step) + 4*p + 2*j
                R.append(f"ds_read_b64_tr_b16 v[{d}:{d+1}], v{vWA + c % 3} offset:{s*12288 + p*1024 + j*512}")
        return R
    def xread(step, t):
        c, s = step >> 1, step & 1
        d = xreg(step, t)
        if t < 0: return f"ds_read_b128 v[{d}:{d+3}], v{vHA+s} offset:{c*1024}"
        return f"ds_read_b128 v[{d}:{d+3}], v{vXA+2*(c % 3)+s} offset:{t*2048}"
    def reads(step): return wreads(step) + [xread(step, t) for t in range(-1, 8)]
    def mf(step, t, j):
        a = (accQ, accK, accV)[j](t); w = vr(wbase(step) + 4*j, 4); x = vr(xreg(step, t), 4)
        c = "0" if step == 0 else vr(a, 4)
        ops = f"{x}, {w}" if j == 2 else f"{w}, {x}"
        return f"v_mfma_f32_16x16x32_bf16 {vr(a,4)}, {ops}, {c}"
    def mfmas(step):
        if cfg.order == 3:
            M = [mf(step, -1, 1)]
            for t in range(8):
                M += [mf(step, t, 1), mf(step, t, 0)] if t % 2 == 0 else [mf(step, t, 0), mf(step, t, 1)]
            M += [mf(step, t, 2) for t in range(-1, 8)]
        else:
            M = []
            for t in range(-1, 8):
                M += [mf(step, t, 1), mf(step, t, 2)] + ([mf(step, t, 0)] if t >= 0 else [])
        return M
    def kstep(step):
        e("s_waitcnt lgkmcnt(0)")
        if cfg.cs >= 0 and cfg.cs <= step < cfg.cs + 4: stamp()
        late_b = cfg.bp and step & 1 and step < 15 and cfg.bpm >> step & 1
        if step & 1 and step < 15 and not late_b:
            e("s_barrier")
            if step in (7,): stamp()
        if step == 12 and not cfg.late:
            e(f"v_cmp_ne_u32 vcc, 0, v{VP}")
        M = mfmas(step); F = reads(step + 1)
        if step == 11 and not cfg.late:
            F = F + [f"v_mov_b32 v{VP+1}, 0", f"ds_read_b32 v{VP}, v{VP+1}"]
        if cfg.ht and cfg.pfi >= 0 and step == cfg.pf0:
            F = F + [""] * (cfg.pfi - len(F))
            for q in range(4):
                F = F + [f"buffer_store_dwordx4 {vr(VP+4,4)}, v{vSO}, {srd(sWS)}, s{sDO + q} offen {cfg.pf_flags}", ""]
            assert len(F) <= 27
        if cfg.ht and cfg.pfi < 0 and cfg.pf0 <= step < cfg.pf0 + 4:
            F = F + [f"buffer_store_dwordx4 {vr(VP+4,4)}, v{vSO}, {srd(sWS)}, s{sDO + step - cfg.pf0} offen {cfg.pf_flags}"]
        if cfg.xa >= 0:
            at = lambda k: f"buffer_atomic_or v{VP+2}, v{VP+3+k}, {srd(sWS)}, s{sDO} offen {cfg.xa_flags}"
            if cfg.xap > 1:
                for k in range(cfg.xap):
                    if step == cfg.xa + k * cfg.xas: F = F + [at(k)]
            elif cfg.xas == 0:
                if step == cfg.xa: F = F + [at(0)]
            else:
                for w in range(4):
                    if step == cfg.xa + w * cfg.xas:
                        F = F + [f"s_cmp_eq_u32 s{sWAVE}, {w}", f"s_cbranch_scc0 L_xa{w}\n{at(0)}\nL_xa{w}:"]
        if not step & 1 and step >> 1 < cfg.hb:
            assert len(F) == 15 and cfg.bq >= 10
            F = F[6:] + [""] * (cfg.bq - 10) + ["s_barrier"] + ["\n".join(F[k:k+cfg.rp]) for k in range(0, 6, cfg.rp)]
            F = csync(F, cfg.bq - 1, step + 1)
        if late_b:
            F = [""] * (cfg.bp - 1) + ["s_barrier" + ("\n" + stamp_text() if cfg.stamps and (step == 7 if cfg.cs < 0 else cfg.cs <= step < cfg.cs + 4) else "")] + ["\n".join(F[k:k+cfg.rp]) for k in range(0, len(F), cfg.rp)]
            assert len(F) <= len(M)
            F = csync(F, cfg.bp - 1, step + 1)
        for i, m in enumerate(M):
            e(m)
            if i < len(F): e(F[i])
    def Vp(t): return VP + 2*(7 - t)
    def region(s):
        dstores = []
        stubs = []
        R0 = cfg.R0
        units = []
        first = 2*s - 1
        units.append((0, first, (1, 2)))
        for r in range(4):
            q = (r + s) & 3
            if q == 0 and s != 0: units.append((r, -1, (1, 2)))
            a, b = 2*q, 2*q + 1
            units.append((r, a, (1, 0, 2)))
            units.append((r, b, (0,) if b == first else (1, 0, 2)))
        I = []
        seen = set()
        for step in range(R0, 16):
            if step > R0:
                for k, x in enumerate(wreads(step)): I.append(Item(x, (-2, step, k)))
                tl = []
                for u, (r, t, js) in enumerate(units):
                    if t not in tl:
                        tl.append(t); I.append(Item(xread(step, t), (-1, u, step)))
            for u, (r, t, js) in enumerate(units):
                for k, j in enumerate(js):
                    rr = 0 if (js == (0,) and step + 2 <= 15) else r
                    I.append(Item(mf(step, t, j), (rr, 0, 0 if rr != r else u, step, k), tag=(f"g{r}" if step == 15 and u == len(units) - 1 and j == js[-1] else None)))
        if cfg.late:
            I.append(Item(f"v_mov_b32 v{vXA}, 0", (-3, 0)))
            I.append(Item(f"ds_read_b32 v{vXA+1}, v{vXA}", (-1, 99)))
            I.append(Item(f"v_cmp_ne_u32 vcc, 0, v{vXA+1}", (0, 0)))
        cv = lambda d, a, n: f"v_cvt_pk_bf16_f32 v{d}, v{a+2*n}, v{a+2*n+1}"
        kdone = set()
        prev_store = None; prev_flag = None
        for r in range(4):
            q = (r + s) & 3
            a, b = 2*q, 2*q + 1
            n = [0]
            def add(text, **kw):
                n[0] += 1
                it = Item(text, (r, 1, n[0]), **kw); I.append(it); return it
            for t in (a - 1, a, b):
                if t not in kdone:
                    kdone.add(t)
                    add(cv(accK(t), accK(t), 0)); add(cv(accK(t) + 1, accK(t), 1))
                    add(cv(Vp(t), accV(t), 0)); add(cv(Vp(t) + 1, accV(t), 1))
            XE = lambda t: BUF[0] + 4*(t + 1)
            XO = lambda t: BUF[1] + 4*(t + 1)
            for t in (a, b):
                Q = accQ(t)
                for k in range(2): add(f"v_cndmask_b32 v{accK(t)+2+k}, v{accK(t)+k}, v{accK(t-1)+k}, s[{sMH}:{sMH+1}]")
                add(cv(Q, Q, 0)); add(cv(Q + 1, Q, 1))
                for k in range(2): add(f"v_cndmask_b32 v{Q+2+k}, v{Q+k}, 0, s[{sMH}:{sMH+1}]")
                for k in range(2): add(f"v_cndmask_b32 v{Q+k}, 0, v{Q+k}, s[{sMH}:{sMH+1}]")
                add(f"v_mfma_f32_16x16x32_bf16 {vr(XE(t),4)}, {vr(accK(t),4)}, {vr(Q,4)}, {vr(vB0 if t == 0 else vB,4)}")
            for t in (a, b):
                S = XE(t)
                add(f"v_max3_f32 v{XO(t)}, v{S}, v{S+1}, v{S+2}")
                add(f"v_max_f32 v{XO(t)}, v{XO(t)}, v{S+3}")
            ma, mb = XO(a), XO(b)
            add(f"v_permlane32_swap_b32 v{ma}, v{mb}")
            add(f"v_max_f32 v{ma+1}, v{ma}, v{mb}")
            add(f"v_max_f32 v{ma}, v{ma}, v{mb}")
            add(f"v_permlane16_swap_b32 v{ma}, v{ma+1}")
            add(f"v_max_f32 v{ma}, v{ma}, v{ma+1}")
            add(f"v_mul_f32 v{mb}, s{sSC}, -v{ma}")
            add(f"v_mul_f32 v{ma}, s{sSC}, -v{ma}")
            add(f"v_permlane32_swap_b32 v{ma}, v{mb}")
            for t in (a, b):
                S = XE(t); P = accQ(t)
                for k in range(4): add(f"v_fma_f32 v{S+k}, v{S+k}, s{sSC}, v{XO(t)}")
                for k in range(4): add(f"v_exp_f32 v{S+k}, v{S+k}")
                add(cv(P, S, 0)); add(cv(P + 1, S, 1))
                for k in range(2): add(f"v_cndmask_b32 v{P+2+k}, 0, v{P+k}, s[{sPM}:{sPM+1}]")
                for k in range(2): add(f"v_cndmask_b32 v{P+k}, v{P+k}, 0, s[{sPM}:{sPM+1}]")
                add(f"v_mfma_f32_16x16x32_bf16 {vr(XO(t),4)}, {vr(vONE,4)}, {vr(P,4)}, 0")
                add(f"v_mfma_f32_16x16x32_bf16 {vr(accV(t),4)}, {vr(Vp(t),4)}, {vr(P,4)}, 0")
            OP = XE(a)
            for t in (a, b):
                O = accV(t)
                add(f"v_rcp_f32 v{XO(t)}, v{XO(t)}")
                for k in range(4): add(f"v_mul_f32 v{O+k}, v{O+k}, v{XO(t)}")
                add(cv(OP + 2*(t - a), O, 0)); add(cv(OP + 2*(t - a) + 1, O, 1))
            add(f"v_permlane16_swap_b32 v{OP}, v{OP+2}")
            add(f"v_permlane16_swap_b32 v{OP+1}, v{OP+3}")
            st = f"buffer_store_dwordx4 {vr(OP,4)}, v{vSO}, {srd(sWS)}, s{sDO+q} offen"
            if cfg.om: st = f"buffer_store_dwordx4 {vr(OP,4)}, v{vSO}, {srd(sOUT if r < cfg.om else sWS)}, s{sDO+r} offen"
            fl = f"buffer_store_dword v{vFV}, v{vFO}, {srd(sWS)}, s{sFO} offen offset:{q*128 + r*32}"
            sx = ("\n" + stamp_text()) if cfg.stamps and cfg.cs < 0 else ""
            if cfg.ht:
                add(f"v_min_u32 v{OP}, -2, v{OP}")
                t1, t2 = (f"{st} {cfg.fast_flags}", f"{fl} {cfg.ffl_flags}")
                if cfg.hbad: t1, t2 = t2 + "\n" + "s_nop 15\n" * cfg.hbad, t1
                w0 = "s_waitcnt vmcnt(0)\n" if r == 0 else ""
                store = add(f"{w0}s_cbranch_vccz L_ss{s}{r}\n{t1}\n{t2}\nL_sb{s}{r}:{sx}", tag=f"st{r}", urgent=True,
                            after=[(prev_store, 0)] if prev_store else None)
                stubs.append(f"L_ss{s}{r}:\n{st} sc1\ns_waitcnt vmcnt(0)\n{fl} sc1\ns_branch L_sb{s}{r}")
                if r == cfg.b8 or r == cfg.b9: add("s_barrier", after=[(store, 0)], urgent=True)
                prev_store = store
                continue
            dstores.append(st)
            if cfg.scm >> r & 1:
                store = add(f"{st} sc1{sx}", tag=f"st{r}", urgent=True, after=[(prev_store, 0)] if prev_store else None)
            else:
                store = add(f"s_cbranch_vccz L_ss{s}{r}\n{st} {cfg.fast_flags}\nL_sb{s}{r}:{sx}", tag=f"st{r}", urgent=True,
                            after=[(prev_store, 0)] if prev_store else None)
                stubs.append(f"L_ss{s}{r}:\n{st} sc1\ns_branch L_sb{s}{r}")
            if r == cfg.b8 or r == cfg.b9: add("s_barrier", after=[(store, 0)], urgent=True)
            tch = f"buffer_load_dword v{OP}, v234, {srd(sWS)}, s{sDO+q} offen {cfg.rt_flags}"
            if cfg.rt >> r & 1 and cfg.rtp == 0:
                prev_flag = add(tch, tag=f"tc{r}", urgent=True, waitvm=store, after=[(store, cfg.LF)] + ([(prev_flag, 0)] if prev_flag else []))
            flag = add(f"s_cbranch_vccz L_fs{s}{r}\n{fl} {cfg.ffl_flags}\nL_fb{s}{r}:", tag=f"fl{r}", urgent=True, waitvm=None if cfg.rt >> r & 1 and cfg.rtp == 0 else store,
                       after=[(store, cfg.LF)] + ([(prev_flag, 0)] if prev_flag else []))
            if cfg.rt >> r & 1 and cfg.rtp == 1:
                flag = add(tch, tag=f"tc{r}", urgent=True, after=[(flag, 0)])
            stubs.append(f"L_fs{s}{r}:\n{fl} sc1\ns_branch L_fb{s}{r}")
            prev_store = store; prev_flag = flag
        e("s_waitcnt lgkmcnt(0)")
        if R0 & 1 and R0 < 15: e("s_barrier")
        stamp()
        if cfg.prio: e(f"s_setprio {cfg.prio}")
        out, t = schedule(I, mfma_first=bool(cfg.mf), ds_lat=cfg.dslat, verbose=cfg.verbose)
        for x in out: e(x)
        if cfg.ds:
            if cfg.wbw: e("s_waitcnt vmcnt(0)")
            for r, x in enumerate(dstores):
                if cfg.ds >> r & 1: e(f"{x} {cfg.ds_flags}")
        if cfg.wb:
            if cfg.wb == 1: e(f"s_cmp_lg_u32 s{sWAVE}, 0")
            if cfg.wb == 2: e(f"s_or_b32 s{sT+6}, s{sWAVE}, s{sG}")
            if cfg.wb == 4: e(f"s_and_b32 s{sT+6}, s{sRT}, 3\ns_or_b32 s{sT+6}, s{sT+6}, s{sWAVE}\ns_or_b32 s{sT+6}, s{sT+6}, s{sG}")
            if cfg.wb != 3: e(f"s_cbranch_scc1 L_wb{s}")
            if cfg.wbw: e("s_waitcnt vmcnt(0)")
            e(f"buffer_wbl2 sc1\nL_wb{s}:")
        return stubs
    stamp()
    if cfg.VS > 0:
        e("s_barrier")
        stamp()
        for x in reads(0): e(x)
        for step in range(cfg.VS): kstep(step)
    tree("L_v")
    for x in pstubs: e(x)
    if cfg.wz: e("L_wz:\ns_branch L_wzb")
    n0 = nst[0]
    for s in range(4):
        nst[0] = n0
        e(f".p2align {cfg.pa}\nL_w{s}:")
        e("s_branch L_wback\ns_nop 0" if cfg.warm and cfg.VS > 0 else "s_nop 0\ns_nop 0")
        e(f"L_v{s}:")
        if cfg.VS == 0:
            e("s_barrier")
            stamp()
            for x in reads(0): e(x)
        for step in range(cfg.VS, cfg.R0): kstep(step)
        stubs = region(s)
        stamp()
        dump_stamps(nst[0])
        e("s_endpgm")
        for x in stubs: e(x)
        e(f"L_ve{s}:")
    if cfg.ka: e(f".p2align {cfg.ka}")
    body, added = hz.fix("\n".join(L))
    return body, added

def finish(body, VSZ, ko=0):
    K = NAME + "_kernel"
    for s in range(4):
        body = body.replace(f"L_ve{s}:", f"L_ve{s}:\n.fill ({VSZ}-(L_ve{s}-L_w{s}))/4, 4, 0xbf800000")
    s = HDR.format(launch="; @launch grid=(256,1,1) block=(512,1,1) lds=163840") + (f".fill {ko // 4}, 4, 0xbf800000\n" if ko else "") + kernel_head(K) + body + "\n"
    s += ".fill 64, 4, 0xbf800000\n"
    s += kernel_desc(K, 256, 256, 102)
    return s

def build(cfg):
    import subprocess, re, os
    body, added = gen(cfg)
    tmp = f"g3_{os.getpid()}"
    open(tmp + ".s", "w").write(finish(body, 0).replace(".fill (0-", ".fill 0*(0-"))
    subprocess.run(["clang", "-x", "assembler", "-target", "amdgcn-amd-amdhsa", "-mcpu=gfx950", "-c", tmp + ".s", "-o", tmp + ".o"], check=True)
    sy = subprocess.run(["llvm-objdump", "-t", tmp + ".o"], capture_output=True, text=True).stdout
    A = {l.split()[-1]: int(l.split()[0], 16) for l in sy.strip().split("\n") if re.match(r"^[0-9a-f]{16} ", l)}
    sz = max(A[f"L_ve{s}"] - A[f"L_w{s}"] for s in range(4))
    sz = (sz + 63) // 64 * 64
    return finish(body, sz, cfg.ko), added, (A["L_compute"], A["L_w0"], sz)

if __name__ == "__main__":
    kw = {}
    for a in sys.argv[2:]:
        k, v = a.split("=")
        if k == "tabs":
            for nm, t in zip(("tabA", "tabB", "tabC", "tabD"), v.split(",")):
                assert sorted(t) == list("01234567"); kw[nm] = int(t[::-1], 16)
            continue
        kw[k] = v.replace("+", " ") if k.endswith("flags") or k.startswith("dma_") else int(v, 0)
    s, added, info = build(Cfg(**kw))
    open(sys.argv[1], "w").write(s)
    print("nops added", added, "sizes", info)
```
